```python
import torch

def _softmax(x, axis=-1):
    return torch.softmax(x, dim=axis)
def _gelu(x):
    return torch.nn.functional.gelu(x, approximate="tanh")
def _silu(x):
    return torch.nn.functional.silu(x)
def _sigmoid(x):
    return torch.sigmoid(x)
def _layernorm(x, axis=-1, eps=1e-5):
    m = x.mean(dim=axis, keepdim=True)
    v = x.var(dim=axis, keepdim=True, unbiased=False)
    return (x - m) / torch.sqrt(v + eps)
def _scatter_add(tgt, idx, src, axis=0):
    return tgt.clone().index_add_(axis, idx, src)
def _segment_sum(src, seg, n):
    out = torch.zeros((n,) + src.shape[1:], dtype=src.dtype)
    return out.index_add_(0, seg, src)
def _pad(x, pw):
    flat = tuple(v for pair in reversed(pw) for v in pair)
    return torch.nn.functional.pad(x, flat)

kernel_name = 'standalone__channel_attn_eca__vision'

def setup_inputs():

    _w = (lambda a: (lambda t: t.to(torch.bfloat16) if t.is_floating_point() else t)(torch.as_tensor(a)))
    H = W = 384
    C = 96
    k = 3
    return {
        "x": _w((lambda *s: torch.randn(*s, dtype=torch.bfloat16) * 0.2)(1, H, W, C) + (lambda *s: torch.randn(*s, dtype=torch.bfloat16) * 0.2)(1, 1, 1, C) * 2.0),
        "w1d": _w((lambda *s: torch.randn(*s, dtype=torch.bfloat16) * 0.4)(k)),
    }

def reference(x, w1d):
    B, H, W, C = x.shape
    k = 3
    pad = k // 2
    g = torch.einsum("bhwc->bc", x) / (H * W)
    gp = _pad(g, ((0, 0), (pad, pad)))
    s = torch.zeros_like(g)
    for i in range(k):
        s = s + gp[:, i:i + C] * w1d[i]
    s = _sigmoid(s)
    return x * s[:, None, None, :]
```

```python
import sys, argparse
from asmlib import *
ap = argparse.ArgumentParser()
ap.add_argument("-o", default="v1.s")
ap.add_argument("--R", type=int, default=8)
ap.add_argument("--stamp", action="store_true")
ap.add_argument("--ld", default="")
ap.add_argument("--st", default="")
ap.add_argument("--sy", default="sc1")
ap.add_argument("--sleep", type=int, default=0)
ap.add_argument("--maxpoll", type=int, default=200000)
a = ap.parse_args()
R = a.R; NLD = R // 2
o = []
E = o.append
def stamp(k):
    if a.stamp:
        E(f"  s_memrealtime s[{32+2*k}:{33+2*k}]")
E(HEADER + "; @launch grid=(256,1,1) block=(1024,1,1) lds=1024")
E(f""".amdgcn_target "amdgcn-amd-amdhsa--gfx950"
.text
.globl {KN}
.p2align 8
.type {KN},@function
{KN}:""")
D = 4; SEL = 40; ACC = 44; U = 48; S = 102; P = 108; T = 124
stamp(0)
E(f"""  s_cmp_ge_u32 s2, 256
  s_cbranch_scc1 L_end
  s_load_dwordx4 s[4:7], s[0:1], 0
  s_load_dwordx4 s[8:11], s[0:1], 16
  s_load_dwordx2 s[12:13], s[0:1], 32
  v_lshrrev_b32 v2, 6, v0
  v_and_b32 v3, 63, v0
  v_mul_u32_u24 v1, 6912, v2
  v_mad_u32_u24 v1, v3, 12, v1
  s_mul_i32 s3, s2, 110592
  s_add_u32 s3, s3, 3072
  v_add_u32 v1, s3, v1
  v_readfirstlane_b32 s14, v2
  s_waitcnt lgkmcnt(0)
  s_load_dwordx2 s[16:17], s[6:7], 0""")
E(f"""  s_cmp_lt_u32 s2, {R}
  s_cselect_b32 s15, 1, 0
  s_cmp_eq_u32 s14, 2
  s_cselect_b32 s15, s15, 0
  s_cmp_eq_u32 s15, 0
  s_cbranch_scc1 L_nozero
  v_mov_b32 v{T}, 0
  s_lshl_b32 s18, s2, 9
  v_lshl_add_u32 v{T+1}, v3, 3, s18
  v_mov_b32 v{T+2}, 0
  v_mov_b32 v{T+3}, 0
  global_store_dwordx2 v{T+1}, v[{T+2}:{T+3}], s[12:13] {a.sy}
L_nozero:""")
for i in range(9):
    E(f"  global_load_dwordx3 v[{D+4*i}:{D+4*i+2}], v1, s[4:5] offset:{(i-4)*768} {a.ld}")
stamp(1)
E(f"""  s_cmp_eq_u32 s15, 0
  s_cbranch_scc1 L_noflag
  s_waitcnt vmcnt(9)
  s_lshl_b32 s18, s2, 2
  v_mov_b32 v{T}, 1
  v_mov_b32 v{T+1}, s18
  s_mov_b64 exec, 1
  global_store_dword v{T+1}, v{T}, s[10:11] {a.sy}
  s_mov_b64 exec, -1
  s_waitcnt vmcnt(0)
L_noflag:""")
for i in range(9):
    E(f"  v_mov_b32 v{D+4*i+3}, 0")
E(f"""  v_and_b32 v{T}, 15, v3
  v_and_b32 v{T+1}, 1, v{T}
  v_lshlrev_b32 v{T+1}, 4, v{T+1}
  v_mov_b32 v{T+2}, 0x3f80
  v_lshlrev_b32 v{T+2}, v{T+1}, v{T+2}
  v_lshrrev_b32 v{T+1}, 1, v{T}
  v_cmp_eq_u32 s[18:19], 0, v{T+1}
  v_cmp_eq_u32 s[20:21], 1, v{T+1}
  v_cmp_eq_u32 s[22:23], 2, v{T+1}
  v_mov_b32 v{SEL+3}, 0
  v_cndmask_b32 v{SEL}, 0, v{T+2}, s[18:19]
  v_cndmask_b32 v{SEL+1}, 0, v{T+2}, s[20:21]
  v_cndmask_b32 v{SEL+2}, 0, v{T+2}, s[22:23]""")
E(f"""  v_lshlrev_b32 v{P+14}, 2, v0
  v_and_b32 v{P+15}, 3, v0
  v_cmp_eq_u32 vcc, 3, v{P+15}
  s_cmp_ge_u32 s14, 2
  s_nop 0
  v_cndmask_b32 v{P+15}, 0, 1.0, vcc
  s_cbranch_scc1 L_noinit
  ds_write_b32 v{P+14}, v{P+15}
L_noinit:""")
E(f"""  v_lshrrev_b32 v{T+1}, 4, v3
  v_lshlrev_b32 v{T+1}, 7, v{T+1}
  v_lshl_add_u32 v{T+1}, v{T}, 2, v{T+1}
  v_cmp_lt_u32 vcc, 2, v{T}
  v_add_u32 v{T+2}, 4, v{T+1}
  v_mul_u32_u24 v{T+3}, 24, v{T}
  v_cndmask_b32 v{T+1}, v{T+1}, v{T+2}, vcc
  s_waitcnt lgkmcnt(0)
  s_barrier""")
waits = [8,7,6,5,4,3,2,1,0]
for i in range(9):
    E(f"  s_waitcnt vmcnt({waits[i]})")
    c = "0" if i == 0 else f"v[{ACC}:{ACC+3}]"
    E(f"  v_mfma_f32_16x16x32_bf16 v[{ACC}:{ACC+3}], v[{D+4*i}:{D+4*i+3}], v[{SEL}:{SEL+3}], {c}")
stamp(2)
E(f"""  s_mov_b32 s18, 0x003f003f
  s_mov_b32 s19, 0x003f003f
  s_nop 5
  s_mov_b64 exec, s[18:19]""")
for r in range(4):
    E(f"  ds_add_f32 v{T+1}, v{ACC+r} offset:{32*r}")
E(f"""  s_mov_b64 exec, -1
  s_waitcnt lgkmcnt(0)
  s_barrier""")
stamp(3)
E(f"""  s_cmp_ge_u32 s14, 2
  s_cbranch_scc1 L_noatom
  ds_read_b32 v{P+15}, v{P+14}
  v_lshlrev_b32 v{P}, 2, v3
  s_mov_b32 s24, {a.maxpoll}
L_flagpoll:
  s_mov_b64 exec, {(1<<R)-1}
  global_load_dword v{P+1}, v{P}, s[10:11] {a.sy}
  s_waitcnt vmcnt(0)
  v_cmp_ne_u32 vcc, 0, v{P+1}
  s_sub_u32 s24, s24, 1
  s_cbranch_scc1 L_flagok
  s_cmp_eq_u64 vcc, exec
  s_cbranch_scc0 L_flagpoll
L_flagok:
  s_mov_b64 exec, -1
  s_and_b32 s18, s2, {R-1}
  s_lshl_b32 s18, s18, 9
  v_add_u32 v{P+14}, s18, v{P+14}
  s_waitcnt lgkmcnt(0)
  global_atomic_add_f32 v{P+14}, v{P+15}, s[12:13]
L_noatom:""")
E("  s_mov_b32 s25, 0xffff0000")
for i in range(9):
    for d in range(3):
        E(f"  v_lshlrev_b32 v{U+6*i+2*d}, 16, v{D+4*i+d}")
        E(f"  v_and_b32 v{U+6*i+2*d+1}, s25, v{D+4*i+d}")
E(f"""  s_cmp_lg_u32 s14, 0
  s_cbranch_scc1 L_wait
  v_lshlrev_b32 v{T}, 4, v3
  s_mov_b32 s24, {a.maxpoll}
  s_mov_b32 s26, {hex(__import__('struct').unpack('<I', __import__('struct').pack('<f', 256.0/R))[0])}
L_poll:""")
for k in range(NLD):
    E(f"  global_load_dwordx4 v[{P+4*k}:{P+4*k+3}], v{T}, s[12:13] offset:{1024*k} {a.sy}")
if a.sleep: E(f"  s_sleep {a.sleep}")
for k in range(NLD):
    E(f"  s_waitcnt vmcnt({NLD-1-k})")
    E(f"  v_cmp_eq_f32 s[{18+2*(k%2)}:{19+2*(k%2)}], s26, v{P+4*k+3}")
    if k == 0:
        E("  s_mov_b64 s[22:23], s[18:19]")
    else:
        E(f"  s_and_b64 s[22:23], s[22:23], s[{18+2*(k%2)}:{19+2*(k%2)}]")
E(f"""  s_sub_u32 s24, s24, 1
  s_cbranch_scc1 L_pollok
  s_cmp_eq_u64 s[22:23], exec
  s_cbranch_scc0 L_poll
L_pollok:""")
stamp(4)
for k in range(1, NLD):
    for j in range(3):
        E(f"  v_add_f32 v{P+j}, v{P+j}, v{P+4*k+j}")
for j in range(3):
    E(f"  v_mov_b32 v{P+4+j}, v{P+j}")
E("  s_nop 1")
for j in range(3):
    E(f"  v_permlane32_swap_b32 v{P+j}, v{P+4+j}")
E("  s_waitcnt lgkmcnt(0)")
E("  s_mov_b32 exec_hi, 0")
for j in range(3):
    E(f"  v_add_f32 v{P+j}, v{P+j}, v{P+4+j}")
E(f"""  s_lshl_b32 s18, s16, 16
  s_and_b32 s19, s16, 0xffff0000
  s_lshl_b32 s20, s17, 16
  s_mov_b32 s21, {hex(__import__('struct').unpack('<I', __import__('struct').pack('<f', 1.0/147456.0))[0])}""")
def rne3(regs, tmp):
    E(f"  v_cvt_pk_bf16_f32 v{tmp}, v{regs[0]}, v{regs[1]}")
    E(f"  v_cvt_pk_bf16_f32 v{tmp+1}, v{regs[2]}, v{regs[2]}")
    E(f"  v_lshlrev_b32 v{regs[0]}, 16, v{tmp}")
    E(f"  v_and_b32 v{regs[1]}, s25, v{tmp}")
    E(f"  v_lshlrev_b32 v{regs[2]}, 16, v{tmp+1}")
g = [P+1, P+2, P+3]
E(f"  v_mov_b32 v{P+3}, v{P+2}")
E(f"  v_mov_b32 v{P+2}, v{P+1}")
E(f"  v_mov_b32 v{P+1}, v{P}")
rne3(g, P+12)
for r in g: E(f"  v_mul_f32 v{r}, s21, v{r}")
rne3(g, P+12)
E("  s_nop 1")
E(f"  v_mov_b32_dpp v{P}, v{P+3} wave_shr:1 row_mask:0xf bank_mask:0xf bound_ctrl:0")
E(f"  v_mov_b32_dpp v{P+4}, v{P+1} wave_shl:1 row_mask:0xf bank_mask:0xf bound_ctrl:0")
p0 = [P+5, P+6, P+7]; p1 = [P+8, P+9, P+10]
for j in range(3): E(f"  v_mul_f32 v{p0[j]}, s18, v{P+j}")
for j in range(3): E(f"  v_mul_f32 v{p1[j]}, s19, v{P+1+j}")
rne3(p0, P+12); rne3(p1, P+14)
for j in range(3): E(f"  v_add_f32 v{p0[j]}, v{p0[j]}, v{p1[j]}")
for j in range(3): E(f"  v_mul_f32 v{p1[j]}, s20, v{P+2+j}")
rne3(p0, P+12); rne3(p1, P+14)
for j in range(3): E(f"  v_add_f32 v{p0[j]}, v{p0[j]}, v{p1[j]}")
rne3(p0, P+12)
for j in range(3): E(f"  v_mul_f32 v{p0[j]}, 0xbfb8aa3b, v{p0[j]}")
for j in range(3): E(f"  v_exp_f32 v{p0[j]}, v{p0[j]}")
E("  s_nop 0")
for j in range(3): E(f"  v_add_f32 v{p0[j]}, 1.0, v{p0[j]}")
for j in range(3): E(f"  v_rcp_f32 v{p0[j]}, v{p0[j]}")
E("  s_nop 0")
rne3(p0, P+12)
E(f"  v_mul_u32_u24 v{T}, 12, v3")
E(f"  ds_write2_b32 v{T}, v{p0[0]}, v{p0[1]} offset0:128 offset1:129")
E(f"  ds_write_b32 v{T}, v{p0[2]} offset:520")
E(f"""  s_mov_b64 exec, -1
  s_waitcnt lgkmcnt(0)
L_wait:
  s_barrier""")
stamp(5)
for j in range(3):
    E(f"  ds_read_b64 v[{S+2*j}:{S+2*j+1}], v{T+3} offset:{512+8*j}")
E("  s_waitcnt lgkmcnt(0)")
for i in range(9):
    for d in range(3):
        E(f"  v_pk_mul_f32 v[{U+6*i+2*d}:{U+6*i+2*d+1}], v[{U+6*i+2*d}:{U+6*i+2*d+1}], v[{S+2*d}:{S+2*d+1}]")
    for d in range(3):
        E(f"  v_cvt_pk_bf16_f32 v{D+4*i+d}, v{U+6*i+2*d}, v{U+6*i+2*d+1}")
    E(f"  global_store_dwordx3 v1, v[{D+4*i}:{D+4*i+2}], s[8:9] offset:{(i-4)*768} {a.st}")
if a.stamp:
    stamp(6)
    E("  s_waitcnt vmcnt(0)")
    stamp(7)
    E(f"""  s_cmp_lg_u32 s14, 0
  s_cbranch_scc1 L_end
  s_getreg_b32 s50, hwreg(HW_REG_XCC_ID)
  s_getreg_b32 s51, hwreg(HW_REG_HW_ID)
  s_waitcnt lgkmcnt(0)
  s_lshl_b32 s18, s2, 6
  s_add_u32 s18, s18, {64<<20}
  v_mov_b32 v1, s18""")
    for k in range(8):
        E(f"  v_mov_b32 v{4+k}, s{32+2*k}")
    E("  v_mov_b32 v12, s50")
    E("  v_mov_b32 v13, s51")
    E("  v_mov_b32 v14, s24")
    E("  s_mov_b64 exec, 1")
    E("  global_store_dwordx4 v1, v[4:7], s[12:13]")
    E("  global_store_dwordx4 v1, v[8:11], s[12:13] offset:16")
    E("  global_store_dwordx4 v1, v[12:15], s[12:13] offset:32")
E("L_end:\n  s_endpgm")
E(kd(KN, 128, 64))
open(a.o, "w").write("\n".join(o) + "\n")
print(build(a.o))
```

```python
import sys, argparse
from asmlib import *
ap = argparse.ArgumentParser()
ap.add_argument("-o", default="v1.s")
ap.add_argument("--R", type=int, default=8)
ap.add_argument("--stamp", action="store_true")
ap.add_argument("--ld", default="")
ap.add_argument("--st", default="")
ap.add_argument("--sy", default="sc1")
ap.add_argument("--exf", default="")
ap.add_argument("--sleep", type=int, default=0)
ap.add_argument("--maxpoll", type=int, default=200000)
a = ap.parse_args()
if a.exf: a.stamp = True
R = a.R; NLD = R // 2
o = []
E = o.append
def stamp(k):
    if a.stamp:
        E(f"  s_memrealtime s[{32+2*k}:{33+2*k}]")
E(HEADER + "; @launch grid=(256,1,1) block=(1024,1,1) lds=1024")
E(f""".amdgcn_target "amdgcn-amd-amdhsa--gfx950"
.text
.globl {KN}
.p2align 8
.type {KN},@function
{KN}:""")
D = 4; SEL = 40; ACC = 44; U = 48; S = 102; P = 108; T = 124
stamp(0)
E(f"""  s_cmp_ge_u32 s2, 256
  s_cbranch_scc1 L_end
  s_load_dwordx4 s[4:7], s[0:1], 0
  s_load_dwordx4 s[8:11], s[0:1], 16
  s_load_dwordx2 s[12:13], s[0:1], 32
  v_lshrrev_b32 v2, 6, v0
  v_and_b32 v3, 63, v0
  v_mul_u32_u24 v1, 6912, v2
  v_mad_u32_u24 v1, v3, 12, v1
  s_mul_i32 s3, s2, 110592
  s_add_u32 s3, s3, 3072
  v_add_u32 v1, s3, v1
  v_readfirstlane_b32 s14, v2
  s_waitcnt lgkmcnt(0)
  s_load_dwordx2 s[16:17], s[6:7], 0""")
E(f"""  s_cmp_lt_u32 s2, {R}
  s_cselect_b32 s15, 1, 0
  s_cmp_eq_u32 s14, 2
  s_cselect_b32 s15, s15, 0
  s_cmp_eq_u32 s15, 0
  s_cbranch_scc1 L_nozero
  v_mov_b32 v{T}, 0
  s_lshl_b32 s18, s2, 9
  v_lshl_add_u32 v{T+1}, v3, 3, s18
  v_mov_b32 v{T+2}, 0
  v_mov_b32 v{T+3}, 0
  global_store_dwordx2 v{T+1}, v[{T+2}:{T+3}], s[12:13] {a.sy}
L_nozero:""")
for i in range(9):
    E(f"  global_load_dwordx3 v[{D+4*i}:{D+4*i+2}], v1, s[4:5] offset:{(i-4)*768} {a.ld}")
stamp(1)
E(f"""  s_cmp_eq_u32 s15, 0
  s_cbranch_scc1 L_noflag
  s_waitcnt vmcnt(9)
  s_lshl_b32 s18, s2, 2
  v_mov_b32 v{T}, 1
  v_mov_b32 v{T+1}, s18
  s_mov_b64 exec, 1
  global_store_dword v{T+1}, v{T}, s[10:11] {a.sy}
  s_mov_b64 exec, -1
  s_waitcnt vmcnt(0)
L_noflag:""")
for i in range(9):
    E(f"  v_mov_b32 v{D+4*i+3}, 0")
E(f"""  v_and_b32 v{T}, 15, v3
  v_and_b32 v{T+1}, 1, v{T}
  v_lshlrev_b32 v{T+1}, 4, v{T+1}
  v_mov_b32 v{T+2}, 0x3f80
  v_lshlrev_b32 v{T+2}, v{T+1}, v{T+2}
  v_lshrrev_b32 v{T+1}, 1, v{T}
  v_cmp_eq_u32 s[18:19], 0, v{T+1}
  v_cmp_eq_u32 s[20:21], 1, v{T+1}
  v_cmp_eq_u32 s[22:23], 2, v{T+1}
  v_mov_b32 v{SEL+3}, 0
  v_cndmask_b32 v{SEL}, 0, v{T+2}, s[18:19]
  v_cndmask_b32 v{SEL+1}, 0, v{T+2}, s[20:21]
  v_cndmask_b32 v{SEL+2}, 0, v{T+2}, s[22:23]""")
E(f"""  v_lshlrev_b32 v{P+14}, 2, v0
  v_and_b32 v{P+15}, 3, v0
  v_cmp_eq_u32 vcc, 3, v{P+15}
  s_cmp_ge_u32 s14, 2
  s_nop 0
  v_cndmask_b32 v{P+15}, 0, 1.0, vcc
  s_cbranch_scc1 L_noinit
  ds_write_b32 v{P+14}, v{P+15}
L_noinit:""")
E(f"""  v_lshrrev_b32 v{T+1}, 4, v3
  v_lshlrev_b32 v{T+1}, 7, v{T+1}
  v_lshl_add_u32 v{T+1}, v{T}, 2, v{T+1}
  v_cmp_lt_u32 vcc, 2, v{T}
  v_add_u32 v{T+2}, 4, v{T+1}
  v_mul_u32_u24 v{T+3}, 24, v{T}
  v_cndmask_b32 v{T+1}, v{T+1}, v{T+2}, vcc
  s_waitcnt lgkmcnt(0)
  s_barrier""")
waits = [8,7,6,5,4,3,2,1,0]
for i in range(9):
    E(f"  s_waitcnt vmcnt({waits[i]})")
    c = "0" if i == 0 else f"v[{ACC}:{ACC+3}]"
    E(f"  v_mfma_f32_16x16x32_bf16 v[{ACC}:{ACC+3}], v[{D+4*i}:{D+4*i+3}], v[{SEL}:{SEL+3}], {c}")
stamp(2)
E(f"""  s_mov_b32 s18, 0x003f003f
  s_mov_b32 s19, 0x003f003f
  s_nop 5
  s_mov_b64 exec, s[18:19]""")
for r in range(4):
    E(f"  ds_add_f32 v{T+1}, v{ACC+r} offset:{32*r}")
E(f"""  s_mov_b64 exec, -1
  s_waitcnt lgkmcnt(0)
  s_barrier""")
stamp(3)
E(f"""  s_cmp_ge_u32 s14, 2
  s_cbranch_scc1 L_noatom
  ds_read_b32 v{P+15}, v{P+14}
  v_lshlrev_b32 v{P}, 2, v3
  s_mov_b32 s24, {a.maxpoll}
L_flagpoll:
  s_mov_b64 exec, {(1<<R)-1}
  global_load_dword v{P+1}, v{P}, s[10:11] {a.sy}
  s_waitcnt vmcnt(0)
  v_cmp_ne_u32 vcc, 0, v{P+1}
  s_sub_u32 s24, s24, 1
  s_cbranch_scc1 L_flagok
  s_cmp_eq_u64 vcc, exec
  s_cbranch_scc0 L_flagpoll
L_flagok:
  s_mov_b64 exec, -1
  s_and_b32 s18, s2, {R-1}
  s_lshl_b32 s18, s18, 9
  v_add_u32 v{P+14}, s18, v{P+14}
  s_waitcnt lgkmcnt(0)
  global_atomic_add_f32 v{P+14}, v{P+15}, s[12:13]
L_noatom:""")
E("  s_mov_b32 s25, 0xffff0000")
for i in range(9):
    for d in range(3):
        E(f"  v_lshlrev_b32 v{U+6*i+2*d}, 16, v{D+4*i+d}")
        E(f"  v_and_b32 v{U+6*i+2*d+1}, s25, v{D+4*i+d}")
E(f"""  s_cmp_lg_u32 s14, 0
  s_cbranch_scc1 L_wait
  v_lshlrev_b32 v{T}, 4, v3
  s_mov_b32 s24, {a.maxpoll}
  s_mov_b32 s26, {hex(__import__('struct').unpack('<I', __import__('struct').pack('<f', 256.0/R))[0])}
L_poll:""")
for k in range(NLD):
    E(f"  global_load_dwordx4 v[{P+4*k}:{P+4*k+3}], v{T}, s[12:13] offset:{1024*k} {a.sy}")
if a.sleep: E(f"  s_sleep {a.sleep}")
for k in range(NLD):
    E(f"  s_waitcnt vmcnt({NLD-1-k})")
    E(f"  v_cmp_eq_f32 s[{18+2*(k%2)}:{19+2*(k%2)}], s26, v{P+4*k+3}")
    if k == 0:
        E("  s_mov_b64 s[22:23], s[18:19]")
    else:
        E(f"  s_and_b64 s[22:23], s[22:23], s[{18+2*(k%2)}:{19+2*(k%2)}]")
E(f"""  s_sub_u32 s24, s24, 1
  s_cbranch_scc1 L_pollok
  s_cmp_eq_u64 s[22:23], exec
  s_cbranch_scc0 L_poll
L_pollok:""")
stamp(4)
for k in range(1, NLD):
    for j in range(3):
        E(f"  v_add_f32 v{P+j}, v{P+j}, v{P+4*k+j}")
for j in range(3):
    E(f"  v_mov_b32 v{P+4+j}, v{P+j}")
E("  s_nop 1")
for j in range(3):
    E(f"  v_permlane32_swap_b32 v{P+j}, v{P+4+j}")
E("  s_waitcnt lgkmcnt(0)")
E("  s_mov_b32 exec_hi, 0")
for j in range(3):
    E(f"  v_add_f32 v{P+j}, v{P+j}, v{P+4+j}")
E(f"""  s_lshl_b32 s18, s16, 16
  s_and_b32 s19, s16, 0xffff0000
  s_lshl_b32 s20, s17, 16
  s_mov_b32 s21, {hex(__import__('struct').unpack('<I', __import__('struct').pack('<f', 1.0/147456.0))[0])}""")
def rne3(regs, tmp):
    E(f"  v_cvt_pk_bf16_f32 v{tmp}, v{regs[0]}, v{regs[1]}")
    E(f"  v_cvt_pk_bf16_f32 v{tmp+1}, v{regs[2]}, v{regs[2]}")
    E(f"  v_lshlrev_b32 v{regs[0]}, 16, v{tmp}")
    E(f"  v_and_b32 v{regs[1]}, s25, v{tmp}")
    E(f"  v_lshlrev_b32 v{regs[2]}, 16, v{tmp+1}")
g = [P+1, P+2, P+3]
E(f"  v_mov_b32 v{P+3}, v{P+2}")
E(f"  v_mov_b32 v{P+2}, v{P+1}")
E(f"  v_mov_b32 v{P+1}, v{P}")
rne3(g, P+12)
for r in g: E(f"  v_mul_f32 v{r}, s21, v{r}")
rne3(g, P+12)
E("  s_nop 1")
E(f"  v_mov_b32_dpp v{P}, v{P+3} wave_shr:1 row_mask:0xf bank_mask:0xf bound_ctrl:0")
E(f"  v_mov_b32_dpp v{P+4}, v{P+1} wave_shl:1 row_mask:0xf bank_mask:0xf bound_ctrl:0")
p0 = [P+5, P+6, P+7]; p1 = [P+8, P+9, P+10]
for j in range(3): E(f"  v_mul_f32 v{p0[j]}, s18, v{P+j}")
for j in range(3): E(f"  v_mul_f32 v{p1[j]}, s19, v{P+1+j}")
rne3(p0, P+12); rne3(p1, P+14)
for j in range(3): E(f"  v_add_f32 v{p0[j]}, v{p0[j]}, v{p1[j]}")
for j in range(3): E(f"  v_mul_f32 v{p1[j]}, s20, v{P+2+j}")
rne3(p0, P+12); rne3(p1, P+14)
for j in range(3): E(f"  v_add_f32 v{p0[j]}, v{p0[j]}, v{p1[j]}")
rne3(p0, P+12)
for j in range(3): E(f"  v_mul_f32 v{p0[j]}, 0xbfb8aa3b, v{p0[j]}")
for j in range(3): E(f"  v_exp_f32 v{p0[j]}, v{p0[j]}")
E("  s_nop 0")
for j in range(3): E(f"  v_add_f32 v{p0[j]}, 1.0, v{p0[j]}")
for j in range(3): E(f"  v_rcp_f32 v{p0[j]}, v{p0[j]}")
E("  s_nop 0")
rne3(p0, P+12)
E(f"  v_mul_u32_u24 v{T}, 12, v3")
E(f"  ds_write2_b32 v{T}, v{p0[0]}, v{p0[1]} offset0:128 offset1:129")
E(f"  ds_write_b32 v{T}, v{p0[2]} offset:520")
E(f"""  s_mov_b64 exec, -1
  s_waitcnt lgkmcnt(0)
L_wait:
  s_barrier""")
stamp(5)
for j in range(3):
    E(f"  ds_read_b64 v[{S+2*j}:{S+2*j+1}], v{T+3} offset:{512+8*j}")
E("  s_waitcnt lgkmcnt(0)")
for i in range(9):
    for d in range(3):
        E(f"  v_pk_mul_f32 v[{U+6*i+2*d}:{U+6*i+2*d+1}], v[{U+6*i+2*d}:{U+6*i+2*d+1}], v[{S+2*d}:{S+2*d+1}]")
    for d in range(3):
        E(f"  v_cvt_pk_bf16_f32 v{D+4*i+d}, v{U+6*i+2*d}, v{U+6*i+2*d+1}")
    E(f"  global_store_dwordx3 v1, v[{D+4*i}:{D+4*i+2}], s[8:9] offset:{(i-4)*768} {a.st}")
if a.stamp:
    stamp(6)
    E("  s_waitcnt vmcnt(0)")
    if a.exf: E("  s_barrier")
    stamp(7)
    if a.exf:
        k, K = map(int, a.exf.split(","))
        E(f'''  s_cmp_lg_u32 s14, 0
  s_cbranch_scc1 L_end
  s_waitcnt lgkmcnt(0)
  s_mov_b64 exec, 1
  s_not_b32 s18, s32
  v_mov_b32 v4, s18
  v_mov_b32 v5, s{32+2*k}
  v_mov_b32 v6, 1
  v_mov_b32 v1, 128
  global_atomic_umax v1, v4, s[10:11]
  global_atomic_umax v1, v5, s[10:11] offset:4
  s_waitcnt vmcnt(0)
  global_atomic_add v7, v1, v6, s[10:11] offset:8 sc0
  s_waitcnt vmcnt(0)
  v_readfirstlane_b32 s18, v7
  s_cmp_lg_u32 s18, 255
  s_cbranch_scc1 L_end
  global_load_dwordx2 v[4:5], v1, s[10:11] sc1
  s_waitcnt vmcnt(0)
  v_readfirstlane_b32 s18, v4
  v_readfirstlane_b32 s19, v5
  s_not_b32 s18, s18
  s_sub_u32 s19, s19, s18
  s_min_u32 s19, s19, 10000
  v_mov_b32 v4, s19
  global_store_dword v1, v4, s[10:11] offset:-80
  s_mul_i32 s19, s19, {K}
  s_memrealtime s[20:21]
  s_waitcnt lgkmcnt(0)
  s_add_u32 s19, s19, s20
L_spin:
  s_memrealtime s[20:21]
  s_waitcnt lgkmcnt(0)
  s_sub_u32 s22, s19, s20
  s_cmp_gt_i32 s22, 0
  s_cbranch_scc1 L_spin
  s_branch L_end''')
    E(f"""  s_cmp_lg_u32 s14, 0
  s_cbranch_scc1 L_end
  s_getreg_b32 s50, hwreg(HW_REG_XCC_ID)
  s_getreg_b32 s51, hwreg(HW_REG_HW_ID)
  s_waitcnt lgkmcnt(0)
  s_lshl_b32 s18, s2, 6
  s_add_u32 s18, s18, {64<<20}
  v_mov_b32 v1, s18""")
    for k in range(8):
        E(f"  v_mov_b32 v{4+k}, s{32+2*k}")
    E("  v_mov_b32 v12, s50")
    E("  v_mov_b32 v13, s51")
    E("  v_mov_b32 v14, s24")
    E("  s_mov_b64 exec, 1")
    E("  global_store_dwordx4 v1, v[4:7], s[12:13]")
    E("  global_store_dwordx4 v1, v[8:11], s[12:13] offset:16")
    E("  global_store_dwordx4 v1, v[12:15], s[12:13] offset:32")
E("L_end:\n  s_endpgm")
E(kd(KN, 128, 64))
open(a.o, "w").write("\n".join(o) + "\n")
print(build(a.o))
```

```python
import sys, argparse
from asmlib import *
ap = argparse.ArgumentParser()
ap.add_argument("-o", default="v1.s")
ap.add_argument("--R", type=int, default=8)
ap.add_argument("--stamp", action="store_true")
ap.add_argument("--ld", default="")
ap.add_argument("--st", default="")
ap.add_argument("--sy", default="sc1")
ap.add_argument("--exf", default="")
ap.add_argument("--empty", type=int, default=0)
ap.add_argument("--sleep", type=int, default=0)
ap.add_argument("--maxpoll", type=int, default=200000)
a = ap.parse_args()
if a.exf: a.stamp = True
R = a.R; NLD = R // 2
o = []
E = o.append
def stamp(k):
    if a.stamp:
        E(f"  s_memrealtime s[{32+2*k}:{33+2*k}]")
if a.empty:
    E(HEADER + f"; @launch kernel={KN} grid=(256,1,1) block=(1024,1,1) lds=1024")
    for _ in range(a.empty): E("; @launch kernel=empty_kernel grid=(1,1,1) block=(64,1,1) lds=0")
else:
    E(HEADER + "; @launch grid=(256,1,1) block=(1024,1,1) lds=1024")
E(f""".amdgcn_target "amdgcn-amd-amdhsa--gfx950"
.text
.globl {KN}
.p2align 8
.type {KN},@function
{KN}:""")
D = 4; SEL = 40; ACC = 44; U = 48; S = 102; P = 108; T = 124
stamp(0)
E(f"""  s_cmp_ge_u32 s2, 256
  s_cbranch_scc1 L_end
  s_load_dwordx4 s[4:7], s[0:1], 0
  s_load_dwordx4 s[8:11], s[0:1], 16
  s_load_dwordx2 s[12:13], s[0:1], 32
  v_lshrrev_b32 v2, 6, v0
  v_and_b32 v3, 63, v0
  v_mul_u32_u24 v1, 6912, v2
  v_mad_u32_u24 v1, v3, 12, v1
  s_mul_i32 s3, s2, 110592
  s_add_u32 s3, s3, 3072
  v_add_u32 v1, s3, v1
  v_readfirstlane_b32 s14, v2
  s_waitcnt lgkmcnt(0)
  s_load_dwordx2 s[16:17], s[6:7], 0""")
E(f"""  s_cmp_lt_u32 s2, {R}
  s_cselect_b32 s15, 1, 0
  s_cmp_eq_u32 s14, 2
  s_cselect_b32 s15, s15, 0
  s_cmp_eq_u32 s15, 0
  s_cbranch_scc1 L_nozero
  v_mov_b32 v{T}, 0
  s_lshl_b32 s18, s2, 9
  v_lshl_add_u32 v{T+1}, v3, 3, s18
  v_mov_b32 v{T+2}, 0
  v_mov_b32 v{T+3}, 0
  global_store_dwordx2 v{T+1}, v[{T+2}:{T+3}], s[12:13] {a.sy}
L_nozero:""")
for i in range(9):
    E(f"  global_load_dwordx3 v[{D+4*i}:{D+4*i+2}], v1, s[4:5] offset:{(i-4)*768} {a.ld}")
stamp(1)
E(f"""  s_cmp_eq_u32 s15, 0
  s_cbranch_scc1 L_noflag
  s_waitcnt vmcnt(9)
  s_lshl_b32 s18, s2, 2
  v_mov_b32 v{T}, 1
  v_mov_b32 v{T+1}, s18
  s_mov_b64 exec, 1
  global_store_dword v{T+1}, v{T}, s[10:11] {a.sy}
  s_mov_b64 exec, -1
  s_waitcnt vmcnt(0)
L_noflag:""")
for i in range(9):
    E(f"  v_mov_b32 v{D+4*i+3}, 0")
E(f"""  v_and_b32 v{T}, 15, v3
  v_and_b32 v{T+1}, 1, v{T}
  v_lshlrev_b32 v{T+1}, 4, v{T+1}
  v_mov_b32 v{T+2}, 0x3f80
  v_lshlrev_b32 v{T+2}, v{T+1}, v{T+2}
  v_lshrrev_b32 v{T+1}, 1, v{T}
  v_cmp_eq_u32 s[18:19], 0, v{T+1}
  v_cmp_eq_u32 s[20:21], 1, v{T+1}
  v_cmp_eq_u32 s[22:23], 2, v{T+1}
  v_mov_b32 v{SEL+3}, 0
  v_cndmask_b32 v{SEL}, 0, v{T+2}, s[18:19]
  v_cndmask_b32 v{SEL+1}, 0, v{T+2}, s[20:21]
  v_cndmask_b32 v{SEL+2}, 0, v{T+2}, s[22:23]""")
E(f"""  v_lshlrev_b32 v{P+14}, 2, v0
  v_and_b32 v{P+15}, 3, v0
  v_cmp_eq_u32 vcc, 3, v{P+15}
  s_cmp_ge_u32 s14, 2
  s_nop 0
  v_cndmask_b32 v{P+15}, 0, 1.0, vcc
  s_cbranch_scc1 L_noinit
  ds_write_b32 v{P+14}, v{P+15}
L_noinit:""")
E(f"""  v_lshrrev_b32 v{T+1}, 4, v3
  v_lshlrev_b32 v{T+1}, 7, v{T+1}
  v_lshl_add_u32 v{T+1}, v{T}, 2, v{T+1}
  v_cmp_lt_u32 vcc, 2, v{T}
  v_add_u32 v{T+2}, 4, v{T+1}
  v_mul_u32_u24 v{T+3}, 24, v{T}
  v_cndmask_b32 v{T+1}, v{T+1}, v{T+2}, vcc
  s_waitcnt lgkmcnt(0)
  s_barrier""")
waits = [8,7,6,5,4,3,2,1,0]
for i in range(9):
    E(f"  s_waitcnt vmcnt({waits[i]})")
    c = "0" if i == 0 else f"v[{ACC}:{ACC+3}]"
    E(f"  v_mfma_f32_16x16x32_bf16 v[{ACC}:{ACC+3}], v[{D+4*i}:{D+4*i+3}], v[{SEL}:{SEL+3}], {c}")
stamp(2)
E(f"""  s_mov_b32 s18, 0x003f003f
  s_mov_b32 s19, 0x003f003f
  s_nop 5
  s_mov_b64 exec, s[18:19]""")
for r in range(4):
    E(f"  ds_add_f32 v{T+1}, v{ACC+r} offset:{32*r}")
E(f"""  s_mov_b64 exec, -1
  s_waitcnt lgkmcnt(0)
  s_barrier""")
stamp(3)
E(f"""  s_cmp_ge_u32 s14, 2
  s_cbranch_scc1 L_noatom
  ds_read_b32 v{P+15}, v{P+14}
  v_lshlrev_b32 v{P}, 2, v3
  s_mov_b32 s24, {a.maxpoll}
L_flagpoll:
  s_mov_b64 exec, {(1<<R)-1}
  global_load_dword v{P+1}, v{P}, s[10:11] {a.sy}
  s_waitcnt vmcnt(0)
  v_cmp_ne_u32 vcc, 0, v{P+1}
  s_sub_u32 s24, s24, 1
  s_cbranch_scc1 L_flagok
  s_cmp_eq_u64 vcc, exec
  s_cbranch_scc0 L_flagpoll
L_flagok:
  s_mov_b64 exec, -1
  s_and_b32 s18, s2, {R-1}
  s_lshl_b32 s18, s18, 9
  v_add_u32 v{P+14}, s18, v{P+14}
  s_waitcnt lgkmcnt(0)
  global_atomic_add_f32 v{P+14}, v{P+15}, s[12:13]
L_noatom:""")
E("  s_mov_b32 s25, 0xffff0000")
for i in range(9):
    for d in range(3):
        E(f"  v_lshlrev_b32 v{U+6*i+2*d}, 16, v{D+4*i+d}")
        E(f"  v_and_b32 v{U+6*i+2*d+1}, s25, v{D+4*i+d}")
E(f"""  s_cmp_lg_u32 s14, 0
  s_cbranch_scc1 L_wait
  v_lshlrev_b32 v{T}, 4, v3
  s_mov_b32 s24, {a.maxpoll}
  s_mov_b32 s26, {hex(__import__('struct').unpack('<I', __import__('struct').pack('<f', 256.0/R))[0])}
L_poll:""")
for k in range(NLD):
    E(f"  global_load_dwordx4 v[{P+4*k}:{P+4*k+3}], v{T}, s[12:13] offset:{1024*k} {a.sy}")
if a.sleep: E(f"  s_sleep {a.sleep}")
for k in range(NLD):
    E(f"  s_waitcnt vmcnt({NLD-1-k})")
    E(f"  v_cmp_eq_f32 s[{18+2*(k%2)}:{19+2*(k%2)}], s26, v{P+4*k+3}")
    if k == 0:
        E("  s_mov_b64 s[22:23], s[18:19]")
    else:
        E(f"  s_and_b64 s[22:23], s[22:23], s[{18+2*(k%2)}:{19+2*(k%2)}]")
E(f"""  s_sub_u32 s24, s24, 1
  s_cbranch_scc1 L_pollok
  s_cmp_eq_u64 s[22:23], exec
  s_cbranch_scc0 L_poll
L_pollok:""")
stamp(4)
for k in range(1, NLD):
    for j in range(3):
        E(f"  v_add_f32 v{P+j}, v{P+j}, v{P+4*k+j}")
for j in range(3):
    E(f"  v_mov_b32 v{P+4+j}, v{P+j}")
E("  s_nop 1")
for j in range(3):
    E(f"  v_permlane32_swap_b32 v{P+j}, v{P+4+j}")
E("  s_waitcnt lgkmcnt(0)")
E("  s_mov_b32 exec_hi, 0")
for j in range(3):
    E(f"  v_add_f32 v{P+j}, v{P+j}, v{P+4+j}")
E(f"""  s_lshl_b32 s18, s16, 16
  s_and_b32 s19, s16, 0xffff0000
  s_lshl_b32 s20, s17, 16
  s_mov_b32 s21, {hex(__import__('struct').unpack('<I', __import__('struct').pack('<f', 1.0/147456.0))[0])}""")
def rne3(regs, tmp):
    E(f"  v_cvt_pk_bf16_f32 v{tmp}, v{regs[0]}, v{regs[1]}")
    E(f"  v_cvt_pk_bf16_f32 v{tmp+1}, v{regs[2]}, v{regs[2]}")
    E(f"  v_lshlrev_b32 v{regs[0]}, 16, v{tmp}")
    E(f"  v_and_b32 v{regs[1]}, s25, v{tmp}")
    E(f"  v_lshlrev_b32 v{regs[2]}, 16, v{tmp+1}")
g = [P+1, P+2, P+3]
E(f"  v_mov_b32 v{P+3}, v{P+2}")
E(f"  v_mov_b32 v{P+2}, v{P+1}")
E(f"  v_mov_b32 v{P+1}, v{P}")
rne3(g, P+12)
for r in g: E(f"  v_mul_f32 v{r}, s21, v{r}")
rne3(g, P+12)
E("  s_nop 1")
E(f"  v_mov_b32_dpp v{P}, v{P+3} wave_shr:1 row_mask:0xf bank_mask:0xf bound_ctrl:0")
E(f"  v_mov_b32_dpp v{P+4}, v{P+1} wave_shl:1 row_mask:0xf bank_mask:0xf bound_ctrl:0")
p0 = [P+5, P+6, P+7]; p1 = [P+8, P+9, P+10]
for j in range(3): E(f"  v_mul_f32 v{p0[j]}, s18, v{P+j}")
for j in range(3): E(f"  v_mul_f32 v{p1[j]}, s19, v{P+1+j}")
rne3(p0, P+12); rne3(p1, P+14)
for j in range(3): E(f"  v_add_f32 v{p0[j]}, v{p0[j]}, v{p1[j]}")
for j in range(3): E(f"  v_mul_f32 v{p1[j]}, s20, v{P+2+j}")
rne3(p0, P+12); rne3(p1, P+14)
for j in range(3): E(f"  v_add_f32 v{p0[j]}, v{p0[j]}, v{p1[j]}")
rne3(p0, P+12)
for j in range(3): E(f"  v_mul_f32 v{p0[j]}, 0xbfb8aa3b, v{p0[j]}")
for j in range(3): E(f"  v_exp_f32 v{p0[j]}, v{p0[j]}")
E("  s_nop 0")
for j in range(3): E(f"  v_add_f32 v{p0[j]}, 1.0, v{p0[j]}")
for j in range(3): E(f"  v_rcp_f32 v{p0[j]}, v{p0[j]}")
E("  s_nop 0")
rne3(p0, P+12)
E(f"  v_mul_u32_u24 v{T}, 12, v3")
E(f"  ds_write2_b32 v{T}, v{p0[0]}, v{p0[1]} offset0:128 offset1:129")
E(f"  ds_write_b32 v{T}, v{p0[2]} offset:520")
E(f"""  s_mov_b64 exec, -1
  s_waitcnt lgkmcnt(0)
L_wait:
  s_barrier""")
stamp(5)
for j in range(3):
    E(f"  ds_read_b64 v[{S+2*j}:{S+2*j+1}], v{T+3} offset:{512+8*j}")
E("  s_waitcnt lgkmcnt(0)")
for i in range(9):
    for d in range(3):
        E(f"  v_pk_mul_f32 v[{U+6*i+2*d}:{U+6*i+2*d+1}], v[{U+6*i+2*d}:{U+6*i+2*d+1}], v[{S+2*d}:{S+2*d+1}]")
    for d in range(3):
        E(f"  v_cvt_pk_bf16_f32 v{D+4*i+d}, v{U+6*i+2*d}, v{U+6*i+2*d+1}")
    E(f"  global_store_dwordx3 v1, v[{D+4*i}:{D+4*i+2}], s[8:9] offset:{(i-4)*768} {a.st}")
if a.stamp:
    stamp(6)
    E("  s_waitcnt vmcnt(0)")
    if a.exf: E("  s_barrier")
    stamp(7)
    if a.exf:
        k, K = map(int, a.exf.split(","))
        E(f'''  s_cmp_lg_u32 s14, 0
  s_cbranch_scc1 L_end
  s_waitcnt lgkmcnt(0)
  s_mov_b64 exec, 1
  s_not_b32 s18, s32
  v_mov_b32 v4, s18
  v_mov_b32 v5, s{32+2*k}
  v_mov_b32 v6, 1
  v_mov_b32 v1, 128
  global_atomic_umax v1, v4, s[10:11]
  global_atomic_umax v1, v5, s[10:11] offset:4
  s_waitcnt vmcnt(0)
  global_atomic_add v7, v1, v6, s[10:11] offset:8 sc0
  s_waitcnt vmcnt(0)
  v_readfirstlane_b32 s18, v7
  s_cmp_lg_u32 s18, 255
  s_cbranch_scc1 L_end
  global_load_dwordx2 v[4:5], v1, s[10:11] sc1
  s_waitcnt vmcnt(0)
  v_readfirstlane_b32 s18, v4
  v_readfirstlane_b32 s19, v5
  s_not_b32 s18, s18
  s_sub_u32 s19, s19, s18
  s_min_u32 s19, s19, 10000
  v_mov_b32 v4, s19
  global_store_dword v1, v4, s[10:11] offset:-80
  s_mul_i32 s19, s19, {K}
  s_memrealtime s[20:21]
  s_waitcnt lgkmcnt(0)
  s_add_u32 s19, s19, s20
L_spin:
  s_memrealtime s[20:21]
  s_waitcnt lgkmcnt(0)
  s_sub_u32 s22, s19, s20
  s_cmp_gt_i32 s22, 0
  s_cbranch_scc1 L_spin
  s_branch L_end''')
    E(f"""  s_cmp_lg_u32 s14, 0
  s_cbranch_scc1 L_end
  s_getreg_b32 s50, hwreg(HW_REG_XCC_ID)
  s_getreg_b32 s51, hwreg(HW_REG_HW_ID)
  s_waitcnt lgkmcnt(0)
  s_lshl_b32 s18, s2, 6
  s_add_u32 s18, s18, {64<<20}
  v_mov_b32 v1, s18""")
    for k in range(8):
        E(f"  v_mov_b32 v{4+k}, s{32+2*k}")
    E("  v_mov_b32 v12, s50")
    E("  v_mov_b32 v13, s51")
    E("  v_mov_b32 v14, s24")
    E("  s_mov_b64 exec, 1")
    E("  global_store_dwordx4 v1, v[4:7], s[12:13]")
    E("  global_store_dwordx4 v1, v[8:11], s[12:13] offset:16")
    E("  global_store_dwordx4 v1, v[12:15], s[12:13] offset:32")
E("L_end:\n  s_endpgm")
if a.empty:
    E(""".globl empty_kernel
.p2align 8
.type empty_kernel,@function
empty_kernel:
  s_endpgm""")
E(kd(KN, 128, 64))
if a.empty: E(kd("empty_kernel", 8, 16))
open(a.o, "w").write("\n".join(o) + "\n")
print(build(a.o))
```

```python
import sys, argparse
from asmlib import *
ap = argparse.ArgumentParser()
ap.add_argument("-o", default="v1.s")
ap.add_argument("--R", type=int, default=8)
ap.add_argument("--stamp", action="store_true")
ap.add_argument("--ld", default="")
ap.add_argument("--st", default="")
ap.add_argument("--sy", default="sc1")
ap.add_argument("--exf", default="")
ap.add_argument("--empty", type=int, default=0)
ap.add_argument("--sleep", type=int, default=0)
ap.add_argument("--maxpoll", type=int, default=200000)
a = ap.parse_args()
if a.exf: a.stamp = True
R = a.R; NLD = R // 2
o = []
E = o.append
def stamp(k):
    if a.stamp:
        E(f"  s_memrealtime s[{32+2*k}:{33+2*k}]")
if a.empty:
    E(HEADER + f"; @launch kernel={KN} grid=(256,1,1) block=(1024,1,1) lds=1024")
    for _ in range(a.empty): E("; @launch kernel=empty_kernel grid=(1,1,1) block=(64,1,1) lds=0")
else:
    E(HEADER + "; @launch grid=(256,1,1) block=(1024,1,1) lds=1024")
E(f""".amdgcn_target "amdgcn-amd-amdhsa--gfx950"
.text
.globl {KN}
.p2align 8
.type {KN},@function
{KN}:""")
D = 4; SEL = 40; ACC = 44; U = 48; S = 102; P = 108; T = 124
stamp(0)
E(f"""  s_cmp_ge_u32 s2, 256
  s_cbranch_scc1 L_end
  s_load_dwordx4 s[4:7], s[0:1], 0
  s_load_dwordx4 s[8:11], s[0:1], 16
  s_load_dwordx2 s[12:13], s[0:1], 32
  v_lshrrev_b32 v2, 6, v0
  v_and_b32 v3, 63, v0
  v_mul_u32_u24 v1, 6912, v2
  v_mad_u32_u24 v1, v3, 12, v1
  s_mul_i32 s3, s2, 110592
  s_add_u32 s3, s3, 3072
  v_add_u32 v1, s3, v1
  v_readfirstlane_b32 s14, v2
  s_waitcnt lgkmcnt(0)
  s_load_dwordx2 s[16:17], s[6:7], 0""")
E(f"""  s_cmp_lt_u32 s2, {R}
  s_cselect_b32 s15, 1, 0
  s_cmp_eq_u32 s14, 2
  s_cselect_b32 s15, s15, 0
  s_cmp_eq_u32 s15, 0
  s_cbranch_scc1 L_nozero
  v_mov_b32 v{T}, 0
  s_lshl_b32 s18, s2, 9
  v_lshl_add_u32 v{T+1}, v3, 3, s18
  v_mov_b32 v{T+2}, 0
  v_mov_b32 v{T+3}, 0
  global_store_dwordx2 v{T+1}, v[{T+2}:{T+3}], s[12:13] {a.sy}
L_nozero:""")
for i in range(9):
    E(f"  global_load_dwordx3 v[{D+4*i}:{D+4*i+2}], v1, s[4:5] offset:{(i-4)*768} {a.ld}")
stamp(1)
E(f"""  s_cmp_eq_u32 s15, 0
  s_cbranch_scc1 L_noflag
  s_waitcnt vmcnt(9)
  s_lshl_b32 s18, s2, 2
  v_mov_b32 v{T}, 1
  v_mov_b32 v{T+1}, s18
  s_mov_b64 exec, 1
  global_store_dword v{T+1}, v{T}, s[10:11] {a.sy}
  s_mov_b64 exec, -1
  s_waitcnt vmcnt(0)
L_noflag:""")
for i in range(9):
    E(f"  v_mov_b32 v{D+4*i+3}, 0")
E(f"""  v_and_b32 v{T}, 15, v3
  v_and_b32 v{T+1}, 1, v{T}
  v_lshlrev_b32 v{T+1}, 4, v{T+1}
  v_mov_b32 v{T+2}, 0x3f80
  v_lshlrev_b32 v{T+2}, v{T+1}, v{T+2}
  v_lshrrev_b32 v{T+1}, 1, v{T}
  v_cmp_eq_u32 s[18:19], 0, v{T+1}
  v_cmp_eq_u32 s[20:21], 1, v{T+1}
  v_cmp_eq_u32 s[22:23], 2, v{T+1}
  v_mov_b32 v{SEL+3}, 0
  v_cndmask_b32 v{SEL}, 0, v{T+2}, s[18:19]
  v_cndmask_b32 v{SEL+1}, 0, v{T+2}, s[20:21]
  v_cndmask_b32 v{SEL+2}, 0, v{T+2}, s[22:23]""")
E(f"""  v_lshlrev_b32 v{P+14}, 2, v0
  v_and_b32 v{P+15}, 3, v0
  v_cmp_eq_u32 vcc, 3, v{P+15}
  s_cmp_ge_u32 s14, 2
  s_nop 0
  v_cndmask_b32 v{P+15}, 0, 1.0, vcc
  s_cbranch_scc1 L_noinit
  ds_write_b32 v{P+14}, v{P+15}
L_noinit:""")
E(f"""  v_lshrrev_b32 v{T+1}, 4, v3
  v_lshlrev_b32 v{T+1}, 7, v{T+1}
  v_lshl_add_u32 v{T+1}, v{T}, 2, v{T+1}
  v_cmp_lt_u32 vcc, 2, v{T}
  v_add_u32 v{T+2}, 4, v{T+1}
  v_mul_u32_u24 v{T+3}, 24, v{T}
  v_cndmask_b32 v{T+1}, v{T+1}, v{T+2}, vcc
  s_waitcnt lgkmcnt(0)
  s_barrier""")
waits = [8,7,6,5,4,3,2,1,0]
for i in range(9):
    E(f"  s_waitcnt vmcnt({waits[i]})")
    c = "0" if i == 0 else f"v[{ACC}:{ACC+3}]"
    E(f"  v_mfma_f32_16x16x32_bf16 v[{ACC}:{ACC+3}], v[{D+4*i}:{D+4*i+3}], v[{SEL}:{SEL+3}], {c}")
stamp(2)
E(f"""  s_mov_b32 s18, 0x003f003f
  s_mov_b32 s19, 0x003f003f
  s_nop 5
  s_mov_b64 exec, s[18:19]""")
for r in range(4):
    E(f"  ds_add_f32 v{T+1}, v{ACC+r} offset:{32*r}")
E(f"""  s_mov_b64 exec, -1
  s_waitcnt lgkmcnt(0)
  s_barrier""")
stamp(3)
E(f"""  s_cmp_ge_u32 s14, 2
  s_cbranch_scc1 L_noatom
  ds_read_b32 v{P+15}, v{P+14}
  v_lshlrev_b32 v{P}, 2, v3
  s_mov_b32 s24, {a.maxpoll}
L_flagpoll:
  s_mov_b64 exec, {(1<<R)-1}
  global_load_dword v{P+1}, v{P}, s[10:11] {a.sy}
  s_waitcnt vmcnt(0)
  v_cmp_ne_u32 vcc, 0, v{P+1}
  s_sub_u32 s24, s24, 1
  s_cbranch_scc1 L_flagok
  s_cmp_eq_u64 vcc, exec
  s_cbranch_scc0 L_flagpoll
L_flagok:
  s_mov_b64 exec, -1
  s_and_b32 s18, s2, {R-1}
  s_lshl_b32 s18, s18, 9
  v_add_u32 v{P+14}, s18, v{P+14}
  s_waitcnt lgkmcnt(0)
  global_atomic_add_f32 v{P+14}, v{P+15}, s[12:13]
L_noatom:""")
E("  s_mov_b32 s25, 0xffff0000")
for i in range(9):
    for d in range(3):
        E(f"  v_lshlrev_b32 v{U+6*i+2*d}, 16, v{D+4*i+d}")
        E(f"  v_and_b32 v{U+6*i+2*d+1}, s25, v{D+4*i+d}")
E(f"""  s_cmp_lg_u32 s14, 0
  s_cbranch_scc1 L_wait
  v_lshlrev_b32 v{T}, 4, v3
  s_mov_b32 s24, {a.maxpoll}
  s_mov_b32 s26, {hex(__import__('struct').unpack('<I', __import__('struct').pack('<f', 256.0/R))[0])}
L_poll:""")
for k in range(NLD):
    E(f"  global_load_dwordx4 v[{P+4*k}:{P+4*k+3}], v{T}, s[12:13] offset:{1024*k} {a.sy}")
if a.sleep: E(f"  s_sleep {a.sleep}")
for k in range(NLD):
    E(f"  s_waitcnt vmcnt({NLD-1-k})")
    E(f"  v_cmp_eq_f32 s[{18+2*(k%2)}:{19+2*(k%2)}], s26, v{P+4*k+3}")
    if k == 0:
        E("  s_mov_b64 s[22:23], s[18:19]")
    else:
        E(f"  s_and_b64 s[22:23], s[22:23], s[{18+2*(k%2)}:{19+2*(k%2)}]")
E(f"""  s_sub_u32 s24, s24, 1
  s_cbranch_scc1 L_pollok
  s_cmp_eq_u64 s[22:23], exec
  s_cbranch_scc0 L_poll
L_pollok:""")
stamp(4)
for k in range(1, NLD):
    for j in range(3):
        E(f"  v_add_f32 v{P+j}, v{P+j}, v{P+4*k+j}")
for j in range(3):
    E(f"  v_mov_b32 v{P+4+j}, v{P+j}")
E("  s_nop 1")
for j in range(3):
    E(f"  v_permlane32_swap_b32 v{P+j}, v{P+4+j}")
E("  s_waitcnt lgkmcnt(0)")
E("  s_mov_b32 exec_hi, 0")
for j in range(3):
    E(f"  v_add_f32 v{P+j}, v{P+j}, v{P+4+j}")
E(f"""  s_lshl_b32 s18, s16, 16
  s_and_b32 s19, s16, 0xffff0000
  s_lshl_b32 s20, s17, 16
  s_mov_b32 s21, {hex(__import__('struct').unpack('<I', __import__('struct').pack('<f', 1.0/147456.0))[0])}""")
def rne3(regs, tmp):
    E(f"  v_cvt_pk_bf16_f32 v{tmp}, v{regs[0]}, v{regs[1]}")
    E(f"  v_cvt_pk_bf16_f32 v{tmp+1}, v{regs[2]}, v{regs[2]}")
    E(f"  v_lshlrev_b32 v{regs[0]}, 16, v{tmp}")
    E(f"  v_and_b32 v{regs[1]}, s25, v{tmp}")
    E(f"  v_lshlrev_b32 v{regs[2]}, 16, v{tmp+1}")
g = [P+1, P+2, P+3]
E(f"  v_mov_b32 v{P+3}, v{P+2}")
E(f"  v_mov_b32 v{P+2}, v{P+1}")
E(f"  v_mov_b32 v{P+1}, v{P}")
rne3(g, P+12)
for r in g: E(f"  v_mul_f32 v{r}, s21, v{r}")
rne3(g, P+12)
E("  s_nop 1")
E(f"  v_mov_b32_dpp v{P}, v{P+3} wave_shr:1 row_mask:0xf bank_mask:0xf bound_ctrl:0")
E(f"  v_mov_b32_dpp v{P+4}, v{P+1} wave_shl:1 row_mask:0xf bank_mask:0xf bound_ctrl:0")
p0 = [P+5, P+6, P+7]; p1 = [P+8, P+9, P+10]
for j in range(3): E(f"  v_mul_f32 v{p0[j]}, s18, v{P+j}")
for j in range(3): E(f"  v_mul_f32 v{p1[j]}, s19, v{P+1+j}")
rne3(p0, P+12); rne3(p1, P+14)
for j in range(3): E(f"  v_add_f32 v{p0[j]}, v{p0[j]}, v{p1[j]}")
for j in range(3): E(f"  v_mul_f32 v{p1[j]}, s20, v{P+2+j}")
rne3(p0, P+12); rne3(p1, P+14)
for j in range(3): E(f"  v_add_f32 v{p0[j]}, v{p0[j]}, v{p1[j]}")
rne3(p0, P+12)
for j in range(3): E(f"  v_mul_f32 v{p0[j]}, 0xbfb8aa3b, v{p0[j]}")
for j in range(3): E(f"  v_exp_f32 v{p0[j]}, v{p0[j]}")
E("  s_nop 0")
for j in range(3): E(f"  v_add_f32 v{p0[j]}, 1.0, v{p0[j]}")
for j in range(3): E(f"  v_rcp_f32 v{p0[j]}, v{p0[j]}")
E("  s_nop 0")
rne3(p0, P+12)
E(f"  v_mul_u32_u24 v{T}, 12, v3")
E(f"  ds_write2_b32 v{T}, v{p0[0]}, v{p0[1]} offset0:128 offset1:129")
E(f"  ds_write_b32 v{T}, v{p0[2]} offset:520")
E(f"""  s_mov_b64 exec, -1
  s_waitcnt lgkmcnt(0)
L_wait:
  s_barrier""")
stamp(5)
for j in range(3):
    E(f"  ds_read_b64 v[{S+2*j}:{S+2*j+1}], v{T+3} offset:{512+8*j}")
E("  s_waitcnt lgkmcnt(0)")
for i in range(9):
    for d in range(3):
        E(f"  v_pk_mul_f32 v[{U+6*i+2*d}:{U+6*i+2*d+1}], v[{U+6*i+2*d}:{U+6*i+2*d+1}], v[{S+2*d}:{S+2*d+1}]")
    for d in range(3):
        E(f"  v_cvt_pk_bf16_f32 v{D+4*i+d}, v{U+6*i+2*d}, v{U+6*i+2*d+1}")
    E(f"  global_store_dwordx3 v1, v[{D+4*i}:{D+4*i+2}], s[8:9] offset:{(i-4)*768} {a.st}")
if a.stamp:
    stamp(6)
    E("  s_waitcnt vmcnt(0)")
    E("  s_barrier")
    stamp(7)
    if a.exf:
        k, K = map(int, a.exf.split(","))
        E(f'''  s_cmp_lg_u32 s14, 0
  s_cbranch_scc1 L_end
  s_waitcnt lgkmcnt(0)
  s_mov_b64 exec, 1
  s_not_b32 s18, s32
  v_mov_b32 v4, s18
  v_mov_b32 v5, s{32+2*k}
  v_mov_b32 v6, 1
  v_mov_b32 v1, 128
  global_atomic_umax v1, v4, s[10:11]
  global_atomic_umax v1, v5, s[10:11] offset:4
  s_waitcnt vmcnt(0)
  global_atomic_add v7, v1, v6, s[10:11] offset:8 sc0
  s_waitcnt vmcnt(0)
  v_readfirstlane_b32 s18, v7
  s_cmp_lg_u32 s18, 255
  s_cbranch_scc1 L_end
  global_load_dwordx2 v[4:5], v1, s[10:11] sc1
  s_waitcnt vmcnt(0)
  v_readfirstlane_b32 s18, v4
  v_readfirstlane_b32 s19, v5
  s_not_b32 s18, s18
  s_sub_u32 s19, s19, s18
  s_min_u32 s19, s19, 10000
  v_mov_b32 v4, s19
  global_store_dword v1, v4, s[10:11] offset:-80
  v_mov_b32 v4, s4
  v_mov_b32 v5, s5
  v_mov_b32 v6, s8
  v_mov_b32 v7, s9
  v_mov_b32 v8, s10
  v_mov_b32 v9, s12
  v_mov_b32 v10, s0
  v_mov_b32 v11, s6
  global_store_dwordx4 v1, v[4:7], s[10:11] offset:-128
  global_store_dwordx4 v1, v[8:11], s[10:11] offset:-112
  s_mul_i32 s19, s19, {K}
  s_memrealtime s[20:21]
  s_waitcnt lgkmcnt(0)
  s_add_u32 s19, s19, s20
L_spin:
  s_memrealtime s[20:21]
  s_waitcnt lgkmcnt(0)
  s_sub_u32 s22, s19, s20
  s_cmp_gt_i32 s22, 0
  s_cbranch_scc1 L_spin
  s_branch L_end''')
    E(f"""  s_cmp_lg_u32 s14, 0
  s_cbranch_scc1 L_end
  s_getreg_b32 s50, hwreg(HW_REG_XCC_ID)
  s_getreg_b32 s51, hwreg(HW_REG_HW_ID)
  s_waitcnt lgkmcnt(0)
  s_lshl_b32 s18, s2, 6
  s_add_u32 s18, s18, {64<<20}
  v_mov_b32 v1, s18""")
    for k in range(8):
        E(f"  v_mov_b32 v{4+k}, s{32+2*k}")
    E("  v_mov_b32 v12, s50")
    E("  v_mov_b32 v13, s51")
    E("  v_mov_b32 v14, s24")
    E("  s_mov_b64 exec, 1")
    E("  global_store_dwordx4 v1, v[4:7], s[12:13]")
    E("  global_store_dwordx4 v1, v[8:11], s[12:13] offset:16")
    E("  global_store_dwordx4 v1, v[12:15], s[12:13] offset:32")
E("L_end:\n  s_endpgm")
if a.empty:
    E(""".globl empty_kernel
.p2align 8
.type empty_kernel,@function
empty_kernel:
  s_endpgm""")
E(kd(KN, 128, 64))
if a.empty: E(kd("empty_kernel", 8, 16))
open(a.o, "w").write("\n".join(o) + "\n")
print(build(a.o))
```

```python
import sys, argparse
from asmlib import *
ap = argparse.ArgumentParser()
ap.add_argument("-o", default="v1.s")
ap.add_argument("--R", type=int, default=8)
ap.add_argument("--stamp", action="store_true")
ap.add_argument("--ld", default="")
ap.add_argument("--st", default="")
ap.add_argument("--sy", default="sc1")
ap.add_argument("--exf", default="")
ap.add_argument("--empty", type=int, default=0)
ap.add_argument("--pf", type=int, default=0)
ap.add_argument("--wb", type=int, default=0)
ap.add_argument("--sleep", type=int, default=0)
ap.add_argument("--maxpoll", type=int, default=200000)
a = ap.parse_args()
if a.exf: a.stamp = True
R = a.R; NLD = R // 2
o = []
E = o.append
def stamp(k):
    if a.stamp:
        E(f"  s_memrealtime s[{32+2*k}:{33+2*k}]")
if a.empty:
    E(HEADER + f"; @launch kernel={KN} grid=(256,1,1) block=(1024,1,1) lds=1024")
    for _ in range(a.empty): E("; @launch kernel=empty_kernel grid=(1,1,1) block=(64,1,1) lds=0")
else:
    E(HEADER + "; @launch grid=(256,1,1) block=(1024,1,1) lds=1024")
E(f""".amdgcn_target "amdgcn-amd-amdhsa--gfx950"
.text
.globl {KN}
.p2align 8
.type {KN},@function
{KN}:""")
D = 4; SEL = 40; ACC = 44; U = 48; S = 102; P = 108; T = 124
stamp(0)
E(f"""  s_cmp_ge_u32 s2, 256
  s_cbranch_scc1 L_end
  s_load_dwordx4 s[4:7], s[0:1], 0
  s_load_dwordx4 s[8:11], s[0:1], 16
  s_load_dwordx2 s[12:13], s[0:1], 32
  v_lshrrev_b32 v2, 6, v0
  v_and_b32 v3, 63, v0
  v_mul_u32_u24 v1, 6912, v2
  v_mad_u32_u24 v1, v3, 12, v1
  s_mul_i32 s3, s2, 110592
  s_add_u32 s3, s3, 3072
  v_add_u32 v1, s3, v1
  v_readfirstlane_b32 s14, v2
  s_waitcnt lgkmcnt(0)
  s_load_dwordx2 s[16:17], s[6:7], 0""")
E(f"""  s_cmp_lt_u32 s2, {R}
  s_cselect_b32 s15, 1, 0
  s_cmp_eq_u32 s14, 2
  s_cselect_b32 s15, s15, 0
  s_cmp_eq_u32 s15, 0
  s_cbranch_scc1 L_nozero
  v_mov_b32 v{T}, 0
  s_lshl_b32 s18, s2, 9
  v_lshl_add_u32 v{T+1}, v3, 3, s18
  v_mov_b32 v{T+2}, 0
  v_mov_b32 v{T+3}, 0
  global_store_dwordx2 v{T+1}, v[{T+2}:{T+3}], s[12:13] {a.sy}
L_nozero:""")
for i in range(9):
    E(f"  global_load_dwordx3 v[{D+4*i}:{D+4*i+2}], v1, s[4:5] offset:{(i-4)*768} {a.ld}")
if a.pf == 1:
    E("  s_mov_b64 exec, 1")
    for off in (-3072, 0, 3072): E(f"  global_load_dword v2, v1, s[8:9] offset:{off} nt")
    E("  s_mov_b64 exec, -1")
stamp(1)
E(f"""  s_cmp_eq_u32 s15, 0
  s_cbranch_scc1 L_noflag
  s_waitcnt vmcnt({12 if a.pf==1 else 9})
  s_lshl_b32 s18, s2, 2
  v_mov_b32 v{T}, 1
  v_mov_b32 v{T+1}, s18
  s_mov_b64 exec, 1
  global_store_dword v{T+1}, v{T}, s[10:11] {a.sy}
  s_mov_b64 exec, -1
  s_waitcnt vmcnt(0)
L_noflag:""")
for i in range(9):
    E(f"  v_mov_b32 v{D+4*i+3}, 0")
E(f"""  v_and_b32 v{T}, 15, v3
  v_and_b32 v{T+1}, 1, v{T}
  v_lshlrev_b32 v{T+1}, 4, v{T+1}
  v_mov_b32 v{T+2}, 0x3f80
  v_lshlrev_b32 v{T+2}, v{T+1}, v{T+2}
  v_lshrrev_b32 v{T+1}, 1, v{T}
  v_cmp_eq_u32 s[18:19], 0, v{T+1}
  v_cmp_eq_u32 s[20:21], 1, v{T+1}
  v_cmp_eq_u32 s[22:23], 2, v{T+1}
  v_mov_b32 v{SEL+3}, 0
  v_cndmask_b32 v{SEL}, 0, v{T+2}, s[18:19]
  v_cndmask_b32 v{SEL+1}, 0, v{T+2}, s[20:21]
  v_cndmask_b32 v{SEL+2}, 0, v{T+2}, s[22:23]""")
E(f"""  v_lshlrev_b32 v{P+14}, 2, v0
  v_and_b32 v{P+15}, 3, v0
  v_cmp_eq_u32 vcc, 3, v{P+15}
  s_cmp_ge_u32 s14, 2
  s_nop 0
  v_cndmask_b32 v{P+15}, 0, 1.0, vcc
  s_cbranch_scc1 L_noinit
  ds_write_b32 v{P+14}, v{P+15}
L_noinit:""")
E(f"""  v_lshrrev_b32 v{T+1}, 4, v3
  v_lshlrev_b32 v{T+1}, 7, v{T+1}
  v_lshl_add_u32 v{T+1}, v{T}, 2, v{T+1}
  v_cmp_lt_u32 vcc, 2, v{T}
  v_add_u32 v{T+2}, 4, v{T+1}
  v_mul_u32_u24 v{T+3}, 24, v{T}
  v_cndmask_b32 v{T+1}, v{T+1}, v{T+2}, vcc
  s_waitcnt lgkmcnt(0)
  s_barrier""")
waits = [8,7,6,5,4,3,2,1,0]
if a.pf == 1: waits = [w+3 for w in waits]
for i in range(9):
    E(f"  s_waitcnt vmcnt({waits[i]})")
    c = "0" if i == 0 else f"v[{ACC}:{ACC+3}]"
    E(f"  v_mfma_f32_16x16x32_bf16 v[{ACC}:{ACC+3}], v[{D+4*i}:{D+4*i+3}], v[{SEL}:{SEL+3}], {c}")
stamp(2)
if a.pf == 2:
    E("  s_mov_b64 exec, 1")
    for off in (-3072, 0, 3072): E(f"  global_load_dword v{T+3}, v1, s[8:9] offset:{off} nt".replace(f"v{T+3}", "v2"))
    E("  s_mov_b64 exec, -1")
E(f"""  s_mov_b32 s18, 0x003f003f
  s_mov_b32 s19, 0x003f003f
  s_nop 5
  s_mov_b64 exec, s[18:19]""")
for r in range(4):
    E(f"  ds_add_f32 v{T+1}, v{ACC+r} offset:{32*r}")
E(f"""  s_mov_b64 exec, -1
  s_waitcnt lgkmcnt(0)
  s_barrier""")
stamp(3)
E(f"""  s_cmp_ge_u32 s14, 2
  s_cbranch_scc1 L_noatom
  ds_read_b32 v{P+15}, v{P+14}
  v_lshlrev_b32 v{P}, 2, v3
  s_mov_b32 s24, {a.maxpoll}
L_flagpoll:
  s_mov_b64 exec, {(1<<R)-1}
  global_load_dword v{P+1}, v{P}, s[10:11] {a.sy}
  s_waitcnt vmcnt(0)
  v_cmp_ne_u32 vcc, 0, v{P+1}
  s_sub_u32 s24, s24, 1
  s_cbranch_scc1 L_flagok
  s_cmp_eq_u64 vcc, exec
  s_cbranch_scc0 L_flagpoll
L_flagok:
  s_mov_b64 exec, -1
  s_and_b32 s18, s2, {R-1}
  s_lshl_b32 s18, s18, 9
  v_add_u32 v{P+14}, s18, v{P+14}
  s_waitcnt lgkmcnt(0)
  global_atomic_add_f32 v{P+14}, v{P+15}, s[12:13]
L_noatom:""")
E("  s_mov_b32 s25, 0xffff0000")
for i in range(9):
    for d in range(3):
        E(f"  v_lshlrev_b32 v{U+6*i+2*d}, 16, v{D+4*i+d}")
        E(f"  v_and_b32 v{U+6*i+2*d+1}, s25, v{D+4*i+d}")
E(f"""  s_cmp_lg_u32 s14, 0
  s_cbranch_scc1 L_wait
  v_lshlrev_b32 v{T}, 4, v3
  s_mov_b32 s24, {a.maxpoll}
  s_mov_b32 s26, {hex(__import__('struct').unpack('<I', __import__('struct').pack('<f', 256.0/R))[0])}
L_poll:""")
for k in range(NLD):
    E(f"  global_load_dwordx4 v[{P+4*k}:{P+4*k+3}], v{T}, s[12:13] offset:{1024*k} {a.sy}")
if a.sleep: E(f"  s_sleep {a.sleep}")
for k in range(NLD):
    E(f"  s_waitcnt vmcnt({NLD-1-k})")
    E(f"  v_cmp_eq_f32 s[{18+2*(k%2)}:{19+2*(k%2)}], s26, v{P+4*k+3}")
    if k == 0:
        E("  s_mov_b64 s[22:23], s[18:19]")
    else:
        E(f"  s_and_b64 s[22:23], s[22:23], s[{18+2*(k%2)}:{19+2*(k%2)}]")
E(f"""  s_sub_u32 s24, s24, 1
  s_cbranch_scc1 L_pollok
  s_cmp_eq_u64 s[22:23], exec
  s_cbranch_scc0 L_poll
L_pollok:""")
stamp(4)
for k in range(1, NLD):
    for j in range(3):
        E(f"  v_add_f32 v{P+j}, v{P+j}, v{P+4*k+j}")
for j in range(3):
    E(f"  v_mov_b32 v{P+4+j}, v{P+j}")
E("  s_nop 1")
for j in range(3):
    E(f"  v_permlane32_swap_b32 v{P+j}, v{P+4+j}")
E("  s_waitcnt lgkmcnt(0)")
E("  s_mov_b32 exec_hi, 0")
for j in range(3):
    E(f"  v_add_f32 v{P+j}, v{P+j}, v{P+4+j}")
E(f"""  s_lshl_b32 s18, s16, 16
  s_and_b32 s19, s16, 0xffff0000
  s_lshl_b32 s20, s17, 16
  s_mov_b32 s21, {hex(__import__('struct').unpack('<I', __import__('struct').pack('<f', 1.0/147456.0))[0])}""")
def rne3(regs, tmp):
    E(f"  v_cvt_pk_bf16_f32 v{tmp}, v{regs[0]}, v{regs[1]}")
    E(f"  v_cvt_pk_bf16_f32 v{tmp+1}, v{regs[2]}, v{regs[2]}")
    E(f"  v_lshlrev_b32 v{regs[0]}, 16, v{tmp}")
    E(f"  v_and_b32 v{regs[1]}, s25, v{tmp}")
    E(f"  v_lshlrev_b32 v{regs[2]}, 16, v{tmp+1}")
g = [P+1, P+2, P+3]
E(f"  v_mov_b32 v{P+3}, v{P+2}")
E(f"  v_mov_b32 v{P+2}, v{P+1}")
E(f"  v_mov_b32 v{P+1}, v{P}")
rne3(g, P+12)
for r in g: E(f"  v_mul_f32 v{r}, s21, v{r}")
rne3(g, P+12)
E("  s_nop 1")
E(f"  v_mov_b32_dpp v{P}, v{P+3} wave_shr:1 row_mask:0xf bank_mask:0xf bound_ctrl:0")
E(f"  v_mov_b32_dpp v{P+4}, v{P+1} wave_shl:1 row_mask:0xf bank_mask:0xf bound_ctrl:0")
p0 = [P+5, P+6, P+7]; p1 = [P+8, P+9, P+10]
for j in range(3): E(f"  v_mul_f32 v{p0[j]}, s18, v{P+j}")
for j in range(3): E(f"  v_mul_f32 v{p1[j]}, s19, v{P+1+j}")
rne3(p0, P+12); rne3(p1, P+14)
for j in range(3): E(f"  v_add_f32 v{p0[j]}, v{p0[j]}, v{p1[j]}")
for j in range(3): E(f"  v_mul_f32 v{p1[j]}, s20, v{P+2+j}")
rne3(p0, P+12); rne3(p1, P+14)
for j in range(3): E(f"  v_add_f32 v{p0[j]}, v{p0[j]}, v{p1[j]}")
rne3(p0, P+12)
for j in range(3): E(f"  v_mul_f32 v{p0[j]}, 0xbfb8aa3b, v{p0[j]}")
for j in range(3): E(f"  v_exp_f32 v{p0[j]}, v{p0[j]}")
E("  s_nop 0")
for j in range(3): E(f"  v_add_f32 v{p0[j]}, 1.0, v{p0[j]}")
for j in range(3): E(f"  v_rcp_f32 v{p0[j]}, v{p0[j]}")
E("  s_nop 0")
rne3(p0, P+12)
E(f"  v_mul_u32_u24 v{T}, 12, v3")
E(f"  ds_write2_b32 v{T}, v{p0[0]}, v{p0[1]} offset0:128 offset1:129")
E(f"  ds_write_b32 v{T}, v{p0[2]} offset:520")
E(f"""  s_mov_b64 exec, -1
  s_waitcnt lgkmcnt(0)
L_wait:
  s_barrier""")
stamp(5)
for j in range(3):
    E(f"  ds_read_b64 v[{S+2*j}:{S+2*j+1}], v{T+3} offset:{512+8*j}")
E("  s_waitcnt lgkmcnt(0)")
for i in range(9):
    for d in range(3):
        E(f"  v_pk_mul_f32 v[{U+6*i+2*d}:{U+6*i+2*d+1}], v[{U+6*i+2*d}:{U+6*i+2*d+1}], v[{S+2*d}:{S+2*d+1}]")
    for d in range(3):
        E(f"  v_cvt_pk_bf16_f32 v{D+4*i+d}, v{U+6*i+2*d}, v{U+6*i+2*d+1}")
    E(f"  global_store_dwordx3 v1, v[{D+4*i}:{D+4*i+2}], s[8:9] offset:{(i-4)*768} {a.st}")
if a.stamp:
    stamp(6)
    E("  s_waitcnt vmcnt(0)")
    E("  s_barrier")
    if a.wb:
        E("  s_cmp_lg_u32 s14, 0\n  s_cbranch_scc1 L_end\n  buffer_wbl2 sc1\n  s_waitcnt vmcnt(0)")
    stamp(7)
    if a.exf:
        k, K = map(int, a.exf.split(","))
        E(f'''  s_cmp_lg_u32 s14, 0
  s_cbranch_scc1 L_end
  s_waitcnt lgkmcnt(0)
  s_mov_b64 exec, 1
  s_not_b32 s18, s32
  v_mov_b32 v4, s18
  v_mov_b32 v5, s{32+2*k}
  v_mov_b32 v6, 1
  v_mov_b32 v1, 128
  global_atomic_umax v1, v4, s[10:11]
  global_atomic_umax v1, v5, s[10:11] offset:4
  s_waitcnt vmcnt(0)
  global_atomic_add v7, v1, v6, s[10:11] offset:8 sc0
  s_waitcnt vmcnt(0)
  v_readfirstlane_b32 s18, v7
  s_cmp_lg_u32 s18, 255
  s_cbranch_scc1 L_end
  global_load_dwordx2 v[4:5], v1, s[10:11] sc1
  s_waitcnt vmcnt(0)
  v_readfirstlane_b32 s18, v4
  v_readfirstlane_b32 s19, v5
  s_not_b32 s18, s18
  s_sub_u32 s19, s19, s18
  s_min_u32 s19, s19, 10000
  v_mov_b32 v4, s19
  global_store_dword v1, v4, s[10:11] offset:-80
  v_mov_b32 v4, s4
  v_mov_b32 v5, s5
  v_mov_b32 v6, s8
  v_mov_b32 v7, s9
  v_mov_b32 v8, s10
  v_mov_b32 v9, s12
  v_mov_b32 v10, s0
  v_mov_b32 v11, s6
  global_store_dwordx4 v1, v[4:7], s[10:11] offset:-128
  global_store_dwordx4 v1, v[8:11], s[10:11] offset:-112
  s_mul_i32 s19, s19, {K}
  s_memrealtime s[20:21]
  s_waitcnt lgkmcnt(0)
  s_add_u32 s19, s19, s20
L_spin:
  s_memrealtime s[20:21]
  s_waitcnt lgkmcnt(0)
  s_sub_u32 s22, s19, s20
  s_cmp_gt_i32 s22, 0
  s_cbranch_scc1 L_spin
  s_branch L_end''')
    E(f"""  s_cmp_lg_u32 s14, 0
  s_cbranch_scc1 L_end
  s_getreg_b32 s50, hwreg(HW_REG_XCC_ID)
  s_getreg_b32 s51, hwreg(HW_REG_HW_ID)
  s_waitcnt lgkmcnt(0)
  s_lshl_b32 s18, s2, 6
  s_add_u32 s18, s18, {64<<20}
  v_mov_b32 v1, s18""")
    for k in range(8):
        E(f"  v_mov_b32 v{4+k}, s{32+2*k}")
    E("  v_mov_b32 v12, s50")
    E("  v_mov_b32 v13, s51")
    E("  v_mov_b32 v14, s24")
    E("  s_mov_b64 exec, 1")
    E("  global_store_dwordx4 v1, v[4:7], s[12:13]")
    E("  global_store_dwordx4 v1, v[8:11], s[12:13] offset:16")
    E("  global_store_dwordx4 v1, v[12:15], s[12:13] offset:32")
E("L_end:\n  s_endpgm")
if a.empty:
    E(""".globl empty_kernel
.p2align 8
.type empty_kernel,@function
empty_kernel:
  s_endpgm""")
E(kd(KN, 128, 64))
if a.empty: E(kd("empty_kernel", 8, 16))
open(a.o, "w").write("\n".join(o) + "\n")
print(build(a.o))
```

```python
import struct
def f2u(x): return hex(struct.unpack('<I', struct.pack('<f', x))[0])
def emit_stamp_dump(E, a, nwg=256, cnt="s24"):
    if a.exf:
        k, K = map(int, a.exf.split(","))
        E(f'''  s_cmp_lg_u32 s14, {getattr(a,'xw',0)}
  s_cbranch_scc1 L_end
  s_waitcnt lgkmcnt(0)
  s_mov_b64 exec, 1
  s_not_b32 s18, s32
  v_mov_b32 v4, s18
  v_mov_b32 v5, s{32+2*k}
  v_mov_b32 v6, 1
  v_mov_b32 v1, 128
  global_atomic_umax v1, v4, s[10:11]
  global_atomic_umax v1, v5, s[10:11] offset:4
  s_waitcnt vmcnt(0)
  global_atomic_add v7, v1, v6, s[10:11] offset:8 sc0
  s_waitcnt vmcnt(0)
  v_readfirstlane_b32 s18, v7
  s_cmp_lg_u32 s18, {nwg-1}
  s_cbranch_scc1 L_end
  global_load_dwordx2 v[4:5], v1, s[10:11] sc1
  s_waitcnt vmcnt(0)
  v_readfirstlane_b32 s18, v4
  v_readfirstlane_b32 s19, v5
  s_not_b32 s18, s18
  s_sub_u32 s19, s19, s18
  s_min_u32 s19, s19, 10000
  v_mov_b32 v4, s19
  global_store_dword v1, v4, s[10:11] offset:12
  s_mul_i32 s19, s19, {K}
  s_memrealtime s[20:21]
  s_waitcnt lgkmcnt(0)
  s_add_u32 s19, s19, s20
L_spin:
  s_memrealtime s[20:21]
  s_waitcnt lgkmcnt(0)
  s_sub_u32 s22, s19, s20
  s_cmp_gt_i32 s22, 0
  s_cbranch_scc1 L_spin
  s_branch L_end''')
        return
    if a.allw:
        E("  s_lshl_b32 s2, s2, 4\n  s_add_u32 s2, s2, s14")
    else:
        E("  s_cmp_lg_u32 s14, 0\n  s_cbranch_scc1 L_end")
    E(f"""  s_getreg_b32 s50, hwreg(HW_REG_XCC_ID)
  s_getreg_b32 s51, hwreg(HW_REG_HW_ID)
  s_waitcnt lgkmcnt(0)
  s_lshl_b32 s18, s2, 6
  s_add_u32 s18, s18, {64<<20}
  v_mov_b32 v1, s18""")
    for k in range(8):
        E(f"  v_mov_b32 v{4+k}, s{32+2*k}")
    E(f"""  v_mov_b32 v12, s50
  v_mov_b32 v13, s51
  v_mov_b32 v14, {cnt}
  v_mov_b32 v15, s27
  s_mov_b64 exec, 1
  global_store_dwordx4 v1, v[4:7], s[12:13]
  global_store_dwordx4 v1, v[8:11], s[12:13] offset:16
  global_store_dwordx4 v1, v[12:15], s[12:13] offset:32""")

def emit_gate(E, P, wreg="s16", wreg2="s17", mask="s25"):
    E(f"""  s_lshl_b32 s18, {wreg}, 16
  s_and_b32 s19, {wreg}, 0xffff0000
  s_lshl_b32 s20, {wreg2}, 16
  s_mov_b32 s21, {f2u(1.0/147456.0)}""")
    def rne3(src, dst, tmp):
        E(f"  v_cvt_pk_bf16_f32 v{tmp}, v{src[0]}, v{src[1]}")
        E(f"  v_cvt_pk_bf16_f32 v{tmp+1}, v{src[2]}, v{src[2]}")
        E(f"  v_lshlrev_b32 v{dst[0]}, 16, v{tmp}")
        E(f"  v_and_b32 v{dst[1]}, {mask}, v{tmp}")
        E(f"  v_lshlrev_b32 v{dst[2]}, 16, v{tmp+1}")
    src = [P, P+1, P+2]
    g = [P+9, P+10, P+11]
    rne3(src, src, P+14)
    for j in range(3): E(f"  v_mul_f32 v{src[j]}, s21, v{src[j]}")
    rne3(src, g, P+14)
    E("  s_nop 1")
    E(f"  v_mov_b32_dpp v{P+8}, v{P+11} wave_shr:1 row_mask:0xf bank_mask:0xf bound_ctrl:0")
    E(f"  v_mov_b32_dpp v{P+12}, v{P+9} wave_shl:1 row_mask:0xf bank_mask:0xf bound_ctrl:0")
    p0 = [P+5, P+6, P+7]; p1 = [P, P+1, P+2]
    for j in range(3): E(f"  v_mul_f32 v{p0[j]}, s18, v{P+8+j}")
    for j in range(3): E(f"  v_mul_f32 v{p1[j]}, s19, v{P+9+j}")
    rne3(p0, p0, P+14); rne3(p1, p1, P+3)
    for j in range(3): E(f"  v_add_f32 v{p0[j]}, v{p0[j]}, v{p1[j]}")
    for j in range(3): E(f"  v_mul_f32 v{p1[j]}, s20, v{P+10+j}")
    rne3(p0, p0, P+14); rne3(p1, p1, P+3)
    for j in range(3): E(f"  v_add_f32 v{p0[j]}, v{p0[j]}, v{p1[j]}")
    rne3(p0, p0, P+14)
    for j in range(3): E(f"  v_mul_f32 v{p0[j]}, 0xbfb8aa3b, v{p0[j]}")
    for j in range(3): E(f"  v_exp_f32 v{p0[j]}, v{p0[j]}")
    E("  s_nop 0")
    for j in range(3): E(f"  v_add_f32 v{p0[j]}, 1.0, v{p0[j]}")
    for j in range(3): E(f"  v_rcp_f32 v{p0[j]}, v{p0[j]}")
    E("  s_nop 0")
    rne3(p0, p0, P+14)
    return p0

def emit_gate1(E, X, T, wreg="s16", wreg2="s17", mask="s25"):
    E(f"""  v_cvt_pk_bf16_f32 v{X}, v{X}, v{X}
  v_and_b32 v{X}, {mask}, v{X}
  v_mul_f32 v{X}, s21, v{X}
  v_cvt_pk_bf16_f32 v{X}, v{X}, v{X}
  v_and_b32 v{X}, {mask}, v{X}
  v_mul_f32 v{T+1}, s19, v{X}
  v_mul_f32 v{T+3}, s18, v{X}
  v_mul_f32 v{T+4}, s20, v{X}
  v_cvt_pk_bf16_f32 v{T+1}, v{T+1}, v{T+1}
  v_cvt_pk_bf16_f32 v{T+5}, v{T+3}, v{T+4}
  v_and_b32 v{T+1}, {mask}, v{T+1}
  s_nop 0
  v_mov_b32_dpp v{T}, v{T+5} wave_shr:1 row_mask:0xf bank_mask:0xf bound_ctrl:0
  v_mov_b32_dpp v{T+2}, v{T+5} wave_shl:1 row_mask:0xf bank_mask:0xf bound_ctrl:0
  v_lshlrev_b32 v{T}, 16, v{T}
  v_and_b32 v{T+2}, {mask}, v{T+2}
  v_add_f32 v{X}, v{T}, v{T+1}
  v_cvt_pk_bf16_f32 v{X}, v{X}, v{X}
  v_and_b32 v{X}, {mask}, v{X}
  v_add_f32 v{X}, v{X}, v{T+2}
  v_cvt_pk_bf16_f32 v{X}, v{X}, v{X}
  v_and_b32 v{X}, {mask}, v{X}
  v_mul_f32 v{X}, 0xbfb8aa3b, v{X}
  v_exp_f32 v{X}, v{X}
  s_nop 0
  v_add_f32 v{X}, 1.0, v{X}
  v_rcp_f32 v{X}, v{X}
  s_nop 0
  v_cvt_pk_bf16_f32 v{X}, v{X}, v{X}
  v_and_b32 v{X}, {mask}, v{X}""")
```

```python
import sys, argparse
from asmlib import *
from common import *
ap = argparse.ArgumentParser()
ap.add_argument("-o", default="v4.s")
ap.add_argument("--fw", type=int, default=11)
ap.add_argument("--ob", type=int, default=17)
ap.add_argument("--os", type=int, default=2)
ap.add_argument("--stamp", action="store_true")
ap.add_argument("--allw", action="store_true")
ap.add_argument("--fine", action="store_true")
ap.add_argument("--exf", default="")
ap.add_argument("--ld", default="nt")
ap.add_argument("--st", default="nt")
ap.add_argument("--sy", default="sc1")
ap.add_argument("--pl", default="sc1")
ap.add_argument("--prio", type=int, default=3)
ap.add_argument("--sleep", type=int, default=0)
ap.add_argument("--sleep2", type=int, default=0)
ap.add_argument("--maxpoll", type=int, default=200000)
a = ap.parse_args()
if a.exf or a.allw: a.stamp = True
o = []; E = o.append
def stamp(k):
    if a.stamp: E(f"  s_memrealtime s[{32+2*k}:{33+2*k}]")
def fine(k):
    if a.fine: stamp(k)
NC = 16
LA, LB, LS = 0, 8192, 10240
FIN = 98304
NCS = 7
E(HEADER + "; @launch grid=(256,1,1) block=(1024,1,1) lds=10752")
E(f""".amdgcn_target "amdgcn-amd-amdhsa--gfx950"
.text
.globl {KN}
.p2align 8
.type {KN},@function
{KN}:""")
D = 4; U = 40; P = 94; SEL = P; ACC = P + 4; T = P + 8; S = P + 16
M = D + 3
VI, VA, VB = 120, 121, 122
stamp(0)
E(f"""  s_cmp_ge_u32 s2, 256
  s_cbranch_scc1 L_end
  s_load_dwordx4 s[4:7], s[0:1], 0
  s_load_dwordx4 s[8:11], s[0:1], 16
  s_load_dwordx2 s[12:13], s[0:1], 32
  v_lshrrev_b32 v2, 6, v0
  v_and_b32 v3, 63, v0
  v_readfirstlane_b32 s14, v2
  v_mul_u32_u24 v0, 12, v3
  s_mul_i32 s3, s2, 110592
  s_mul_i32 s15, s14, 6912
  s_add_u32 s3, s3, 3072
  s_add_u32 s3, s3, s15
  v_add_u32 v1, s3, v0
  s_cmp_lt_u32 s2, {NC}
  s_cselect_b32 s15, 1, 0
  s_cmp_eq_u32 s14, 0
  s_cselect_b32 s15, s15, 0
  s_cmp_eq_u32 s15, 0
  s_waitcnt lgkmcnt(0)
  s_cbranch_scc1 L_noclear
  s_mul_i32 s18, s2, {NCS*1024}
  s_add_u32 s18, s18, 4096
  v_lshl_add_u32 v{T}, v3, 4, s18
  v_mov_b32 v{P}, -1
  v_mov_b32 v{P+1}, -1
  v_mov_b32 v{P+2}, -1
  v_mov_b32 v{P+3}, -1""")
for k in range(NCS):
    E(f"  global_store_dwordx4 v{T}, v[{P}:{P+3}], s[12:13] offset:{1024*k-4096} {a.sy}")
E("L_noclear:")
for i in range(9):
    E(f"  global_load_dwordx3 v[{D+4*i}:{D+4*i+2}], v1, s[4:5] offset:{(i-4)*768} {a.ld}")
if not a.fine: stamp(1)
E(f"""  s_load_dwordx2 s[16:17], s[6:7], 0
  s_cmp_eq_u32 s15, 0
  s_cbranch_scc1 L_noflag
  s_waitcnt vmcnt(9)
  s_lshl_b32 s18, s2, 2
  v_mov_b32 v{T}, 1
  v_mov_b32 v{T+1}, s18
  s_mov_b64 exec, 1
  global_store_dword v{T+1}, v{T}, s[10:11] {a.sy}
  s_mov_b64 exec, -1
  s_waitcnt vmcnt(0)
L_noflag:""")
for i in range(9):
    E(f"  v_mov_b32 v{D+4*i+3}, 0")
E(f"""  v_and_b32 v{T}, 15, v3
  v_lshrrev_b32 v{T+1}, 2, v{T}
  v_sub_u32 v{T+1}, v{T}, v{T+1}
  v_and_b32 v{T+2}, 3, v{T}
  v_cmp_ne_u32 s[18:19], 3, v{T+2}
  v_cmp_gt_u32 s[20:21], 8, v{T}
  v_and_b32 v{T+2}, 1, v{T+1}
  v_lshlrev_b32 v{T+2}, 4, v{T+2}
  s_and_b64 s[18:19], s[18:19], s[20:21]
  v_mov_b32 v{T+3}, 0x3f80
  v_lshlrev_b32 v{T+2}, v{T+2}, v{T+3}
  v_lshrrev_b32 v{T+1}, 1, v{T+1}
  v_cndmask_b32 v{T+2}, 0, v{T+2}, s[18:19]
  v_cmp_eq_u32 s[18:19], 0, v{T+1}
  v_cmp_eq_u32 s[20:21], 1, v{T+1}
  v_cmp_eq_u32 s[22:23], 2, v{T+1}
  v_mov_b32 v{SEL+3}, 0
  v_cndmask_b32 v{SEL}, 0, v{T+2}, s[18:19]
  v_cndmask_b32 v{SEL+1}, 0, v{T+2}, s[20:21]
  v_cndmask_b32 v{SEL+2}, 0, v{T+2}, s[22:23]
  v_lshrrev_b32 v{T+1}, 4, v3
  v_lshlrev_b32 v{T+1}, 4, v{T+1}
  v_lshl_add_u32 v{T+1}, v{T}, 5, v{T+1}
  s_lshl_b32 s26, s14, 9
  v_add_u32 v{T+1}, s26, v{T+1}
  s_mov_b32 s25, 0xffff0000
  v_lshlrev_b32 v3, 2, v3
  s_mov_b32 s24, {a.maxpoll}
  s_mov_b32 s27, {a.maxpoll}""")
E(f"""  s_lshl_b32 s18, s14, 8
  v_add_u32 v{VI}, s18, v3
  v_mul_u32_u24 v2, 171, v{VI}
  v_lshrrev_b32 v2, 11, v2
  v_lshl_add_u32 v2, v2, 2, v{VI}
  v_and_b32 v{VA}, 0x7c, v{VI}
  v_lshrrev_b32 v{VI}, 7, v{VI}
  v_lshlrev_b32 v{VI}, 15, v{VI}
  s_lshl_b32 s18, s2, 7
  v_add3_u32 v{VI}, v{VI}, v{VA}, s18""")
for i in range(9):
    E(f"  s_waitcnt vmcnt({8-i})")
    c = "0" if i == 0 else f"v[{ACC}:{ACC+3}]"
    E(f"  v_mfma_f32_16x16x32_bf16 v[{ACC}:{ACC+3}], v[{SEL}:{SEL+3}], v[{D+4*i}:{D+4*i+3}], {c}")
if not a.fine: stamp(2)
E(f"""  s_nop 6
  s_mov_b32 exec_hi, 0
  ds_write_b128 v{T+1}, v[{ACC}:{ACC+3}] offset:{LA}
  s_mov_b32 exec_hi, -1
  s_cmp_lg_u32 s14, {a.fw}
  s_cbranch_scc1 L_bar2
  s_mov_b64 exec, {(1<<NC)-1}
L_flagpoll:
  global_load_dword v{T+2}, v3, s[10:11] {a.pl}
  s_waitcnt vmcnt(0)
  v_cmp_ne_u32 vcc, 0, v{T+2}
  s_sub_u32 s27, s27, 1
  s_cbranch_scc1 L_flagok
  s_cmp_eq_u64 vcc, exec
  s_cbranch_scc0 L_flagpoll
L_flagok:
  s_mov_b64 exec, -1
L_bar2:
  s_sub_u32 s28, s2, {a.ob}
  s_waitcnt lgkmcnt(0)
  s_barrier""")
stamp(3)
E("  s_cmp_ge_u32 s14, 2\n  s_cbranch_scc1 L_nopub")
if a.prio: E(f"  s_setprio {a.prio}")
for k in range(8):
    E(f"  ds_read2st64_b32 v[{P+2*k}:{P+2*k+1}], v2 offset0:{4*k} offset1:{4*k+2}")
E("  s_cmp_eq_u32 s14, 0\n  s_cselect_b32 s18, -1, 0")
for k in range(1, 8):
    E(f"  s_waitcnt lgkmcnt({7-k})")
    E(f"  v_pk_add_f32 v[{P}:{P+1}], v[{P}:{P+1}], v[{P+2*k}:{P+2*k+1}]")
E(f"""  v_add_f32 v{P}, v{P}, v{P+1}
  s_mov_b32 exec_hi, s18
  v_min_u32 v{P}, -2, v{P}""")
fine(1)
E(f"""  global_store_dword v{VI}, v{P}, s[12:13] {a.sy}
  s_mov_b32 exec_hi, -1
L_nopub:""")
E(f"""  s_cmp_eq_u32 s28, 0
  s_cselect_b32 s29, 0, 3
  s_cmp_eq_u32 s28, {a.os}
  s_cselect_b32 s29, 1, s29
  s_cmp_eq_u32 s28, {2*a.os}
  s_cselect_b32 s29, 2, s29
  s_cmp_eq_u32 s29, 3
  s_cbranch_scc1 L_notown
  s_lshl_b32 s18, s29, 15
  s_lshl_b32 s19, s14, 11
  s_add_u32 s18, s18, s19
  v_add_u32 v{VA}, s18, v3
  s_lshl_b32 s19, s14, 7
  v_add_u32 v{VB}, s19, v3
L_own:""")
Q = P + 16
for k in range(8):
    E(f"  global_load_dword v{Q+k}, v{VA}, s[12:13] offset:{256*k} {a.pl}")
E(f"""  s_waitcnt vmcnt(5)
  v_max3_u32 v{M}, v{Q}, v{Q+1}, v{Q+2}
  v_pk_add_f32 v[{Q}:{Q+1}], v[{Q}:{Q+1}], v[{Q}:{Q+1}] op_sel:[0,0] op_sel_hi:[1,1] neg_lo:[0,0]""".rsplit("\n",1)[0])
E(f"""  v_add_f32 v{P}, v{Q}, v{Q+1}
  v_add_f32 v{P}, v{P}, v{Q+2}
  s_waitcnt vmcnt(3)
  v_max3_u32 v{M}, v{M}, v{Q+3}, v{Q+4}
  v_add_f32 v{P}, v{P}, v{Q+3}
  v_add_f32 v{P}, v{P}, v{Q+4}
  s_waitcnt vmcnt(1)
  v_max3_u32 v{M}, v{M}, v{Q+5}, v{Q+6}
  v_add_f32 v{P}, v{P}, v{Q+5}
  v_add_f32 v{P}, v{P}, v{Q+6}
  s_waitcnt vmcnt(0)
  v_max_u32 v{M}, v{M}, v{Q+7}
  v_add_f32 v{P}, v{P}, v{Q+7}
  v_cmp_eq_u32 vcc, -1, v{M}
  v_mov_b32 v{P+1}, v{P}
  s_sub_u32 s24, s24, 1
  s_cbranch_scc1 L_own_ok
  s_cbranch_vccz L_own_ok""")
if a.sleep: E(f"  s_sleep {a.sleep}")
E(f"""  s_branch L_own
L_own_ok:""")
if a.fine: E("  s_cmp_lt_u32 s14, 2\n  s_cbranch_scc1 L_f1"); stamp(1); E("L_f1:")
E(f"""  v_permlane32_swap_b32 v{P}, v{P+1}
  s_mov_b32 exec_hi, 0
  v_add_f32 v{P}, v{P}, v{P+1}
  ds_write_b32 v{VB}, v{P} offset:{LB}
  s_mov_b32 exec_hi, -1
  s_movk_i32 s18, {LB}
  v_and_b32 v{VA}, 0x80, v3
  v_mul_u32_u24 v{VA}, 7, v{VA}
  v_add3_u32 v{VA}, v{VA}, v3, s18
  s_waitcnt lgkmcnt(0)
  s_barrier
  s_cmp_lg_u32 s14, 0
  s_cbranch_scc1 L_notown""")
for k in range(4):
    E(f"  ds_read2_b32 v[{P+2*k}:{P+2*k+1}], v{VA} offset0:{64*k} offset1:{64*k+32}".replace(f"v{VA} ", f"v{VA} "))
E(f"""  s_lshl_b32 s18, s29, 7
  s_add_u32 s18, s18, {FIN}
  v_add_u32 v{VB}, s18, v3""")
for k in range(1, 4):
    E(f"  s_waitcnt lgkmcnt({3-k})")
    E(f"  v_pk_add_f32 v[{P}:{P+1}], v[{P}:{P+1}], v[{P+2*k}:{P+2*k+1}]")
E(f"""  v_add_f32 v{P}, v{P}, v{P+1}
  v_mov_b32 v{P+1}, v{P}
  s_nop 1
  v_permlane32_swap_b32 v{P}, v{P+1}
  s_mov_b32 exec_hi, 0
  v_add_f32 v{P}, v{P}, v{P+1}
  v_min_u32 v{P}, -2, v{P}
  global_store_dword v{VB}, v{P}, s[12:13] {a.sy}
  s_mov_b32 exec_hi, -1""")
fine(2)
E("L_notown:")
for i in range(9):
    for d in range(3):
        E(f"  v_lshlrev_b32 v{U+6*i+2*d}, 16, v{D+4*i+d}")
        E(f"  v_and_b32 v{U+6*i+2*d+1}, s25, v{D+4*i+d}")
E(f"""  s_cmp_ge_u32 s14, 2
  s_cbranch_scc1 L_wait
  s_mul_i32 s22, s14, 192
  s_add_u32 s23, s22, {FIN-4}
  v_add_u32 v{VA}, s23, v3
  s_add_u32 s23, s22, {LS-4}
  v_add_u32 v{VB}, s23, v3
  s_lshl_b32 s18, s16, 16
  s_and_b32 s19, s16, 0xffff0000
  s_lshl_b32 s20, s17, 16
  s_mov_b32 s21, {f2u(1.0/147456.0)}
  s_lshr_b32 s23, 0x3ffff, s14
  s_cmp_eq_u32 s14, 0
  s_cselect_b32 exec_lo, -2, -1
  s_mov_b32 exec_hi, s23
  s_mov_b32 s30, {a.maxpoll}
L_poll:
  global_load_dword v{P}, v{VA}, s[12:13] {a.pl}
  s_waitcnt vmcnt(0)
  v_cmp_eq_u32 vcc, -1, v{P}
  s_sub_u32 s30, s30, 1
  s_cbranch_scc1 L_poll_ok
  s_cbranch_vccz L_poll_ok""")
if a.sleep2: E(f"  s_sleep {a.sleep2}")
E("  s_branch L_poll\nL_poll_ok:")
stamp(4)
if a.fine: E("  s_mov_b32 s27, s30")
emit_gate1(E, P, P+2)
E(f"""  s_mov_b32 exec_lo, -2
  s_mov_b32 exec_hi, 0x1ffff
  ds_write_b32 v{VB}, v{P}
  s_mov_b64 exec, -1""")
if a.prio: E("  s_setprio 0")
E(f"""  s_waitcnt lgkmcnt(0)
L_wait:
  v_and_b32 v3, 60, v3
  v_mul_u32_u24 v3, 6, v3
  s_barrier""")
stamp(5)
for j in range(3):
    E(f"  ds_read_b64 v[{S+2*j}:{S+2*j+1}], v3 offset:{LS+8*j}")
E("  s_waitcnt lgkmcnt(0)")
for i in range(9):
    for d in range(3):
        E(f"  v_pk_mul_f32 v[{U+6*i+2*d}:{U+6*i+2*d+1}], v[{U+6*i+2*d}:{U+6*i+2*d+1}], v[{S+2*d}:{S+2*d+1}]")
    for d in range(3):
        E(f"  v_cvt_pk_bf16_f32 v{D+4*i+d}, v{U+6*i+2*d}, v{U+6*i+2*d+1}")
    E(f"  global_store_dwordx3 v1, v[{D+4*i}:{D+4*i+2}], s[8:9] offset:{(i-4)*768} {a.st}")
if a.stamp:
    stamp(6)
    E("  s_waitcnt vmcnt(0)")
    E("  s_barrier")
    stamp(7)
    emit_stamp_dump(E, a, cnt="s24")
E("L_end:\n  s_endpgm")
E(kd(KN, 128, 64))
open(a.o, "w").write("\n".join(o) + "\n")
print(build(a.o))
```

```python
import sys, argparse
from asmlib import *
from common import *
ap = argparse.ArgumentParser()
ap.add_argument("-o", default="v4.s")
ap.add_argument("--fw", type=int, default=11)
ap.add_argument("--ob", type=int, default=17)
ap.add_argument("--os", type=int, default=2)
ap.add_argument("--stamp", action="store_true")
ap.add_argument("--allw", action="store_true")
ap.add_argument("--fine", action="store_true")
ap.add_argument("--exf", default="")
ap.add_argument("--ld", default="nt")
ap.add_argument("--st", default="nt")
ap.add_argument("--sy", default="sc1")
ap.add_argument("--pl", default="sc1")
ap.add_argument("--pat", default="wave")
ap.add_argument("--thr", type=int, default=-1)
ap.add_argument("--prio", type=int, default=3)
ap.add_argument("--sleep", type=int, default=0)
ap.add_argument("--sleep2", type=int, default=0)
ap.add_argument("--maxpoll", type=int, default=200000)
a = ap.parse_args()
if a.exf or a.allw: a.stamp = True
o = []; E = o.append
def stamp(k):
    if a.stamp: E(f"  s_memrealtime s[{32+2*k}:{33+2*k}]")
def fine(k):
    if a.fine: stamp(k)
NC = 16
LA, LB, LS = 0, 8192, 10240
FIN = 98304
NCS = 7
E(HEADER + "; @launch grid=(256,1,1) block=(1024,1,1) lds=10752")
E(f""".amdgcn_target "amdgcn-amd-amdhsa--gfx950"
.text
.globl {KN}
.p2align 8
.type {KN},@function
{KN}:""")
D = 4; U = 40; P = 94; SEL = P; ACC = P + 4; T = P + 8; S = P + 16
M = D + 3
VI, VA, VB = 120, 121, 122
if a.pat == "wave":
    ADDR = "  s_mul_i32 s3, s2, 110592\n  s_mul_i32 s15, s14, 6912\n  s_add_u32 s3, s3, 3072\n  s_add_u32 s3, s3, s15"
elif a.pat == "seq":
    ADDR = "  s_and_b32 s15, s14, 3\n  s_lshl_b32 s3, s2, 2\n  s_add_u32 s3, s3, s15\n  s_mul_i32 s3, s3, 768\n  s_lshr_b32 s15, s14, 2\n  s_mul_i32 s15, s15, 7077888\n  s_add_u32 s3, s3, s15"
    STEP = 786432
elif a.pat == "seq16":
    ADDR = "  s_lshl_b32 s3, s2, 4\n  s_add_u32 s3, s3, s14\n  s_mul_i32 s3, s3, 768"
    STEP = 3145728
elif a.pat == "wg":
    ADDR = "  s_mul_i32 s3, s2, 110592\n  s_and_b32 s15, s14, 3\n  s_mul_i32 s15, s15, 768\n  s_add_u32 s3, s3, s15\n  s_lshr_b32 s15, s14, 2\n  s_mul_i32 s15, s15, 27648\n  s_add_u32 s3, s3, s15"
    STEP = 3072
stamp(0)
E(f"""  s_cmp_ge_u32 s2, 256
  s_cbranch_scc1 L_end
  s_load_dwordx4 s[4:7], s[0:1], 0
  s_load_dwordx4 s[8:11], s[0:1], 16
  s_load_dwordx2 s[12:13], s[0:1], 32
  v_lshrrev_b32 v2, 6, v0
  v_and_b32 v3, 63, v0
  v_readfirstlane_b32 s14, v2
  v_mul_u32_u24 v0, 12, v3
{ADDR}
  v_add_u32 v1, s3, v0
  s_cmp_lt_u32 s2, {NC}
  s_cselect_b32 s15, 1, 0
  s_cmp_eq_u32 s14, 0
  s_cselect_b32 s15, s15, 0
  s_cmp_eq_u32 s15, 0
  s_waitcnt lgkmcnt(0)
  s_cbranch_scc1 L_noclear
  s_mul_i32 s18, s2, {NCS*1024}
  s_add_u32 s18, s18, 4096
  v_lshl_add_u32 v{T}, v3, 4, s18
  v_mov_b32 v{P}, -1
  v_mov_b32 v{P+1}, -1
  v_mov_b32 v{P+2}, -1
  v_mov_b32 v{P+3}, -1""")
for k in range(NCS):
    E(f"  global_store_dwordx4 v{T}, v[{P}:{P+3}], s[12:13] offset:{1024*k-4096} {a.sy}")
E("L_noclear:")
for i in range(9):
    if a.pat == "wave":
        E(f"  global_load_dwordx3 v[{D+4*i}:{D+4*i+2}], v1, s[4:5] offset:{(i-4)*768} {a.ld}")
    else:
        E(f"  global_load_dwordx3 v[{D+4*i}:{D+4*i+2}], v1, s[4:5] {a.ld}")
        if i < 8: E(f"  s_add_u32 s4, s4, {STEP}\n  s_addc_u32 s5, s5, 0")
if not a.fine: stamp(1)
E(f"""  s_load_dwordx2 s[16:17], s[6:7], 0
  s_cmp_eq_u32 s15, 0
  s_cbranch_scc1 L_noflag
  s_waitcnt vmcnt(9)
  s_lshl_b32 s18, s2, 2
  v_mov_b32 v{T}, 1
  v_mov_b32 v{T+1}, s18
  s_mov_b64 exec, 1
  global_store_dword v{T+1}, v{T}, s[10:11] {a.sy}
  s_mov_b64 exec, -1
  s_waitcnt vmcnt(0)
L_noflag:""")
for i in range(9):
    E(f"  v_mov_b32 v{D+4*i+3}, 0")
E(f"""  v_and_b32 v{T}, 15, v3
  v_lshrrev_b32 v{T+1}, 2, v{T}
  v_sub_u32 v{T+1}, v{T}, v{T+1}
  v_and_b32 v{T+2}, 3, v{T}
  v_cmp_ne_u32 s[18:19], 3, v{T+2}
  v_cmp_gt_u32 s[20:21], 8, v{T}
  v_and_b32 v{T+2}, 1, v{T+1}
  v_lshlrev_b32 v{T+2}, 4, v{T+2}
  s_and_b64 s[18:19], s[18:19], s[20:21]
  v_mov_b32 v{T+3}, 0x3f80
  v_lshlrev_b32 v{T+2}, v{T+2}, v{T+3}
  v_lshrrev_b32 v{T+1}, 1, v{T+1}
  v_cndmask_b32 v{T+2}, 0, v{T+2}, s[18:19]
  v_cmp_eq_u32 s[18:19], 0, v{T+1}
  v_cmp_eq_u32 s[20:21], 1, v{T+1}
  v_cmp_eq_u32 s[22:23], 2, v{T+1}
  v_mov_b32 v{SEL+3}, 0
  v_cndmask_b32 v{SEL}, 0, v{T+2}, s[18:19]
  v_cndmask_b32 v{SEL+1}, 0, v{T+2}, s[20:21]
  v_cndmask_b32 v{SEL+2}, 0, v{T+2}, s[22:23]
  v_lshrrev_b32 v{T+1}, 4, v3
  v_lshlrev_b32 v{T+1}, 4, v{T+1}
  v_lshl_add_u32 v{T+1}, v{T}, 5, v{T+1}
  s_lshl_b32 s26, s14, 9
  v_add_u32 v{T+1}, s26, v{T+1}
  s_mov_b32 s25, 0xffff0000
  v_lshlrev_b32 v3, 2, v3
  s_mov_b32 s24, {a.maxpoll}
  s_mov_b32 s27, {a.maxpoll}""")
E(f"""  s_lshl_b32 s18, s14, 8
  v_add_u32 v{VI}, s18, v3
  v_mul_u32_u24 v2, 171, v{VI}
  v_lshrrev_b32 v2, 11, v2
  v_lshl_add_u32 v2, v2, 2, v{VI}
  v_and_b32 v{VA}, 0x7c, v{VI}
  v_lshrrev_b32 v{VI}, 7, v{VI}
  v_lshlrev_b32 v{VI}, 15, v{VI}
  s_lshl_b32 s18, s2, 7
  v_add3_u32 v{VI}, v{VI}, v{VA}, s18""")
for i in range(9):
    E(f"  s_waitcnt vmcnt({8-i})")
    c = "0" if i == 0 else f"v[{ACC}:{ACC+3}]"
    E(f"  v_mfma_f32_16x16x32_bf16 v[{ACC}:{ACC+3}], v[{SEL}:{SEL+3}], v[{D+4*i}:{D+4*i+3}], {c}")
if not a.fine: stamp(2)
E(f"""  s_nop 6
  s_mov_b32 exec_hi, 0
  ds_write_b128 v{T+1}, v[{ACC}:{ACC+3}] offset:{LA}
  s_mov_b32 exec_hi, -1
  s_cmp_lg_u32 s14, {a.fw}
  s_cbranch_scc1 L_bar2
  s_mov_b64 exec, {(1<<NC)-1}
L_flagpoll:
  global_load_dword v{T+2}, v3, s[10:11] {a.pl}
  s_waitcnt vmcnt(0)
  v_cmp_ne_u32 vcc, 0, v{T+2}
  s_sub_u32 s27, s27, 1
  s_cbranch_scc1 L_flagok
  s_cmp_eq_u64 vcc, exec
  s_cbranch_scc0 L_flagpoll
L_flagok:
  s_mov_b64 exec, -1
L_bar2:
  s_sub_u32 s28, s2, {a.ob}
  s_waitcnt lgkmcnt(0)
  s_barrier""")
stamp(3)
E("  s_cmp_ge_u32 s14, 2\n  s_cbranch_scc1 L_nopub")
if a.prio: E(f"  s_setprio {a.prio}")
for k in range(8):
    E(f"  ds_read2st64_b32 v[{P+2*k}:{P+2*k+1}], v2 offset0:{4*k} offset1:{4*k+2}")
E("  s_cmp_eq_u32 s14, 0\n  s_cselect_b32 s18, -1, 0")
for k in range(1, 8):
    E(f"  s_waitcnt lgkmcnt({7-k})")
    E(f"  v_pk_add_f32 v[{P}:{P+1}], v[{P}:{P+1}], v[{P+2*k}:{P+2*k+1}]")
E(f"""  v_add_f32 v{P}, v{P}, v{P+1}
  s_mov_b32 exec_hi, s18
  v_min_u32 v{P}, -2, v{P}""")
fine(1)
E(f"""  global_store_dword v{VI}, v{P}, s[12:13] {a.sy}
  s_mov_b32 exec_hi, -1
L_nopub:""")
E(f"""  s_cmp_eq_u32 s28, 0
  s_cselect_b32 s29, 0, 3
  s_cmp_eq_u32 s28, {a.os}
  s_cselect_b32 s29, 1, s29
  s_cmp_eq_u32 s28, {2*a.os}
  s_cselect_b32 s29, 2, s29
  s_cmp_eq_u32 s29, 3
  s_cbranch_scc1 L_notown
  s_lshl_b32 s18, s29, 15
  s_lshl_b32 s19, s14, 11
  s_add_u32 s18, s18, s19
  v_add_u32 v{VA}, s18, v3
  s_lshl_b32 s19, s14, 7
  v_add_u32 v{VB}, s19, v3
L_own:""")
Q = P + 16
for k in range(8):
    E(f"  global_load_dword v{Q+k}, v{VA}, s[12:13] offset:{256*k} {a.pl}")
E(f"""  s_waitcnt vmcnt(5)
  v_max3_u32 v{M}, v{Q}, v{Q+1}, v{Q+2}
  v_pk_add_f32 v[{Q}:{Q+1}], v[{Q}:{Q+1}], v[{Q}:{Q+1}] op_sel:[0,0] op_sel_hi:[1,1] neg_lo:[0,0]""".rsplit("\n",1)[0])
E(f"""  v_add_f32 v{P}, v{Q}, v{Q+1}
  v_add_f32 v{P}, v{P}, v{Q+2}
  s_waitcnt vmcnt(3)
  v_max3_u32 v{M}, v{M}, v{Q+3}, v{Q+4}
  v_add_f32 v{P}, v{P}, v{Q+3}
  v_add_f32 v{P}, v{P}, v{Q+4}
  s_waitcnt vmcnt(1)
  v_max3_u32 v{M}, v{M}, v{Q+5}, v{Q+6}
  v_add_f32 v{P}, v{P}, v{Q+5}
  v_add_f32 v{P}, v{P}, v{Q+6}
  s_waitcnt vmcnt(0)
  v_max_u32 v{M}, v{M}, v{Q+7}
  v_add_f32 v{P}, v{P}, v{Q+7}
  v_cmp_eq_u32 vcc, -1, v{M}
  v_mov_b32 v{P+1}, v{P}
  s_sub_u32 s24, s24, 1
  s_cbranch_scc1 L_own_ok
  s_cbranch_vccz L_own_ok""")
if a.sleep: E(f"  s_sleep {a.sleep}")
E(f"""  s_branch L_own
L_own_ok:""")
if a.fine: E("  s_cmp_lt_u32 s14, 2\n  s_cbranch_scc1 L_f1"); stamp(1); E("L_f1:")
E(f"""  v_permlane32_swap_b32 v{P}, v{P+1}
  s_mov_b32 exec_hi, 0
  v_add_f32 v{P}, v{P}, v{P+1}
  ds_write_b32 v{VB}, v{P} offset:{LB}
  s_mov_b32 exec_hi, -1
  s_movk_i32 s18, {LB}
  v_and_b32 v{VA}, 0x80, v3
  v_mul_u32_u24 v{VA}, 7, v{VA}
  v_add3_u32 v{VA}, v{VA}, v3, s18
  s_waitcnt lgkmcnt(0)
  s_barrier
  s_cmp_lg_u32 s14, 0
  s_cbranch_scc1 L_notown""")
for k in range(4):
    E(f"  ds_read2_b32 v[{P+2*k}:{P+2*k+1}], v{VA} offset0:{64*k} offset1:{64*k+32}".replace(f"v{VA} ", f"v{VA} "))
E(f"""  s_lshl_b32 s18, s29, 7
  s_add_u32 s18, s18, {FIN}
  v_add_u32 v{VB}, s18, v3""")
for k in range(1, 4):
    E(f"  s_waitcnt lgkmcnt({3-k})")
    E(f"  v_pk_add_f32 v[{P}:{P+1}], v[{P}:{P+1}], v[{P+2*k}:{P+2*k+1}]")
E(f"""  v_add_f32 v{P}, v{P}, v{P+1}
  v_mov_b32 v{P+1}, v{P}
  s_nop 1
  v_permlane32_swap_b32 v{P}, v{P+1}
  s_mov_b32 exec_hi, 0
  v_add_f32 v{P}, v{P}, v{P+1}
  v_min_u32 v{P}, -2, v{P}
  global_store_dword v{VB}, v{P}, s[12:13] {a.sy}
  s_mov_b32 exec_hi, -1""")
fine(2)
E("L_notown:")
for i in range(9):
    for d in range(3):
        E(f"  v_lshlrev_b32 v{U+6*i+2*d}, 16, v{D+4*i+d}")
        E(f"  v_and_b32 v{U+6*i+2*d+1}, s25, v{D+4*i+d}")
E(f"""  s_cmp_ge_u32 s14, 2
  s_cbranch_scc1 L_wait
  s_mul_i32 s22, s14, 192
  s_add_u32 s23, s22, {FIN-4}
  v_add_u32 v{VA}, s23, v3
  s_add_u32 s23, s22, {LS-4}
  v_add_u32 v{VB}, s23, v3
  s_lshl_b32 s18, s16, 16
  s_and_b32 s19, s16, 0xffff0000
  s_lshl_b32 s20, s17, 16
  s_mov_b32 s21, {f2u(1.0/147456.0)}
  s_lshr_b32 s23, 0x3ffff, s14
  s_cmp_eq_u32 s14, 0
  s_cselect_b32 exec_lo, -2, -1
  s_mov_b32 exec_hi, s23
  s_mov_b32 s30, {a.maxpoll}
L_poll:
  global_load_dword v{P}, v{VA}, s[12:13] {a.pl}
  s_waitcnt vmcnt(0)
  v_cmp_eq_u32 vcc, -1, v{P}
  s_sub_u32 s30, s30, 1
  s_cbranch_scc1 L_poll_ok
  s_cbranch_vccz L_poll_ok""")
if a.sleep2: E(f"  s_sleep {a.sleep2}")
E("  s_branch L_poll\nL_poll_ok:")
stamp(4)
if a.fine: E("  s_mov_b32 s27, s30")
emit_gate1(E, P, P+2)
E(f"""  s_mov_b32 exec_lo, -2
  s_mov_b32 exec_hi, 0x1ffff
  ds_write_b32 v{VB}, v{P}
  s_mov_b64 exec, -1""")
if a.prio: E("  s_setprio 0")
E(f"""  s_waitcnt lgkmcnt(0)
L_wait:
  v_and_b32 v3, 60, v3
  v_mul_u32_u24 v3, 6, v3
  s_barrier""")
stamp(5)
for j in range(3):
    E(f"  ds_read_b64 v[{S+2*j}:{S+2*j+1}], v3 offset:{LS+8*j}")
E("  s_waitcnt lgkmcnt(0)")
for i in range(9):
    for d in range(3):
        E(f"  v_pk_mul_f32 v[{U+6*i+2*d}:{U+6*i+2*d+1}], v[{U+6*i+2*d}:{U+6*i+2*d+1}], v[{S+2*d}:{S+2*d+1}]")
    for d in range(3):
        E(f"  v_cvt_pk_bf16_f32 v{D+4*i+d}, v{U+6*i+2*d}, v{U+6*i+2*d+1}")
    if a.thr >= 0 and i > a.thr: E(f"  s_waitcnt vmcnt({a.thr})")
    if a.pat == "wave":
        E(f"  global_store_dwordx3 v1, v[{D+4*i}:{D+4*i+2}], s[8:9] offset:{(i-4)*768} {a.st}")
    else:
        E(f"  global_store_dwordx3 v1, v[{D+4*i}:{D+4*i+2}], s[8:9] {a.st}")
        if i < 8: E(f"  s_add_u32 s8, s8, {STEP}\n  s_addc_u32 s9, s9, 0")
if a.stamp:
    stamp(6)
    E("  s_waitcnt vmcnt(0)")
    E("  s_barrier")
    stamp(7)
    emit_stamp_dump(E, a, cnt="s24")
E("L_end:\n  s_endpgm")
E(kd(KN, 128, 64))
open(a.o, "w").write("\n".join(o) + "\n")
print(build(a.o))
```

```python
import sys, argparse
from asmlib import *
from common import *
ap = argparse.ArgumentParser()
ap.add_argument("-o", default="v4.s")
ap.add_argument("--fw", type=int, default=11)
ap.add_argument("--ob", type=int, default=17)
ap.add_argument("--os", type=int, default=2)
ap.add_argument("--stamp", action="store_true")
ap.add_argument("--allw", action="store_true")
ap.add_argument("--fine", action="store_true")
ap.add_argument("--exf", default="")
ap.add_argument("--ld", default="nt")
ap.add_argument("--st", default="nt")
ap.add_argument("--sy", default="sc1")
ap.add_argument("--pl", default="sc1")
ap.add_argument("--pat", default="wave")
ap.add_argument("--thr", type=int, default=-1)
ap.add_argument("--s6", default="")
ap.add_argument("--xw", type=int, default=0)
ap.add_argument("--prio", type=int, default=3)
ap.add_argument("--sleep", type=int, default=0)
ap.add_argument("--sleep2", type=int, default=0)
ap.add_argument("--maxpoll", type=int, default=200000)
a = ap.parse_args()
if a.exf or a.allw: a.stamp = True
o = []; E = o.append
def stamp(k):
    if a.stamp: E(f"  s_memrealtime s[{32+2*k}:{33+2*k}]")
def fine(k):
    if a.fine: stamp(k)
NC = 16
LA, LB, LS = 0, 8192, 10240
FIN = 98304
NCS = 7
E(HEADER + "; @launch grid=(256,1,1) block=(1024,1,1) lds=10752")
E(f""".amdgcn_target "amdgcn-amd-amdhsa--gfx950"
.text
.globl {KN}
.p2align 8
.type {KN},@function
{KN}:""")
D = 4; U = 40; P = 94; SEL = P; ACC = P + 4; T = P + 8; S = P + 16
M = D + 3
VI, VA, VB = 120, 121, 122
if a.pat == "wave":
    ADDR = "  s_mul_i32 s3, s2, 110592\n  s_mul_i32 s15, s14, 6912\n  s_add_u32 s3, s3, 3072\n  s_add_u32 s3, s3, s15"
elif a.pat == "seq":
    ADDR = "  s_and_b32 s15, s14, 3\n  s_lshl_b32 s3, s2, 2\n  s_add_u32 s3, s3, s15\n  s_mul_i32 s3, s3, 768\n  s_lshr_b32 s15, s14, 2\n  s_mul_i32 s15, s15, 7077888\n  s_add_u32 s3, s3, s15"
    STEP = 786432
elif a.pat == "seq16":
    ADDR = "  s_lshl_b32 s3, s2, 4\n  s_add_u32 s3, s3, s14\n  s_mul_i32 s3, s3, 768"
    STEP = 3145728
elif a.pat == "wg":
    ADDR = "  s_mul_i32 s3, s2, 110592\n  s_and_b32 s15, s14, 3\n  s_mul_i32 s15, s15, 768\n  s_add_u32 s3, s3, s15\n  s_lshr_b32 s15, s14, 2\n  s_mul_i32 s15, s15, 27648\n  s_add_u32 s3, s3, s15"
    STEP = 3072
stamp(0)
E(f"""  s_cmp_ge_u32 s2, 256
  s_cbranch_scc1 L_end
  s_load_dwordx4 s[4:7], s[0:1], 0
  s_load_dwordx4 s[8:11], s[0:1], 16
  s_load_dwordx2 s[12:13], s[0:1], 32
  v_lshrrev_b32 v2, 6, v0
  v_and_b32 v3, 63, v0
  v_readfirstlane_b32 s14, v2
  v_mul_u32_u24 v0, 12, v3
{ADDR}
  v_add_u32 v1, s3, v0
  s_cmp_lt_u32 s2, {NC}
  s_cselect_b32 s15, 1, 0
  s_cmp_eq_u32 s14, 0
  s_cselect_b32 s15, s15, 0
  s_cmp_eq_u32 s15, 0
  s_waitcnt lgkmcnt(0)
  s_cbranch_scc1 L_noclear
  s_mul_i32 s18, s2, {NCS*1024}
  s_add_u32 s18, s18, 4096
  v_lshl_add_u32 v{T}, v3, 4, s18
  v_mov_b32 v{P}, -1
  v_mov_b32 v{P+1}, -1
  v_mov_b32 v{P+2}, -1
  v_mov_b32 v{P+3}, -1""")
for k in range(NCS):
    E(f"  global_store_dwordx4 v{T}, v[{P}:{P+3}], s[12:13] offset:{1024*k-4096} {a.sy}")
E("L_noclear:")
for i in range(9):
    if a.pat == "wave":
        E(f"  global_load_dwordx3 v[{D+4*i}:{D+4*i+2}], v1, s[4:5] offset:{(i-4)*768} {a.ld}")
    else:
        E(f"  global_load_dwordx3 v[{D+4*i}:{D+4*i+2}], v1, s[4:5] {a.ld}")
        if i < 8: E(f"  s_add_u32 s4, s4, {STEP}\n  s_addc_u32 s5, s5, 0")
if not a.fine: stamp(1)
E(f"""  s_load_dwordx2 s[16:17], s[6:7], 0
  s_cmp_eq_u32 s15, 0
  s_cbranch_scc1 L_noflag
  s_waitcnt vmcnt(9)
  s_lshl_b32 s18, s2, 2
  v_mov_b32 v{T}, 1
  v_mov_b32 v{T+1}, s18
  s_mov_b64 exec, 1
  global_store_dword v{T+1}, v{T}, s[10:11] {a.sy}
  s_mov_b64 exec, -1
  s_waitcnt vmcnt(0)
L_noflag:""")
for i in range(9):
    E(f"  v_mov_b32 v{D+4*i+3}, 0")
E(f"""  v_and_b32 v{T}, 15, v3
  v_lshrrev_b32 v{T+1}, 2, v{T}
  v_sub_u32 v{T+1}, v{T}, v{T+1}
  v_and_b32 v{T+2}, 3, v{T}
  v_cmp_ne_u32 s[18:19], 3, v{T+2}
  v_cmp_gt_u32 s[20:21], 8, v{T}
  v_and_b32 v{T+2}, 1, v{T+1}
  v_lshlrev_b32 v{T+2}, 4, v{T+2}
  s_and_b64 s[18:19], s[18:19], s[20:21]
  v_mov_b32 v{T+3}, 0x3f80
  v_lshlrev_b32 v{T+2}, v{T+2}, v{T+3}
  v_lshrrev_b32 v{T+1}, 1, v{T+1}
  v_cndmask_b32 v{T+2}, 0, v{T+2}, s[18:19]
  v_cmp_eq_u32 s[18:19], 0, v{T+1}
  v_cmp_eq_u32 s[20:21], 1, v{T+1}
  v_cmp_eq_u32 s[22:23], 2, v{T+1}
  v_mov_b32 v{SEL+3}, 0
  v_cndmask_b32 v{SEL}, 0, v{T+2}, s[18:19]
  v_cndmask_b32 v{SEL+1}, 0, v{T+2}, s[20:21]
  v_cndmask_b32 v{SEL+2}, 0, v{T+2}, s[22:23]
  v_lshrrev_b32 v{T+1}, 4, v3
  v_lshlrev_b32 v{T+1}, 4, v{T+1}
  v_lshl_add_u32 v{T+1}, v{T}, 5, v{T+1}
  s_lshl_b32 s26, s14, 9
  v_add_u32 v{T+1}, s26, v{T+1}
  s_mov_b32 s25, 0xffff0000
  v_lshlrev_b32 v3, 2, v3
  s_mov_b32 s24, {a.maxpoll}
  s_mov_b32 s27, {a.maxpoll}""")
E(f"""  s_lshl_b32 s18, s14, 8
  v_add_u32 v{VI}, s18, v3
  v_mul_u32_u24 v2, 171, v{VI}
  v_lshrrev_b32 v2, 11, v2
  v_lshl_add_u32 v2, v2, 2, v{VI}
  v_and_b32 v{VA}, 0x7c, v{VI}
  v_lshrrev_b32 v{VI}, 7, v{VI}
  v_lshlrev_b32 v{VI}, 15, v{VI}
  s_lshl_b32 s18, s2, 7
  v_add3_u32 v{VI}, v{VI}, v{VA}, s18""")
for i in range(9):
    E(f"  s_waitcnt vmcnt({8-i})")
    c = "0" if i == 0 else f"v[{ACC}:{ACC+3}]"
    E(f"  v_mfma_f32_16x16x32_bf16 v[{ACC}:{ACC+3}], v[{SEL}:{SEL+3}], v[{D+4*i}:{D+4*i+3}], {c}")
if not a.fine: stamp(2)
E(f"""  s_nop 6
  s_mov_b32 exec_hi, 0
  ds_write_b128 v{T+1}, v[{ACC}:{ACC+3}] offset:{LA}
  s_mov_b32 exec_hi, -1
  s_cmp_lg_u32 s14, {a.fw}
  s_cbranch_scc1 L_bar2
  s_mov_b64 exec, {(1<<NC)-1}
L_flagpoll:
  global_load_dword v{T+2}, v3, s[10:11] {a.pl}
  s_waitcnt vmcnt(0)
  v_cmp_ne_u32 vcc, 0, v{T+2}
  s_sub_u32 s27, s27, 1
  s_cbranch_scc1 L_flagok
  s_cmp_eq_u64 vcc, exec
  s_cbranch_scc0 L_flagpoll
L_flagok:
  s_mov_b64 exec, -1
L_bar2:
  s_sub_u32 s28, s2, {a.ob}
  s_waitcnt lgkmcnt(0)
  s_barrier""")
stamp(3)
E("  s_cmp_ge_u32 s14, 2\n  s_cbranch_scc1 L_nopub")
if a.prio: E(f"  s_setprio {a.prio}")
for k in range(8):
    E(f"  ds_read2st64_b32 v[{P+2*k}:{P+2*k+1}], v2 offset0:{4*k} offset1:{4*k+2}")
E("  s_cmp_eq_u32 s14, 0\n  s_cselect_b32 s18, -1, 0")
for k in range(1, 8):
    E(f"  s_waitcnt lgkmcnt({7-k})")
    E(f"  v_pk_add_f32 v[{P}:{P+1}], v[{P}:{P+1}], v[{P+2*k}:{P+2*k+1}]")
E(f"""  v_add_f32 v{P}, v{P}, v{P+1}
  s_mov_b32 exec_hi, s18
  v_min_u32 v{P}, -2, v{P}""")
fine(1)
E(f"""  global_store_dword v{VI}, v{P}, s[12:13] {a.sy}
  s_mov_b32 exec_hi, -1
L_nopub:""")
E(f"""  s_cmp_eq_u32 s28, 0
  s_cselect_b32 s29, 0, 3
  s_cmp_eq_u32 s28, {a.os}
  s_cselect_b32 s29, 1, s29
  s_cmp_eq_u32 s28, {2*a.os}
  s_cselect_b32 s29, 2, s29
  s_cmp_eq_u32 s29, 3
  s_cbranch_scc1 L_notown
  s_lshl_b32 s18, s29, 15
  s_lshl_b32 s19, s14, 11
  s_add_u32 s18, s18, s19
  v_add_u32 v{VA}, s18, v3
  s_lshl_b32 s19, s14, 7
  v_add_u32 v{VB}, s19, v3
L_own:""")
Q = P + 16
for k in range(8):
    E(f"  global_load_dword v{Q+k}, v{VA}, s[12:13] offset:{256*k} {a.pl}")
E(f"""  s_waitcnt vmcnt(5)
  v_max3_u32 v{M}, v{Q}, v{Q+1}, v{Q+2}
  v_pk_add_f32 v[{Q}:{Q+1}], v[{Q}:{Q+1}], v[{Q}:{Q+1}] op_sel:[0,0] op_sel_hi:[1,1] neg_lo:[0,0]""".rsplit("\n",1)[0])
E(f"""  v_add_f32 v{P}, v{Q}, v{Q+1}
  v_add_f32 v{P}, v{P}, v{Q+2}
  s_waitcnt vmcnt(3)
  v_max3_u32 v{M}, v{M}, v{Q+3}, v{Q+4}
  v_add_f32 v{P}, v{P}, v{Q+3}
  v_add_f32 v{P}, v{P}, v{Q+4}
  s_waitcnt vmcnt(1)
  v_max3_u32 v{M}, v{M}, v{Q+5}, v{Q+6}
  v_add_f32 v{P}, v{P}, v{Q+5}
  v_add_f32 v{P}, v{P}, v{Q+6}
  s_waitcnt vmcnt(0)
  v_max_u32 v{M}, v{M}, v{Q+7}
  v_add_f32 v{P}, v{P}, v{Q+7}
  v_cmp_eq_u32 vcc, -1, v{M}
  v_mov_b32 v{P+1}, v{P}
  s_sub_u32 s24, s24, 1
  s_cbranch_scc1 L_own_ok
  s_cbranch_vccz L_own_ok""")
if a.sleep: E(f"  s_sleep {a.sleep}")
E(f"""  s_branch L_own
L_own_ok:""")
if a.fine: E("  s_cmp_lt_u32 s14, 2\n  s_cbranch_scc1 L_f1"); stamp(1); E("L_f1:")
E(f"""  v_permlane32_swap_b32 v{P}, v{P+1}
  s_mov_b32 exec_hi, 0
  v_add_f32 v{P}, v{P}, v{P+1}
  ds_write_b32 v{VB}, v{P} offset:{LB}
  s_mov_b32 exec_hi, -1
  s_movk_i32 s18, {LB}
  v_and_b32 v{VA}, 0x80, v3
  v_mul_u32_u24 v{VA}, 7, v{VA}
  v_add3_u32 v{VA}, v{VA}, v3, s18
  s_waitcnt lgkmcnt(0)
  s_barrier
  s_cmp_lg_u32 s14, 0
  s_cbranch_scc1 L_notown""")
for k in range(4):
    E(f"  ds_read2_b32 v[{P+2*k}:{P+2*k+1}], v{VA} offset0:{64*k} offset1:{64*k+32}".replace(f"v{VA} ", f"v{VA} "))
E(f"""  s_lshl_b32 s18, s29, 7
  s_add_u32 s18, s18, {FIN}
  v_add_u32 v{VB}, s18, v3""")
for k in range(1, 4):
    E(f"  s_waitcnt lgkmcnt({3-k})")
    E(f"  v_pk_add_f32 v[{P}:{P+1}], v[{P}:{P+1}], v[{P+2*k}:{P+2*k+1}]")
E(f"""  v_add_f32 v{P}, v{P}, v{P+1}
  v_mov_b32 v{P+1}, v{P}
  s_nop 1
  v_permlane32_swap_b32 v{P}, v{P+1}
  s_mov_b32 exec_hi, 0
  v_add_f32 v{P}, v{P}, v{P+1}
  v_min_u32 v{P}, -2, v{P}
  global_store_dword v{VB}, v{P}, s[12:13] {a.sy}
  s_mov_b32 exec_hi, -1""")
fine(2)
E("L_notown:")
for i in range(9):
    for d in range(3):
        E(f"  v_lshlrev_b32 v{U+6*i+2*d}, 16, v{D+4*i+d}")
        E(f"  v_and_b32 v{U+6*i+2*d+1}, s25, v{D+4*i+d}")
E(f"""  s_cmp_ge_u32 s14, 2
  s_cbranch_scc1 L_wait
  s_mul_i32 s22, s14, 192
  s_add_u32 s23, s22, {FIN-4}
  v_add_u32 v{VA}, s23, v3
  s_add_u32 s23, s22, {LS-4}
  v_add_u32 v{VB}, s23, v3
  s_lshl_b32 s18, s16, 16
  s_and_b32 s19, s16, 0xffff0000
  s_lshl_b32 s20, s17, 16
  s_mov_b32 s21, {f2u(1.0/147456.0)}
  s_lshr_b32 s23, 0x3ffff, s14
  s_cmp_eq_u32 s14, 0
  s_cselect_b32 exec_lo, -2, -1
  s_mov_b32 exec_hi, s23
  s_mov_b32 s30, {a.maxpoll}
L_poll:
  global_load_dword v{P}, v{VA}, s[12:13] {a.pl}
  s_waitcnt vmcnt(0)
  v_cmp_eq_u32 vcc, -1, v{P}
  s_sub_u32 s30, s30, 1
  s_cbranch_scc1 L_poll_ok
  s_cbranch_vccz L_poll_ok""")
if a.sleep2: E(f"  s_sleep {a.sleep2}")
E("  s_branch L_poll\nL_poll_ok:")
stamp(4)
if a.fine: E("  s_mov_b32 s27, s30")
emit_gate1(E, P, P+2)
E(f"""  s_mov_b32 exec_lo, -2
  s_mov_b32 exec_hi, 0x1ffff
  ds_write_b32 v{VB}, v{P}
  s_mov_b64 exec, -1""")
if a.prio: E("  s_setprio 0")
E(f"""  s_waitcnt lgkmcnt(0)
L_wait:
  v_and_b32 v3, 60, v3
  v_mul_u32_u24 v3, 6, v3
  s_barrier""")
stamp(5)
for j in range(3):
    E(f"  ds_read_b64 v[{S+2*j}:{S+2*j+1}], v3 offset:{LS+8*j}")
E("  s_waitcnt lgkmcnt(0)")
for i in range(9):
    for d in range(3):
        E(f"  v_pk_mul_f32 v[{U+6*i+2*d}:{U+6*i+2*d+1}], v[{U+6*i+2*d}:{U+6*i+2*d+1}], v[{S+2*d}:{S+2*d+1}]")
    for d in range(3):
        E(f"  v_cvt_pk_bf16_f32 v{D+4*i+d}, v{U+6*i+2*d}, v{U+6*i+2*d+1}")
    if a.thr >= 0 and i > a.thr: E(f"  s_waitcnt vmcnt({a.thr})")
    if a.pat == "wave":
        E(f"  global_store_dwordx3 v1, v[{D+4*i}:{D+4*i+2}], s[8:9] offset:{(i-4)*768} {a.st}")
    else:
        E(f"  global_store_dwordx3 v1, v[{D+4*i}:{D+4*i+2}], s[8:9] {a.st}")
        if i < 8: E(f"  s_add_u32 s8, s8, {STEP}\n  s_addc_u32 s9, s9, 0")
    if a.s6 == "first" and i == 0:
        E("  s_waitcnt vmcnt(0)"); stamp(6)
if a.stamp:
    if a.s6 == "": stamp(6)
    E("  s_waitcnt vmcnt(0)")
    if a.s6 == "own": stamp(6)
    E("  s_barrier")
    stamp(7)
    emit_stamp_dump(E, a, cnt="s24")
E("L_end:\n  s_endpgm")
E(kd(KN, 128, 64))
open(a.o, "w").write("\n".join(o) + "\n")
print(build(a.o))
```

```python
import sys, argparse
from asmlib import *
from common import *
ap = argparse.ArgumentParser()
ap.add_argument("-o", default="v4.s")
ap.add_argument("--fw", type=int, default=11)
ap.add_argument("--ob", type=int, default=17)
ap.add_argument("--os", type=int, default=2)
ap.add_argument("--stamp", action="store_true")
ap.add_argument("--allw", action="store_true")
ap.add_argument("--fine", action="store_true")
ap.add_argument("--exf", default="")
ap.add_argument("--ld", default="nt")
ap.add_argument("--st", default="nt")
ap.add_argument("--sy", default="sc1")
ap.add_argument("--pl", default="sc1")
ap.add_argument("--pat", default="wave")
ap.add_argument("--thr", type=int, default=-1)
ap.add_argument("--s6", default="")
ap.add_argument("--xw", type=int, default=0)
ap.add_argument("--wb0", type=int, default=0)
ap.add_argument("--wbw", type=int, default=1)
ap.add_argument("--wbs", type=int, default=-1)
ap.add_argument("--prio", type=int, default=3)
ap.add_argument("--sleep", type=int, default=0)
ap.add_argument("--sleep2", type=int, default=0)
ap.add_argument("--maxpoll", type=int, default=200000)
a = ap.parse_args()
if a.exf or a.allw: a.stamp = True
o = []; E = o.append
def stamp(k):
    if a.stamp: E(f"  s_memrealtime s[{32+2*k}:{33+2*k}]")
def fine(k):
    if a.fine: stamp(k)
NC = 16
LA, LB, LS = 0, 8192, 10240
FIN = 98304
NCS = 7
E(HEADER + "; @launch grid=(256,1,1) block=(1024,1,1) lds=10752")
E(f""".amdgcn_target "amdgcn-amd-amdhsa--gfx950"
.text
.globl {KN}
.p2align 8
.type {KN},@function
{KN}:""")
D = 4; U = 40; P = 94; SEL = P; ACC = P + 4; T = P + 8; S = P + 16
M = D + 3
VI, VA, VB = 120, 121, 122
if a.pat == "wave":
    ADDR = "  s_mul_i32 s3, s2, 110592\n  s_mul_i32 s15, s14, 6912\n  s_add_u32 s3, s3, 3072\n  s_add_u32 s3, s3, s15"
elif a.pat == "seq":
    ADDR = "  s_and_b32 s15, s14, 3\n  s_lshl_b32 s3, s2, 2\n  s_add_u32 s3, s3, s15\n  s_mul_i32 s3, s3, 768\n  s_lshr_b32 s15, s14, 2\n  s_mul_i32 s15, s15, 7077888\n  s_add_u32 s3, s3, s15"
    STEP = 786432
elif a.pat == "seq16":
    ADDR = "  s_lshl_b32 s3, s2, 4\n  s_add_u32 s3, s3, s14\n  s_mul_i32 s3, s3, 768"
    STEP = 3145728
elif a.pat == "wg":
    ADDR = "  s_mul_i32 s3, s2, 110592\n  s_and_b32 s15, s14, 3\n  s_mul_i32 s15, s15, 768\n  s_add_u32 s3, s3, s15\n  s_lshr_b32 s15, s14, 2\n  s_mul_i32 s15, s15, 27648\n  s_add_u32 s3, s3, s15"
    STEP = 3072
stamp(0)
E(f"""  s_cmp_ge_u32 s2, 256
  s_cbranch_scc1 L_end
  s_load_dwordx4 s[4:7], s[0:1], 0
  s_load_dwordx4 s[8:11], s[0:1], 16
  s_load_dwordx2 s[12:13], s[0:1], 32
  v_lshrrev_b32 v2, 6, v0
  v_and_b32 v3, 63, v0
  v_readfirstlane_b32 s14, v2
  v_mul_u32_u24 v0, 12, v3
{ADDR}
  v_add_u32 v1, s3, v0
  s_cmp_lt_u32 s2, {NC}
  s_cselect_b32 s15, 1, 0
  s_cmp_eq_u32 s14, 0
  s_cselect_b32 s15, s15, 0
  s_cmp_eq_u32 s15, 0
  s_waitcnt lgkmcnt(0)
  s_cbranch_scc1 L_noclear
  s_mul_i32 s18, s2, {NCS*1024}
  s_add_u32 s18, s18, 4096
  v_lshl_add_u32 v{T}, v3, 4, s18
  v_mov_b32 v{P}, -1
  v_mov_b32 v{P+1}, -1
  v_mov_b32 v{P+2}, -1
  v_mov_b32 v{P+3}, -1""")
for k in range(NCS):
    E(f"  global_store_dwordx4 v{T}, v[{P}:{P+3}], s[12:13] offset:{1024*k-4096} {a.sy}")
E("L_noclear:")
if a.wb0:
    E(f"  s_cmp_ge_u32 s2, {a.wb0}\n  s_cbranch_scc1 L_nowb\n  s_cmp_lg_u32 s14, {a.wbw}\n  s_cbranch_scc1 L_nowb\n  buffer_wbl2 sc1\n  s_waitcnt vmcnt(0)\nL_nowb:")
    if a.wbs >= 0: stamp(a.wbs)
for i in range(9):
    if a.pat == "wave":
        E(f"  global_load_dwordx3 v[{D+4*i}:{D+4*i+2}], v1, s[4:5] offset:{(i-4)*768} {a.ld}")
    else:
        E(f"  global_load_dwordx3 v[{D+4*i}:{D+4*i+2}], v1, s[4:5] {a.ld}")
        if i < 8: E(f"  s_add_u32 s4, s4, {STEP}\n  s_addc_u32 s5, s5, 0")
if not a.fine: stamp(1)
E(f"""  s_load_dwordx2 s[16:17], s[6:7], 0
  s_cmp_eq_u32 s15, 0
  s_cbranch_scc1 L_noflag
  s_waitcnt vmcnt(9)
  s_lshl_b32 s18, s2, 2
  v_mov_b32 v{T}, 1
  v_mov_b32 v{T+1}, s18
  s_mov_b64 exec, 1
  global_store_dword v{T+1}, v{T}, s[10:11] {a.sy}
  s_mov_b64 exec, -1
  s_waitcnt vmcnt(0)
L_noflag:""")
for i in range(9):
    E(f"  v_mov_b32 v{D+4*i+3}, 0")
E(f"""  v_and_b32 v{T}, 15, v3
  v_lshrrev_b32 v{T+1}, 2, v{T}
  v_sub_u32 v{T+1}, v{T}, v{T+1}
  v_and_b32 v{T+2}, 3, v{T}
  v_cmp_ne_u32 s[18:19], 3, v{T+2}
  v_cmp_gt_u32 s[20:21], 8, v{T}
  v_and_b32 v{T+2}, 1, v{T+1}
  v_lshlrev_b32 v{T+2}, 4, v{T+2}
  s_and_b64 s[18:19], s[18:19], s[20:21]
  v_mov_b32 v{T+3}, 0x3f80
  v_lshlrev_b32 v{T+2}, v{T+2}, v{T+3}
  v_lshrrev_b32 v{T+1}, 1, v{T+1}
  v_cndmask_b32 v{T+2}, 0, v{T+2}, s[18:19]
  v_cmp_eq_u32 s[18:19], 0, v{T+1}
  v_cmp_eq_u32 s[20:21], 1, v{T+1}
  v_cmp_eq_u32 s[22:23], 2, v{T+1}
  v_mov_b32 v{SEL+3}, 0
  v_cndmask_b32 v{SEL}, 0, v{T+2}, s[18:19]
  v_cndmask_b32 v{SEL+1}, 0, v{T+2}, s[20:21]
  v_cndmask_b32 v{SEL+2}, 0, v{T+2}, s[22:23]
  v_lshrrev_b32 v{T+1}, 4, v3
  v_lshlrev_b32 v{T+1}, 4, v{T+1}
  v_lshl_add_u32 v{T+1}, v{T}, 5, v{T+1}
  s_lshl_b32 s26, s14, 9
  v_add_u32 v{T+1}, s26, v{T+1}
  s_mov_b32 s25, 0xffff0000
  v_lshlrev_b32 v3, 2, v3
  s_mov_b32 s24, {a.maxpoll}
  s_mov_b32 s27, {a.maxpoll}""")
E(f"""  s_lshl_b32 s18, s14, 8
  v_add_u32 v{VI}, s18, v3
  v_mul_u32_u24 v2, 171, v{VI}
  v_lshrrev_b32 v2, 11, v2
  v_lshl_add_u32 v2, v2, 2, v{VI}
  v_and_b32 v{VA}, 0x7c, v{VI}
  v_lshrrev_b32 v{VI}, 7, v{VI}
  v_lshlrev_b32 v{VI}, 15, v{VI}
  s_lshl_b32 s18, s2, 7
  v_add3_u32 v{VI}, v{VI}, v{VA}, s18""")
for i in range(9):
    E(f"  s_waitcnt vmcnt({8-i})")
    c = "0" if i == 0 else f"v[{ACC}:{ACC+3}]"
    E(f"  v_mfma_f32_16x16x32_bf16 v[{ACC}:{ACC+3}], v[{SEL}:{SEL+3}], v[{D+4*i}:{D+4*i+3}], {c}")
if not a.fine: stamp(2)
E(f"""  s_nop 6
  s_mov_b32 exec_hi, 0
  ds_write_b128 v{T+1}, v[{ACC}:{ACC+3}] offset:{LA}
  s_mov_b32 exec_hi, -1
  s_cmp_lg_u32 s14, {a.fw}
  s_cbranch_scc1 L_bar2
  s_mov_b64 exec, {(1<<NC)-1}
L_flagpoll:
  global_load_dword v{T+2}, v3, s[10:11] {a.pl}
  s_waitcnt vmcnt(0)
  v_cmp_ne_u32 vcc, 0, v{T+2}
  s_sub_u32 s27, s27, 1
  s_cbranch_scc1 L_flagok
  s_cmp_eq_u64 vcc, exec
  s_cbranch_scc0 L_flagpoll
L_flagok:
  s_mov_b64 exec, -1
L_bar2:
  s_sub_u32 s28, s2, {a.ob}
  s_waitcnt lgkmcnt(0)
  s_barrier""")
stamp(3)
E("  s_cmp_ge_u32 s14, 2\n  s_cbranch_scc1 L_nopub")
if a.prio: E(f"  s_setprio {a.prio}")
for k in range(8):
    E(f"  ds_read2st64_b32 v[{P+2*k}:{P+2*k+1}], v2 offset0:{4*k} offset1:{4*k+2}")
E("  s_cmp_eq_u32 s14, 0\n  s_cselect_b32 s18, -1, 0")
for k in range(1, 8):
    E(f"  s_waitcnt lgkmcnt({7-k})")
    E(f"  v_pk_add_f32 v[{P}:{P+1}], v[{P}:{P+1}], v[{P+2*k}:{P+2*k+1}]")
E(f"""  v_add_f32 v{P}, v{P}, v{P+1}
  s_mov_b32 exec_hi, s18
  v_min_u32 v{P}, -2, v{P}""")
fine(1)
E(f"""  global_store_dword v{VI}, v{P}, s[12:13] {a.sy}
  s_mov_b32 exec_hi, -1
L_nopub:""")
E(f"""  s_cmp_eq_u32 s28, 0
  s_cselect_b32 s29, 0, 3
  s_cmp_eq_u32 s28, {a.os}
  s_cselect_b32 s29, 1, s29
  s_cmp_eq_u32 s28, {2*a.os}
  s_cselect_b32 s29, 2, s29
  s_cmp_eq_u32 s29, 3
  s_cbranch_scc1 L_notown
  s_lshl_b32 s18, s29, 15
  s_lshl_b32 s19, s14, 11
  s_add_u32 s18, s18, s19
  v_add_u32 v{VA}, s18, v3
  s_lshl_b32 s19, s14, 7
  v_add_u32 v{VB}, s19, v3
L_own:""")
Q = P + 16
for k in range(8):
    E(f"  global_load_dword v{Q+k}, v{VA}, s[12:13] offset:{256*k} {a.pl}")
E(f"""  s_waitcnt vmcnt(5)
  v_max3_u32 v{M}, v{Q}, v{Q+1}, v{Q+2}
  v_pk_add_f32 v[{Q}:{Q+1}], v[{Q}:{Q+1}], v[{Q}:{Q+1}] op_sel:[0,0] op_sel_hi:[1,1] neg_lo:[0,0]""".rsplit("\n",1)[0])
E(f"""  v_add_f32 v{P}, v{Q}, v{Q+1}
  v_add_f32 v{P}, v{P}, v{Q+2}
  s_waitcnt vmcnt(3)
  v_max3_u32 v{M}, v{M}, v{Q+3}, v{Q+4}
  v_add_f32 v{P}, v{P}, v{Q+3}
  v_add_f32 v{P}, v{P}, v{Q+4}
  s_waitcnt vmcnt(1)
  v_max3_u32 v{M}, v{M}, v{Q+5}, v{Q+6}
  v_add_f32 v{P}, v{P}, v{Q+5}
  v_add_f32 v{P}, v{P}, v{Q+6}
  s_waitcnt vmcnt(0)
  v_max_u32 v{M}, v{M}, v{Q+7}
  v_add_f32 v{P}, v{P}, v{Q+7}
  v_cmp_eq_u32 vcc, -1, v{M}
  v_mov_b32 v{P+1}, v{P}
  s_sub_u32 s24, s24, 1
  s_cbranch_scc1 L_own_ok
  s_cbranch_vccz L_own_ok""")
if a.sleep: E(f"  s_sleep {a.sleep}")
E(f"""  s_branch L_own
L_own_ok:""")
if a.fine: E("  s_cmp_lt_u32 s14, 2\n  s_cbranch_scc1 L_f1"); stamp(1); E("L_f1:")
E(f"""  v_permlane32_swap_b32 v{P}, v{P+1}
  s_mov_b32 exec_hi, 0
  v_add_f32 v{P}, v{P}, v{P+1}
  ds_write_b32 v{VB}, v{P} offset:{LB}
  s_mov_b32 exec_hi, -1
  s_movk_i32 s18, {LB}
  v_and_b32 v{VA}, 0x80, v3
  v_mul_u32_u24 v{VA}, 7, v{VA}
  v_add3_u32 v{VA}, v{VA}, v3, s18
  s_waitcnt lgkmcnt(0)
  s_barrier
  s_cmp_lg_u32 s14, 0
  s_cbranch_scc1 L_notown""")
for k in range(4):
    E(f"  ds_read2_b32 v[{P+2*k}:{P+2*k+1}], v{VA} offset0:{64*k} offset1:{64*k+32}".replace(f"v{VA} ", f"v{VA} "))
E(f"""  s_lshl_b32 s18, s29, 7
  s_add_u32 s18, s18, {FIN}
  v_add_u32 v{VB}, s18, v3""")
for k in range(1, 4):
    E(f"  s_waitcnt lgkmcnt({3-k})")
    E(f"  v_pk_add_f32 v[{P}:{P+1}], v[{P}:{P+1}], v[{P+2*k}:{P+2*k+1}]")
E(f"""  v_add_f32 v{P}, v{P}, v{P+1}
  v_mov_b32 v{P+1}, v{P}
  s_nop 1
  v_permlane32_swap_b32 v{P}, v{P+1}
  s_mov_b32 exec_hi, 0
  v_add_f32 v{P}, v{P}, v{P+1}
  v_min_u32 v{P}, -2, v{P}
  global_store_dword v{VB}, v{P}, s[12:13] {a.sy}
  s_mov_b32 exec_hi, -1""")
fine(2)
E("L_notown:")
for i in range(9):
    for d in range(3):
        E(f"  v_lshlrev_b32 v{U+6*i+2*d}, 16, v{D+4*i+d}")
        E(f"  v_and_b32 v{U+6*i+2*d+1}, s25, v{D+4*i+d}")
E(f"""  s_cmp_ge_u32 s14, 2
  s_cbranch_scc1 L_wait
  s_mul_i32 s22, s14, 192
  s_add_u32 s23, s22, {FIN-4}
  v_add_u32 v{VA}, s23, v3
  s_add_u32 s23, s22, {LS-4}
  v_add_u32 v{VB}, s23, v3
  s_lshl_b32 s18, s16, 16
  s_and_b32 s19, s16, 0xffff0000
  s_lshl_b32 s20, s17, 16
  s_mov_b32 s21, {f2u(1.0/147456.0)}
  s_lshr_b32 s23, 0x3ffff, s14
  s_cmp_eq_u32 s14, 0
  s_cselect_b32 exec_lo, -2, -1
  s_mov_b32 exec_hi, s23
  s_mov_b32 s30, {a.maxpoll}
L_poll:
  global_load_dword v{P}, v{VA}, s[12:13] {a.pl}
  s_waitcnt vmcnt(0)
  v_cmp_eq_u32 vcc, -1, v{P}
  s_sub_u32 s30, s30, 1
  s_cbranch_scc1 L_poll_ok
  s_cbranch_vccz L_poll_ok""")
if a.sleep2: E(f"  s_sleep {a.sleep2}")
E("  s_branch L_poll\nL_poll_ok:")
stamp(4)
if a.fine: E("  s_mov_b32 s27, s30")
emit_gate1(E, P, P+2)
E(f"""  s_mov_b32 exec_lo, -2
  s_mov_b32 exec_hi, 0x1ffff
  ds_write_b32 v{VB}, v{P}
  s_mov_b64 exec, -1""")
if a.prio: E("  s_setprio 0")
E(f"""  s_waitcnt lgkmcnt(0)
L_wait:
  v_and_b32 v3, 60, v3
  v_mul_u32_u24 v3, 6, v3
  s_barrier""")
stamp(5)
for j in range(3):
    E(f"  ds_read_b64 v[{S+2*j}:{S+2*j+1}], v3 offset:{LS+8*j}")
E("  s_waitcnt lgkmcnt(0)")
for i in range(9):
    for d in range(3):
        E(f"  v_pk_mul_f32 v[{U+6*i+2*d}:{U+6*i+2*d+1}], v[{U+6*i+2*d}:{U+6*i+2*d+1}], v[{S+2*d}:{S+2*d+1}]")
    for d in range(3):
        E(f"  v_cvt_pk_bf16_f32 v{D+4*i+d}, v{U+6*i+2*d}, v{U+6*i+2*d+1}")
    if a.thr >= 0 and i > a.thr: E(f"  s_waitcnt vmcnt({a.thr})")
    if a.pat == "wave":
        E(f"  global_store_dwordx3 v1, v[{D+4*i}:{D+4*i+2}], s[8:9] offset:{(i-4)*768} {a.st}")
    else:
        E(f"  global_store_dwordx3 v1, v[{D+4*i}:{D+4*i+2}], s[8:9] {a.st}")
        if i < 8: E(f"  s_add_u32 s8, s8, {STEP}\n  s_addc_u32 s9, s9, 0")
    if a.s6 == "first" and i == 0:
        E("  s_waitcnt vmcnt(0)"); stamp(6)
if a.stamp:
    if a.s6 == "": stamp(6)
    E("  s_waitcnt vmcnt(0)")
    if a.s6 == "own": stamp(6)
    E("  s_barrier")
    stamp(7)
    emit_stamp_dump(E, a, cnt="s24")
E("L_end:\n  s_endpgm")
E(kd(KN, 128, 64))
open(a.o, "w").write("\n".join(o) + "\n")
print(build(a.o))
```

```python
import sys, argparse
from asmlib import *
from common import *
ap = argparse.ArgumentParser()
ap.add_argument("-o", default="v4.s")
ap.add_argument("--fw", type=int, default=11)
ap.add_argument("--ob", type=int, default=17)
ap.add_argument("--os", type=int, default=2)
ap.add_argument("--stamp", action="store_true")
ap.add_argument("--allw", action="store_true")
ap.add_argument("--fine", action="store_true")
ap.add_argument("--exf", default="")
ap.add_argument("--ld", default="nt")
ap.add_argument("--st", default="nt")
ap.add_argument("--sy", default="sc1")
ap.add_argument("--pl", default="sc1")
ap.add_argument("--pat", default="wave")
ap.add_argument("--thr", type=int, default=-1)
ap.add_argument("--s6", default="")
ap.add_argument("--xw", type=int, default=0)
ap.add_argument("--wb0", type=int, default=0)
ap.add_argument("--wbw", type=int, default=1)
ap.add_argument("--wbs", type=int, default=-1)
ap.add_argument("--delay", type=int, default=0)
ap.add_argument("--prio", type=int, default=3)
ap.add_argument("--sleep", type=int, default=0)
ap.add_argument("--sleep2", type=int, default=0)
ap.add_argument("--maxpoll", type=int, default=200000)
a = ap.parse_args()
if a.exf or a.allw: a.stamp = True
o = []; E = o.append
def stamp(k):
    if a.stamp: E(f"  s_memrealtime s[{32+2*k}:{33+2*k}]")
def fine(k):
    if a.fine: stamp(k)
NC = 16
LA, LB, LS = 0, 8192, 10240
FIN = 98304
NCS = 7
E(HEADER + "; @launch grid=(256,1,1) block=(1024,1,1) lds=10752")
E(f""".amdgcn_target "amdgcn-amd-amdhsa--gfx950"
.text
.globl {KN}
.p2align 8
.type {KN},@function
{KN}:""")
D = 4; U = 40; P = 94; SEL = P; ACC = P + 4; T = P + 8; S = P + 16
M = D + 3
VI, VA, VB = 120, 121, 122
if a.pat == "wave":
    ADDR = "  s_mul_i32 s3, s2, 110592\n  s_mul_i32 s15, s14, 6912\n  s_add_u32 s3, s3, 3072\n  s_add_u32 s3, s3, s15"
elif a.pat == "seq":
    ADDR = "  s_and_b32 s15, s14, 3\n  s_lshl_b32 s3, s2, 2\n  s_add_u32 s3, s3, s15\n  s_mul_i32 s3, s3, 768\n  s_lshr_b32 s15, s14, 2\n  s_mul_i32 s15, s15, 7077888\n  s_add_u32 s3, s3, s15"
    STEP = 786432
elif a.pat == "seq16":
    ADDR = "  s_lshl_b32 s3, s2, 4\n  s_add_u32 s3, s3, s14\n  s_mul_i32 s3, s3, 768"
    STEP = 3145728
elif a.pat == "wg":
    ADDR = "  s_mul_i32 s3, s2, 110592\n  s_and_b32 s15, s14, 3\n  s_mul_i32 s15, s15, 768\n  s_add_u32 s3, s3, s15\n  s_lshr_b32 s15, s14, 2\n  s_mul_i32 s15, s15, 27648\n  s_add_u32 s3, s3, s15"
    STEP = 3072
stamp(0)
E(f"""  s_cmp_ge_u32 s2, 256
  s_cbranch_scc1 L_end
  s_load_dwordx4 s[4:7], s[0:1], 0
  s_load_dwordx4 s[8:11], s[0:1], 16
  s_load_dwordx2 s[12:13], s[0:1], 32
  v_lshrrev_b32 v2, 6, v0
  v_and_b32 v3, 63, v0
  v_readfirstlane_b32 s14, v2
  v_mul_u32_u24 v0, 12, v3
{ADDR}
  v_add_u32 v1, s3, v0
  s_cmp_lt_u32 s2, {NC}
  s_cselect_b32 s15, 1, 0
  s_cmp_eq_u32 s14, 0
  s_cselect_b32 s15, s15, 0
  s_cmp_eq_u32 s15, 0
  s_waitcnt lgkmcnt(0)
  s_cbranch_scc1 L_noclear
  s_mul_i32 s18, s2, {NCS*1024}
  s_add_u32 s18, s18, 4096
  v_lshl_add_u32 v{T}, v3, 4, s18
  v_mov_b32 v{P}, -1
  v_mov_b32 v{P+1}, -1
  v_mov_b32 v{P+2}, -1
  v_mov_b32 v{P+3}, -1""")
for k in range(NCS):
    E(f"  global_store_dwordx4 v{T}, v[{P}:{P+3}], s[12:13] offset:{1024*k-4096} {a.sy}")
E("L_noclear:")
if a.wb0:
    E(f"  s_cmp_ge_u32 s2, {a.wb0}\n  s_cbranch_scc1 L_nowb\n  s_cmp_lg_u32 s14, {a.wbw}\n  s_cbranch_scc1 L_nowb\n  buffer_wbl2 sc1\n  s_waitcnt vmcnt(0)\nL_nowb:")
    if a.wbs >= 0: stamp(a.wbs)
for i in range(9):
    if a.pat == "wave":
        E(f"  global_load_dwordx3 v[{D+4*i}:{D+4*i+2}], v1, s[4:5] offset:{(i-4)*768} {a.ld}")
    else:
        E(f"  global_load_dwordx3 v[{D+4*i}:{D+4*i+2}], v1, s[4:5] {a.ld}")
        if i < 8: E(f"  s_add_u32 s4, s4, {STEP}\n  s_addc_u32 s5, s5, 0")
if not a.fine: stamp(1)
E(f"""  s_load_dwordx2 s[16:17], s[6:7], 0
  s_cmp_eq_u32 s15, 0
  s_cbranch_scc1 L_noflag
  s_waitcnt vmcnt(9)
  s_lshl_b32 s18, s2, 2
  v_mov_b32 v{T}, 1
  v_mov_b32 v{T+1}, s18
  s_mov_b64 exec, 1
  global_store_dword v{T+1}, v{T}, s[10:11] {a.sy}
  s_mov_b64 exec, -1
  s_waitcnt vmcnt(0)
L_noflag:""")
for i in range(9):
    E(f"  v_mov_b32 v{D+4*i+3}, 0")
E(f"""  v_and_b32 v{T}, 15, v3
  v_lshrrev_b32 v{T+1}, 2, v{T}
  v_sub_u32 v{T+1}, v{T}, v{T+1}
  v_and_b32 v{T+2}, 3, v{T}
  v_cmp_ne_u32 s[18:19], 3, v{T+2}
  v_cmp_gt_u32 s[20:21], 8, v{T}
  v_and_b32 v{T+2}, 1, v{T+1}
  v_lshlrev_b32 v{T+2}, 4, v{T+2}
  s_and_b64 s[18:19], s[18:19], s[20:21]
  v_mov_b32 v{T+3}, 0x3f80
  v_lshlrev_b32 v{T+2}, v{T+2}, v{T+3}
  v_lshrrev_b32 v{T+1}, 1, v{T+1}
  v_cndmask_b32 v{T+2}, 0, v{T+2}, s[18:19]
  v_cmp_eq_u32 s[18:19], 0, v{T+1}
  v_cmp_eq_u32 s[20:21], 1, v{T+1}
  v_cmp_eq_u32 s[22:23], 2, v{T+1}
  v_mov_b32 v{SEL+3}, 0
  v_cndmask_b32 v{SEL}, 0, v{T+2}, s[18:19]
  v_cndmask_b32 v{SEL+1}, 0, v{T+2}, s[20:21]
  v_cndmask_b32 v{SEL+2}, 0, v{T+2}, s[22:23]
  v_lshrrev_b32 v{T+1}, 4, v3
  v_lshlrev_b32 v{T+1}, 4, v{T+1}
  v_lshl_add_u32 v{T+1}, v{T}, 5, v{T+1}
  s_lshl_b32 s26, s14, 9
  v_add_u32 v{T+1}, s26, v{T+1}
  s_mov_b32 s25, 0xffff0000
  v_lshlrev_b32 v3, 2, v3
  s_mov_b32 s24, {a.maxpoll}
  s_mov_b32 s27, {a.maxpoll}""")
E(f"""  s_lshl_b32 s18, s14, 8
  v_add_u32 v{VI}, s18, v3
  v_mul_u32_u24 v2, 171, v{VI}
  v_lshrrev_b32 v2, 11, v2
  v_lshl_add_u32 v2, v2, 2, v{VI}
  v_and_b32 v{VA}, 0x7c, v{VI}
  v_lshrrev_b32 v{VI}, 7, v{VI}
  v_lshlrev_b32 v{VI}, 15, v{VI}
  s_lshl_b32 s18, s2, 7
  v_add3_u32 v{VI}, v{VI}, v{VA}, s18""")
for i in range(9):
    E(f"  s_waitcnt vmcnt({8-i})")
    c = "0" if i == 0 else f"v[{ACC}:{ACC+3}]"
    E(f"  v_mfma_f32_16x16x32_bf16 v[{ACC}:{ACC+3}], v[{SEL}:{SEL+3}], v[{D+4*i}:{D+4*i+3}], {c}")
if not a.fine: stamp(2)
E(f"""  s_nop 6
  s_mov_b32 exec_hi, 0
  ds_write_b128 v{T+1}, v[{ACC}:{ACC+3}] offset:{LA}
  s_mov_b32 exec_hi, -1
  s_cmp_lg_u32 s14, {a.fw}
  s_cbranch_scc1 L_bar2
  s_mov_b64 exec, {(1<<NC)-1}
L_flagpoll:
  global_load_dword v{T+2}, v3, s[10:11] {a.pl}
  s_waitcnt vmcnt(0)
  v_cmp_ne_u32 vcc, 0, v{T+2}
  s_sub_u32 s27, s27, 1
  s_cbranch_scc1 L_flagok
  s_cmp_eq_u64 vcc, exec
  s_cbranch_scc0 L_flagpoll
L_flagok:
  s_mov_b64 exec, -1
L_bar2:
  s_sub_u32 s28, s2, {a.ob}
  s_waitcnt lgkmcnt(0)
  s_barrier""")
stamp(3)
E("  s_cmp_ge_u32 s14, 2\n  s_cbranch_scc1 L_nopub")
if a.prio: E(f"  s_setprio {a.prio}")
for k in range(8):
    E(f"  ds_read2st64_b32 v[{P+2*k}:{P+2*k+1}], v2 offset0:{4*k} offset1:{4*k+2}")
E("  s_cmp_eq_u32 s14, 0\n  s_cselect_b32 s18, -1, 0")
for k in range(1, 8):
    E(f"  s_waitcnt lgkmcnt({7-k})")
    E(f"  v_pk_add_f32 v[{P}:{P+1}], v[{P}:{P+1}], v[{P+2*k}:{P+2*k+1}]")
E(f"""  v_add_f32 v{P}, v{P}, v{P+1}
  s_mov_b32 exec_hi, s18
  v_min_u32 v{P}, -2, v{P}""")
fine(1)
E(f"""  global_store_dword v{VI}, v{P}, s[12:13] {a.sy}
  s_mov_b32 exec_hi, -1
L_nopub:""")
E(f"""  s_cmp_eq_u32 s28, 0
  s_cselect_b32 s29, 0, 3
  s_cmp_eq_u32 s28, {a.os}
  s_cselect_b32 s29, 1, s29
  s_cmp_eq_u32 s28, {2*a.os}
  s_cselect_b32 s29, 2, s29
  s_cmp_eq_u32 s29, 3
  s_cbranch_scc1 L_notown
  s_lshl_b32 s18, s29, 15
  s_lshl_b32 s19, s14, 11
  s_add_u32 s18, s18, s19
  v_add_u32 v{VA}, s18, v3
  s_lshl_b32 s19, s14, 7
  v_add_u32 v{VB}, s19, v3
L_own:""")
Q = P + 16
for k in range(8):
    E(f"  global_load_dword v{Q+k}, v{VA}, s[12:13] offset:{256*k} {a.pl}")
E(f"""  s_waitcnt vmcnt(5)
  v_max3_u32 v{M}, v{Q}, v{Q+1}, v{Q+2}
  v_pk_add_f32 v[{Q}:{Q+1}], v[{Q}:{Q+1}], v[{Q}:{Q+1}] op_sel:[0,0] op_sel_hi:[1,1] neg_lo:[0,0]""".rsplit("\n",1)[0])
E(f"""  v_add_f32 v{P}, v{Q}, v{Q+1}
  v_add_f32 v{P}, v{P}, v{Q+2}
  s_waitcnt vmcnt(3)
  v_max3_u32 v{M}, v{M}, v{Q+3}, v{Q+4}
  v_add_f32 v{P}, v{P}, v{Q+3}
  v_add_f32 v{P}, v{P}, v{Q+4}
  s_waitcnt vmcnt(1)
  v_max3_u32 v{M}, v{M}, v{Q+5}, v{Q+6}
  v_add_f32 v{P}, v{P}, v{Q+5}
  v_add_f32 v{P}, v{P}, v{Q+6}
  s_waitcnt vmcnt(0)
  v_max_u32 v{M}, v{M}, v{Q+7}
  v_add_f32 v{P}, v{P}, v{Q+7}
  v_cmp_eq_u32 vcc, -1, v{M}
  v_mov_b32 v{P+1}, v{P}
  s_sub_u32 s24, s24, 1
  s_cbranch_scc1 L_own_ok
  s_cbranch_vccz L_own_ok""")
if a.sleep: E(f"  s_sleep {a.sleep}")
E(f"""  s_branch L_own
L_own_ok:""")
if a.fine: E("  s_cmp_lt_u32 s14, 2\n  s_cbranch_scc1 L_f1"); stamp(1); E("L_f1:")
E(f"""  v_permlane32_swap_b32 v{P}, v{P+1}
  s_mov_b32 exec_hi, 0
  v_add_f32 v{P}, v{P}, v{P+1}
  ds_write_b32 v{VB}, v{P} offset:{LB}
  s_mov_b32 exec_hi, -1
  s_movk_i32 s18, {LB}
  v_and_b32 v{VA}, 0x80, v3
  v_mul_u32_u24 v{VA}, 7, v{VA}
  v_add3_u32 v{VA}, v{VA}, v3, s18
  s_waitcnt lgkmcnt(0)
  s_barrier
  s_cmp_lg_u32 s14, 0
  s_cbranch_scc1 L_notown""")
for k in range(4):
    E(f"  ds_read2_b32 v[{P+2*k}:{P+2*k+1}], v{VA} offset0:{64*k} offset1:{64*k+32}".replace(f"v{VA} ", f"v{VA} "))
E(f"""  s_lshl_b32 s18, s29, 7
  s_add_u32 s18, s18, {FIN}
  v_add_u32 v{VB}, s18, v3""")
for k in range(1, 4):
    E(f"  s_waitcnt lgkmcnt({3-k})")
    E(f"  v_pk_add_f32 v[{P}:{P+1}], v[{P}:{P+1}], v[{P+2*k}:{P+2*k+1}]")
E(f"""  v_add_f32 v{P}, v{P}, v{P+1}
  v_mov_b32 v{P+1}, v{P}
  s_nop 1
  v_permlane32_swap_b32 v{P}, v{P+1}
  s_mov_b32 exec_hi, 0
  v_add_f32 v{P}, v{P}, v{P+1}
  v_min_u32 v{P}, -2, v{P}
  global_store_dword v{VB}, v{P}, s[12:13] {a.sy}
  s_mov_b32 exec_hi, -1""")
fine(2)
E("L_notown:")
for i in range(9):
    for d in range(3):
        E(f"  v_lshlrev_b32 v{U+6*i+2*d}, 16, v{D+4*i+d}")
        E(f"  v_and_b32 v{U+6*i+2*d+1}, s25, v{D+4*i+d}")
E(f"""  s_cmp_ge_u32 s14, 2
  s_cbranch_scc1 L_wait
  s_mul_i32 s22, s14, 192
  s_add_u32 s23, s22, {FIN-4}
  v_add_u32 v{VA}, s23, v3
  s_add_u32 s23, s22, {LS-4}
  v_add_u32 v{VB}, s23, v3
  s_lshl_b32 s18, s16, 16
  s_and_b32 s19, s16, 0xffff0000
  s_lshl_b32 s20, s17, 16
  s_mov_b32 s21, {f2u(1.0/147456.0)}
  s_lshr_b32 s23, 0x3ffff, s14
  s_cmp_eq_u32 s14, 0
  s_cselect_b32 exec_lo, -2, -1
  s_mov_b32 exec_hi, s23
  s_mov_b32 s30, {a.maxpoll}
L_poll:
  global_load_dword v{P}, v{VA}, s[12:13] {a.pl}
  s_waitcnt vmcnt(0)
  v_cmp_eq_u32 vcc, -1, v{P}
  s_sub_u32 s30, s30, 1
  s_cbranch_scc1 L_poll_ok
  s_cbranch_vccz L_poll_ok""")
if a.sleep2: E(f"  s_sleep {a.sleep2}")
E("  s_branch L_poll\nL_poll_ok:")
stamp(4)
if a.fine: E("  s_mov_b32 s27, s30")
emit_gate1(E, P, P+2)
E(f"""  s_mov_b32 exec_lo, -2
  s_mov_b32 exec_hi, 0x1ffff
  ds_write_b32 v{VB}, v{P}
  s_mov_b64 exec, -1""")
if a.prio: E("  s_setprio 0")
E(f"""  s_waitcnt lgkmcnt(0)
L_wait:
  v_and_b32 v3, 60, v3
  v_mul_u32_u24 v3, 6, v3
  s_barrier""")
stamp(5)
for j in range(3):
    E(f"  ds_read_b64 v[{S+2*j}:{S+2*j+1}], v3 offset:{LS+8*j}")
E("  s_waitcnt lgkmcnt(0)")
for i in range(9):
    for d in range(3):
        E(f"  v_pk_mul_f32 v[{U+6*i+2*d}:{U+6*i+2*d+1}], v[{U+6*i+2*d}:{U+6*i+2*d+1}], v[{S+2*d}:{S+2*d+1}]")
    for d in range(3):
        E(f"  v_cvt_pk_bf16_f32 v{D+4*i+d}, v{U+6*i+2*d}, v{U+6*i+2*d+1}")
    if a.thr >= 0 and i > a.thr: E(f"  s_waitcnt vmcnt({a.thr})")
    if a.pat == "wave":
        E(f"  global_store_dwordx3 v1, v[{D+4*i}:{D+4*i+2}], s[8:9] offset:{(i-4)*768} {a.st}")
    else:
        E(f"  global_store_dwordx3 v1, v[{D+4*i}:{D+4*i+2}], s[8:9] {a.st}")
        if i < 8: E(f"  s_add_u32 s8, s8, {STEP}\n  s_addc_u32 s9, s9, 0")
    if a.s6 == "first" and i == 0:
        E("  s_waitcnt vmcnt(0)"); stamp(6)
if a.stamp:
    if a.s6 == "": stamp(6)
    E("  s_waitcnt vmcnt(0)")
    if a.s6 == "own": stamp(6)
    E("  s_barrier")
    stamp(7)
    emit_stamp_dump(E, a, cnt="s24")
if a.delay:
    E(f'''  s_waitcnt vmcnt(0)
  s_barrier
  s_cmp_lg_u32 s14, 0
  s_cbranch_scc1 L_end
  s_memrealtime s[20:21]
  s_waitcnt lgkmcnt(0)
  s_add_u32 s19, s20, {a.delay}
L_spin2:
  s_memrealtime s[20:21]
  s_waitcnt lgkmcnt(0)
  s_sub_u32 s22, s19, s20
  s_cmp_gt_i32 s22, 0
  s_cbranch_scc1 L_spin2''')
E("L_end:\n  s_endpgm")
E(kd(KN, 128, 64))
open(a.o, "w").write("\n".join(o) + "\n")
print(build(a.o))
```

```python
import struct
def f2u(x): return hex(struct.unpack('<I', struct.pack('<f', x))[0])
def emit_stamp_dump(E, a, nwg=256, cnt="s24"):
    if a.exf:
        parts = a.exf.split(","); k, K = int(parts[0]), int(parts[1]); mode = parts[2] if len(parts) > 2 else ""
        if mode:
            E(f'''  s_cmp_lg_u32 s14, {getattr(a,'xw',0)}
  s_cbranch_scc1 L_end
  s_waitcnt lgkmcnt(0)
  s_getreg_b32 s50, hwreg(HW_REG_XCC_ID)
  s_and_b32 s50, s50, 7
  s_lshl_b32 s50, s50, 2
  s_mov_b64 exec, 1
  s_not_b32 s18, s32
  v_mov_b32 v4, s18
  v_mov_b32 v5, s{32+2*k}
  v_mov_b32 v6, 1
  v_mov_b32 v1, 128
  v_mov_b32 v2, s50
  global_atomic_umax v1, v4, s[10:11]
  global_atomic_umax v2, v5, s[10:11] offset:192
  s_waitcnt vmcnt(0)
  global_atomic_add v7, v1, v6, s[10:11] offset:8 sc0
  s_waitcnt vmcnt(0)
  v_readfirstlane_b32 s18, v7
  s_cmp_lg_u32 s18, {nwg-1}
  s_cbranch_scc1 L_end
  global_load_dword v4, v1, s[10:11] sc1
  global_load_dwordx4 v[8:11], v1, s[10:11] offset:64 sc1
  global_load_dwordx4 v[12:15], v1, s[10:11] offset:80 sc1
  s_waitcnt vmcnt(0)
  v_readfirstlane_b32 s18, v4
  s_not_b32 s18, s18''')
            for j in range(8): E(f"  v_subrev_u32 v{8+j}, s18, v{8+j}")
            if mode == "xmin":
                E("  v_min3_u32 v5, v8, v9, v10\n  v_min3_u32 v5, v5, v11, v12\n  v_min3_u32 v5, v5, v13, v14\n  v_min_u32 v5, v5, v15")
            elif mode == "xmax":
                E("  v_max3_u32 v5, v8, v9, v10\n  v_max3_u32 v5, v5, v11, v12\n  v_max3_u32 v5, v5, v13, v14\n  v_max_u32 v5, v5, v15")
            elif mode == "xavg":
                E("  v_add3_u32 v5, v8, v9, v10\n  v_add3_u32 v5, v5, v11, v12\n  v_add3_u32 v5, v5, v13, v14\n  v_add_u32 v5, v5, v15\n  v_lshrrev_b32 v5, 3, v5")
            else:
                E(f"  v_mov_b32 v5, v{8+int(mode[1:])}")
            E(f'''  global_store_dwordx4 v1, v[8:11], s[10:11] offset:-128
  global_store_dwordx4 v1, v[12:15], s[10:11] offset:-112
  s_nop 0
  v_readfirstlane_b32 s19, v5
  s_min_u32 s19, s19, 10000
  s_mul_i32 s19, s19, {K}
  s_memrealtime s[20:21]
  s_waitcnt lgkmcnt(0)
  s_add_u32 s19, s19, s20
L_spin:
  s_memrealtime s[20:21]
  s_waitcnt lgkmcnt(0)
  s_sub_u32 s22, s19, s20
  s_cmp_gt_i32 s22, 0
  s_cbranch_scc1 L_spin
  s_branch L_end''')
            return
        E(f'''  s_cmp_lg_u32 s14, {getattr(a,'xw',0)}
  s_cbranch_scc1 L_end
  s_waitcnt lgkmcnt(0)
  s_mov_b64 exec, 1
  s_not_b32 s18, s32
  v_mov_b32 v4, s18
  v_mov_b32 v5, s{32+2*k}
  v_mov_b32 v6, 1
  v_mov_b32 v1, 128
  global_atomic_umax v1, v4, s[10:11]
  global_atomic_umax v1, v5, s[10:11] offset:4
  s_waitcnt vmcnt(0)
  global_atomic_add v7, v1, v6, s[10:11] offset:8 sc0
  s_waitcnt vmcnt(0)
  v_readfirstlane_b32 s18, v7
  s_cmp_lg_u32 s18, {nwg-1}
  s_cbranch_scc1 L_end
  global_load_dwordx2 v[4:5], v1, s[10:11] sc1
  s_waitcnt vmcnt(0)
  v_readfirstlane_b32 s18, v4
  v_readfirstlane_b32 s19, v5
  s_not_b32 s18, s18
  s_sub_u32 s19, s19, s18
  s_min_u32 s19, s19, 10000
  v_mov_b32 v4, s19
  global_store_dword v1, v4, s[10:11] offset:12
  s_mul_i32 s19, s19, {K}
  s_memrealtime s[20:21]
  s_waitcnt lgkmcnt(0)
  s_add_u32 s19, s19, s20
L_spin:
  s_memrealtime s[20:21]
  s_waitcnt lgkmcnt(0)
  s_sub_u32 s22, s19, s20
  s_cmp_gt_i32 s22, 0
  s_cbranch_scc1 L_spin
  s_branch L_end''')
        return
    if a.allw:
        E("  s_lshl_b32 s2, s2, 4\n  s_add_u32 s2, s2, s14")
    else:
        E("  s_cmp_lg_u32 s14, 0\n  s_cbranch_scc1 L_end")
    E(f"""  s_getreg_b32 s50, hwreg(HW_REG_XCC_ID)
  s_getreg_b32 s51, hwreg(HW_REG_HW_ID)
  s_waitcnt lgkmcnt(0)
  s_lshl_b32 s18, s2, 6
  s_add_u32 s18, s18, {64<<20}
  v_mov_b32 v1, s18""")
    for k in range(8):
        E(f"  v_mov_b32 v{4+k}, s{32+2*k}")
    E(f"""  v_mov_b32 v12, s50
  v_mov_b32 v13, s51
  v_mov_b32 v14, {cnt}
  v_mov_b32 v15, s27
  s_mov_b64 exec, 1
  global_store_dwordx4 v1, v[4:7], s[12:13]
  global_store_dwordx4 v1, v[8:11], s[12:13] offset:16
  global_store_dwordx4 v1, v[12:15], s[12:13] offset:32""")

def emit_gate(E, P, wreg="s16", wreg2="s17", mask="s25"):
    E(f"""  s_lshl_b32 s18, {wreg}, 16
  s_and_b32 s19, {wreg}, 0xffff0000
  s_lshl_b32 s20, {wreg2}, 16
  s_mov_b32 s21, {f2u(1.0/147456.0)}""")
    def rne3(src, dst, tmp):
        E(f"  v_cvt_pk_bf16_f32 v{tmp}, v{src[0]}, v{src[1]}")
        E(f"  v_cvt_pk_bf16_f32 v{tmp+1}, v{src[2]}, v{src[2]}")
        E(f"  v_lshlrev_b32 v{dst[0]}, 16, v{tmp}")
        E(f"  v_and_b32 v{dst[1]}, {mask}, v{tmp}")
        E(f"  v_lshlrev_b32 v{dst[2]}, 16, v{tmp+1}")
    src = [P, P+1, P+2]
    g = [P+9, P+10, P+11]
    rne3(src, src, P+14)
    for j in range(3): E(f"  v_mul_f32 v{src[j]}, s21, v{src[j]}")
    rne3(src, g, P+14)
    E("  s_nop 1")
    E(f"  v_mov_b32_dpp v{P+8}, v{P+11} wave_shr:1 row_mask:0xf bank_mask:0xf bound_ctrl:0")
    E(f"  v_mov_b32_dpp v{P+12}, v{P+9} wave_shl:1 row_mask:0xf bank_mask:0xf bound_ctrl:0")
    p0 = [P+5, P+6, P+7]; p1 = [P, P+1, P+2]
    for j in range(3): E(f"  v_mul_f32 v{p0[j]}, s18, v{P+8+j}")
    for j in range(3): E(f"  v_mul_f32 v{p1[j]}, s19, v{P+9+j}")
    rne3(p0, p0, P+14); rne3(p1, p1, P+3)
    for j in range(3): E(f"  v_add_f32 v{p0[j]}, v{p0[j]}, v{p1[j]}")
    for j in range(3): E(f"  v_mul_f32 v{p1[j]}, s20, v{P+10+j}")
    rne3(p0, p0, P+14); rne3(p1, p1, P+3)
    for j in range(3): E(f"  v_add_f32 v{p0[j]}, v{p0[j]}, v{p1[j]}")
    rne3(p0, p0, P+14)
    for j in range(3): E(f"  v_mul_f32 v{p0[j]}, 0xbfb8aa3b, v{p0[j]}")
    for j in range(3): E(f"  v_exp_f32 v{p0[j]}, v{p0[j]}")
    E("  s_nop 0")
    for j in range(3): E(f"  v_add_f32 v{p0[j]}, 1.0, v{p0[j]}")
    for j in range(3): E(f"  v_rcp_f32 v{p0[j]}, v{p0[j]}")
    E("  s_nop 0")
    rne3(p0, p0, P+14)
    return p0

def emit_gate1(E, X, T, wreg="s16", wreg2="s17", mask="s25"):
    E(f"""  v_cvt_pk_bf16_f32 v{X}, v{X}, v{X}
  v_and_b32 v{X}, {mask}, v{X}
  v_mul_f32 v{X}, s21, v{X}
  v_cvt_pk_bf16_f32 v{X}, v{X}, v{X}
  v_and_b32 v{X}, {mask}, v{X}
  v_mul_f32 v{T+1}, s19, v{X}
  v_mul_f32 v{T+3}, s18, v{X}
  v_mul_f32 v{T+4}, s20, v{X}
  v_cvt_pk_bf16_f32 v{T+1}, v{T+1}, v{T+1}
  v_cvt_pk_bf16_f32 v{T+5}, v{T+3}, v{T+4}
  v_and_b32 v{T+1}, {mask}, v{T+1}
  s_nop 0
  v_mov_b32_dpp v{T}, v{T+5} wave_shr:1 row_mask:0xf bank_mask:0xf bound_ctrl:0
  v_mov_b32_dpp v{T+2}, v{T+5} wave_shl:1 row_mask:0xf bank_mask:0xf bound_ctrl:0
  v_lshlrev_b32 v{T}, 16, v{T}
  v_and_b32 v{T+2}, {mask}, v{T+2}
  v_add_f32 v{X}, v{T}, v{T+1}
  v_cvt_pk_bf16_f32 v{X}, v{X}, v{X}
  v_and_b32 v{X}, {mask}, v{X}
  v_add_f32 v{X}, v{X}, v{T+2}
  v_cvt_pk_bf16_f32 v{X}, v{X}, v{X}
  v_and_b32 v{X}, {mask}, v{X}
  v_mul_f32 v{X}, 0xbfb8aa3b, v{X}
  v_exp_f32 v{X}, v{X}
  s_nop 0
  v_add_f32 v{X}, 1.0, v{X}
  v_rcp_f32 v{X}, v{X}
  s_nop 0
  v_cvt_pk_bf16_f32 v{X}, v{X}, v{X}
  v_and_b32 v{X}, {mask}, v{X}""")
```

```python
import sys, argparse
from asmlib import *
from common import *
ap = argparse.ArgumentParser()
ap.add_argument("-o", default="v4.s")
ap.add_argument("--fw", type=int, default=11)
ap.add_argument("--ob", type=int, default=17)
ap.add_argument("--os", type=int, default=2)
ap.add_argument("--stamp", action="store_true")
ap.add_argument("--allw", action="store_true")
ap.add_argument("--fine", action="store_true")
ap.add_argument("--exf", default="")
ap.add_argument("--ld", default="nt")
ap.add_argument("--st", default="nt")
ap.add_argument("--sy", default="sc1")
ap.add_argument("--pl", default="sc1")
ap.add_argument("--pat", default="wave")
ap.add_argument("--thr", type=int, default=-1)
ap.add_argument("--s6", default="")
ap.add_argument("--xw", type=int, default=0)
ap.add_argument("--wb0", type=int, default=0)
ap.add_argument("--wbw", type=int, default=1)
ap.add_argument("--wbs", type=int, default=-1)
ap.add_argument("--delay", type=int, default=0)
ap.add_argument("--prio", type=int, default=3)
ap.add_argument("--sleep", type=int, default=0)
ap.add_argument("--sleep2", type=int, default=0)
ap.add_argument("--maxpoll", type=int, default=200000)
a = ap.parse_args()
if a.exf or a.allw: a.stamp = True
o = []; E = o.append
def stamp(k):
    if a.stamp: E(f"  s_memrealtime s[{32+2*k}:{33+2*k}]")
def fine(k):
    if a.fine: stamp(k)
NC = 16
LA, LB, LS = 0, 8192, 10240
FIN = 98304
NCS = 7
E(HEADER + "; @launch grid=(256,1,1) block=(1024,1,1) lds=10752")
E(f""".amdgcn_target "amdgcn-amd-amdhsa--gfx950"
.text
.globl {KN}
.p2align 8
.type {KN},@function
{KN}:""")
D = 4; U = 40; P = 94; SEL = P; ACC = P + 4; T = P + 8; S = P + 16
M = D + 3
VI, VA, VB = 120, 121, 122
if a.pat == "wave":
    ADDR = "  s_mul_i32 s3, s2, 110592\n  s_mul_i32 s15, s14, 6912\n  s_add_u32 s3, s3, 3072\n  s_add_u32 s3, s3, s15"
elif a.pat == "seq":
    ADDR = "  s_and_b32 s15, s14, 3\n  s_lshl_b32 s3, s2, 2\n  s_add_u32 s3, s3, s15\n  s_mul_i32 s3, s3, 768\n  s_lshr_b32 s15, s14, 2\n  s_mul_i32 s15, s15, 7077888\n  s_add_u32 s3, s3, s15"
    STEP = 786432
elif a.pat == "seqx":
    ADDR = "  s_and_b32 s3, s2, 7\n  s_lshl_b32 s3, s3, 5\n  s_lshr_b32 s15, s2, 3\n  s_add_u32 s3, s3, s15\n  s_lshl_b32 s3, s3, 2\n  s_and_b32 s15, s14, 3\n  s_add_u32 s3, s3, s15\n  s_mul_i32 s3, s3, 768\n  s_lshr_b32 s15, s14, 2\n  s_mul_i32 s15, s15, 7077888\n  s_add_u32 s3, s3, s15"
    STEP = 786432
elif a.pat == "seqw":
    ADDR = "  s_and_b32 s15, s14, 3\n  s_lshl_b32 s15, s15, 8\n  s_add_u32 s3, s2, s15\n  s_mul_i32 s3, s3, 768\n  s_lshr_b32 s15, s14, 2\n  s_mul_i32 s15, s15, 7077888\n  s_add_u32 s3, s3, s15"
    STEP = 786432
elif a.pat == "seq3":
    ADDR = "  s_and_b32 s15, s14, 3\n  s_lshl_b32 s3, s2, 2\n  s_add_u32 s3, s3, s15\n  s_mul_i32 s3, s3, 2304\n  s_lshr_b32 s15, s14, 2\n  s_mul_i32 s15, s15, 7077888\n  s_add_u32 s3, s3, s15"
    STEP = None
elif a.pat == "seq16":
    ADDR = "  s_lshl_b32 s3, s2, 4\n  s_add_u32 s3, s3, s14\n  s_mul_i32 s3, s3, 768"
    STEP = 3145728
elif a.pat == "wg":
    ADDR = "  s_mul_i32 s3, s2, 110592\n  s_and_b32 s15, s14, 3\n  s_mul_i32 s15, s15, 768\n  s_add_u32 s3, s3, s15\n  s_lshr_b32 s15, s14, 2\n  s_mul_i32 s15, s15, 27648\n  s_add_u32 s3, s3, s15"
    STEP = 3072
stamp(0)
E(f"""  s_cmp_ge_u32 s2, 256
  s_cbranch_scc1 L_end
  s_load_dwordx4 s[4:7], s[0:1], 0
  s_load_dwordx4 s[8:11], s[0:1], 16
  s_load_dwordx2 s[12:13], s[0:1], 32
  v_lshrrev_b32 v2, 6, v0
  v_and_b32 v3, 63, v0
  v_readfirstlane_b32 s14, v2
  v_mul_u32_u24 v0, 12, v3
{ADDR}
  v_add_u32 v1, s3, v0
  s_cmp_lt_u32 s2, {NC}
  s_cselect_b32 s15, 1, 0
  s_cmp_eq_u32 s14, 0
  s_cselect_b32 s15, s15, 0
  s_cmp_eq_u32 s15, 0
  s_waitcnt lgkmcnt(0)
  s_cbranch_scc1 L_noclear
  s_mul_i32 s18, s2, {NCS*1024}
  s_add_u32 s18, s18, 4096
  v_lshl_add_u32 v{T}, v3, 4, s18
  v_mov_b32 v{P}, -1
  v_mov_b32 v{P+1}, -1
  v_mov_b32 v{P+2}, -1
  v_mov_b32 v{P+3}, -1""")
for k in range(NCS):
    E(f"  global_store_dwordx4 v{T}, v[{P}:{P+3}], s[12:13] offset:{1024*k-4096} {a.sy}")
E("L_noclear:")
if a.wb0:
    E(f"  s_cmp_ge_u32 s2, {a.wb0}\n  s_cbranch_scc1 L_nowb\n  s_cmp_lg_u32 s14, {a.wbw}\n  s_cbranch_scc1 L_nowb\n  buffer_wbl2 sc1\n  s_waitcnt vmcnt(0)\nL_nowb:")
    if a.wbs >= 0: stamp(a.wbs)
for i in range(9):
    if a.pat == "wave":
        E(f"  global_load_dwordx3 v[{D+4*i}:{D+4*i+2}], v1, s[4:5] offset:{(i-4)*768} {a.ld}")
    else:
        if STEP:
            E(f"  global_load_dwordx3 v[{D+4*i}:{D+4*i+2}], v1, s[4:5] {a.ld}")
            if i < 8: E(f"  s_add_u32 s4, s4, {STEP}\n  s_addc_u32 s5, s5, 0")
        else:
            E(f"  global_load_dwordx3 v[{D+4*i}:{D+4*i+2}], v1, s[4:5] offset:{768*(i%3)} {a.ld}")
            if i in (2, 5): E(f"  s_add_u32 s4, s4, 2359296\n  s_addc_u32 s5, s5, 0")
if not a.fine: stamp(1)
E(f"""  s_load_dwordx2 s[16:17], s[6:7], 0
  s_cmp_eq_u32 s15, 0
  s_cbranch_scc1 L_noflag
  s_waitcnt vmcnt(9)
  s_lshl_b32 s18, s2, 2
  v_mov_b32 v{T}, 1
  v_mov_b32 v{T+1}, s18
  s_mov_b64 exec, 1
  global_store_dword v{T+1}, v{T}, s[10:11] {a.sy}
  s_mov_b64 exec, -1
  s_waitcnt vmcnt(0)
L_noflag:""")
for i in range(9):
    E(f"  v_mov_b32 v{D+4*i+3}, 0")
E(f"""  v_and_b32 v{T}, 15, v3
  v_lshrrev_b32 v{T+1}, 2, v{T}
  v_sub_u32 v{T+1}, v{T}, v{T+1}
  v_and_b32 v{T+2}, 3, v{T}
  v_cmp_ne_u32 s[18:19], 3, v{T+2}
  v_cmp_gt_u32 s[20:21], 8, v{T}
  v_and_b32 v{T+2}, 1, v{T+1}
  v_lshlrev_b32 v{T+2}, 4, v{T+2}
  s_and_b64 s[18:19], s[18:19], s[20:21]
  v_mov_b32 v{T+3}, 0x3f80
  v_lshlrev_b32 v{T+2}, v{T+2}, v{T+3}
  v_lshrrev_b32 v{T+1}, 1, v{T+1}
  v_cndmask_b32 v{T+2}, 0, v{T+2}, s[18:19]
  v_cmp_eq_u32 s[18:19], 0, v{T+1}
  v_cmp_eq_u32 s[20:21], 1, v{T+1}
  v_cmp_eq_u32 s[22:23], 2, v{T+1}
  v_mov_b32 v{SEL+3}, 0
  v_cndmask_b32 v{SEL}, 0, v{T+2}, s[18:19]
  v_cndmask_b32 v{SEL+1}, 0, v{T+2}, s[20:21]
  v_cndmask_b32 v{SEL+2}, 0, v{T+2}, s[22:23]
  v_lshrrev_b32 v{T+1}, 4, v3
  v_lshlrev_b32 v{T+1}, 4, v{T+1}
  v_lshl_add_u32 v{T+1}, v{T}, 5, v{T+1}
  s_lshl_b32 s26, s14, 9
  v_add_u32 v{T+1}, s26, v{T+1}
  s_mov_b32 s25, 0xffff0000
  v_lshlrev_b32 v3, 2, v3
  s_mov_b32 s24, {a.maxpoll}
  s_mov_b32 s27, {a.maxpoll}""")
E(f"""  s_lshl_b32 s18, s14, 8
  v_add_u32 v{VI}, s18, v3
  v_mul_u32_u24 v2, 171, v{VI}
  v_lshrrev_b32 v2, 11, v2
  v_lshl_add_u32 v2, v2, 2, v{VI}
  v_and_b32 v{VA}, 0x7c, v{VI}
  v_lshrrev_b32 v{VI}, 7, v{VI}
  v_lshlrev_b32 v{VI}, 15, v{VI}
  s_lshl_b32 s18, s2, 7
  v_add3_u32 v{VI}, v{VI}, v{VA}, s18""")
for i in range(9):
    E(f"  s_waitcnt vmcnt({8-i})")
    c = "0" if i == 0 else f"v[{ACC}:{ACC+3}]"
    E(f"  v_mfma_f32_16x16x32_bf16 v[{ACC}:{ACC+3}], v[{SEL}:{SEL+3}], v[{D+4*i}:{D+4*i+3}], {c}")
if not a.fine: stamp(2)
E(f"""  s_nop 6
  s_mov_b32 exec_hi, 0
  ds_write_b128 v{T+1}, v[{ACC}:{ACC+3}] offset:{LA}
  s_mov_b32 exec_hi, -1
  s_cmp_lg_u32 s14, {a.fw}
  s_cbranch_scc1 L_bar2
  s_mov_b64 exec, {(1<<NC)-1}
L_flagpoll:
  global_load_dword v{T+2}, v3, s[10:11] {a.pl}
  s_waitcnt vmcnt(0)
  v_cmp_ne_u32 vcc, 0, v{T+2}
  s_sub_u32 s27, s27, 1
  s_cbranch_scc1 L_flagok
  s_cmp_eq_u64 vcc, exec
  s_cbranch_scc0 L_flagpoll
L_flagok:
  s_mov_b64 exec, -1
L_bar2:
  s_sub_u32 s28, s2, {a.ob}
  s_waitcnt lgkmcnt(0)
  s_barrier""")
stamp(3)
E("  s_cmp_ge_u32 s14, 2\n  s_cbranch_scc1 L_nopub")
if a.prio: E(f"  s_setprio {a.prio}")
for k in range(8):
    E(f"  ds_read2st64_b32 v[{P+2*k}:{P+2*k+1}], v2 offset0:{4*k} offset1:{4*k+2}")
E("  s_cmp_eq_u32 s14, 0\n  s_cselect_b32 s18, -1, 0")
for k in range(1, 8):
    E(f"  s_waitcnt lgkmcnt({7-k})")
    E(f"  v_pk_add_f32 v[{P}:{P+1}], v[{P}:{P+1}], v[{P+2*k}:{P+2*k+1}]")
E(f"""  v_add_f32 v{P}, v{P}, v{P+1}
  s_mov_b32 exec_hi, s18
  v_min_u32 v{P}, -2, v{P}""")
fine(1)
E(f"""  global_store_dword v{VI}, v{P}, s[12:13] {a.sy}
  s_mov_b32 exec_hi, -1
L_nopub:""")
E(f"""  s_cmp_eq_u32 s28, 0
  s_cselect_b32 s29, 0, 3
  s_cmp_eq_u32 s28, {a.os}
  s_cselect_b32 s29, 1, s29
  s_cmp_eq_u32 s28, {2*a.os}
  s_cselect_b32 s29, 2, s29
  s_cmp_eq_u32 s29, 3
  s_cbranch_scc1 L_notown
  s_lshl_b32 s18, s29, 15
  s_lshl_b32 s19, s14, 11
  s_add_u32 s18, s18, s19
  v_add_u32 v{VA}, s18, v3
  s_lshl_b32 s19, s14, 7
  v_add_u32 v{VB}, s19, v3
L_own:""")
Q = P + 16
for k in range(8):
    E(f"  global_load_dword v{Q+k}, v{VA}, s[12:13] offset:{256*k} {a.pl}")
E(f"""  s_waitcnt vmcnt(5)
  v_max3_u32 v{M}, v{Q}, v{Q+1}, v{Q+2}
  v_pk_add_f32 v[{Q}:{Q+1}], v[{Q}:{Q+1}], v[{Q}:{Q+1}] op_sel:[0,0] op_sel_hi:[1,1] neg_lo:[0,0]""".rsplit("\n",1)[0])
E(f"""  v_add_f32 v{P}, v{Q}, v{Q+1}
  v_add_f32 v{P}, v{P}, v{Q+2}
  s_waitcnt vmcnt(3)
  v_max3_u32 v{M}, v{M}, v{Q+3}, v{Q+4}
  v_add_f32 v{P}, v{P}, v{Q+3}
  v_add_f32 v{P}, v{P}, v{Q+4}
  s_waitcnt vmcnt(1)
  v_max3_u32 v{M}, v{M}, v{Q+5}, v{Q+6}
  v_add_f32 v{P}, v{P}, v{Q+5}
  v_add_f32 v{P}, v{P}, v{Q+6}
  s_waitcnt vmcnt(0)
  v_max_u32 v{M}, v{M}, v{Q+7}
  v_add_f32 v{P}, v{P}, v{Q+7}
  v_cmp_eq_u32 vcc, -1, v{M}
  v_mov_b32 v{P+1}, v{P}
  s_sub_u32 s24, s24, 1
  s_cbranch_scc1 L_own_ok
  s_cbranch_vccz L_own_ok""")
if a.sleep: E(f"  s_sleep {a.sleep}")
E(f"""  s_branch L_own
L_own_ok:""")
if a.fine: E("  s_cmp_lt_u32 s14, 2\n  s_cbranch_scc1 L_f1"); stamp(1); E("L_f1:")
E(f"""  v_permlane32_swap_b32 v{P}, v{P+1}
  s_mov_b32 exec_hi, 0
  v_add_f32 v{P}, v{P}, v{P+1}
  ds_write_b32 v{VB}, v{P} offset:{LB}
  s_mov_b32 exec_hi, -1
  s_movk_i32 s18, {LB}
  v_and_b32 v{VA}, 0x80, v3
  v_mul_u32_u24 v{VA}, 7, v{VA}
  v_add3_u32 v{VA}, v{VA}, v3, s18
  s_waitcnt lgkmcnt(0)
  s_barrier
  s_cmp_lg_u32 s14, 0
  s_cbranch_scc1 L_notown""")
for k in range(4):
    E(f"  ds_read2_b32 v[{P+2*k}:{P+2*k+1}], v{VA} offset0:{64*k} offset1:{64*k+32}".replace(f"v{VA} ", f"v{VA} "))
E(f"""  s_lshl_b32 s18, s29, 7
  s_add_u32 s18, s18, {FIN}
  v_add_u32 v{VB}, s18, v3""")
for k in range(1, 4):
    E(f"  s_waitcnt lgkmcnt({3-k})")
    E(f"  v_pk_add_f32 v[{P}:{P+1}], v[{P}:{P+1}], v[{P+2*k}:{P+2*k+1}]")
E(f"""  v_add_f32 v{P}, v{P}, v{P+1}
  v_mov_b32 v{P+1}, v{P}
  s_nop 1
  v_permlane32_swap_b32 v{P}, v{P+1}
  s_mov_b32 exec_hi, 0
  v_add_f32 v{P}, v{P}, v{P+1}
  v_min_u32 v{P}, -2, v{P}
  global_store_dword v{VB}, v{P}, s[12:13] {a.sy}
  s_mov_b32 exec_hi, -1""")
fine(2)
E("L_notown:")
for i in range(9):
    for d in range(3):
        E(f"  v_lshlrev_b32 v{U+6*i+2*d}, 16, v{D+4*i+d}")
        E(f"  v_and_b32 v{U+6*i+2*d+1}, s25, v{D+4*i+d}")
E(f"""  s_cmp_ge_u32 s14, 2
  s_cbranch_scc1 L_wait
  s_mul_i32 s22, s14, 192
  s_add_u32 s23, s22, {FIN-4}
  v_add_u32 v{VA}, s23, v3
  s_add_u32 s23, s22, {LS-4}
  v_add_u32 v{VB}, s23, v3
  s_lshl_b32 s18, s16, 16
  s_and_b32 s19, s16, 0xffff0000
  s_lshl_b32 s20, s17, 16
  s_mov_b32 s21, {f2u(1.0/147456.0)}
  s_lshr_b32 s23, 0x3ffff, s14
  s_cmp_eq_u32 s14, 0
  s_cselect_b32 exec_lo, -2, -1
  s_mov_b32 exec_hi, s23
  s_mov_b32 s30, {a.maxpoll}
L_poll:
  global_load_dword v{P}, v{VA}, s[12:13] {a.pl}
  s_waitcnt vmcnt(0)
  v_cmp_eq_u32 vcc, -1, v{P}
  s_sub_u32 s30, s30, 1
  s_cbranch_scc1 L_poll_ok
  s_cbranch_vccz L_poll_ok""")
if a.sleep2: E(f"  s_sleep {a.sleep2}")
E("  s_branch L_poll\nL_poll_ok:")
stamp(4)
if a.fine: E("  s_mov_b32 s27, s30")
emit_gate1(E, P, P+2)
E(f"""  s_mov_b32 exec_lo, -2
  s_mov_b32 exec_hi, 0x1ffff
  ds_write_b32 v{VB}, v{P}
  s_mov_b64 exec, -1""")
if a.prio: E("  s_setprio 0")
E(f"""  s_waitcnt lgkmcnt(0)
L_wait:
  v_and_b32 v3, 60, v3
  v_mul_u32_u24 v3, 6, v3
  s_barrier""")
stamp(5)
for j in range(3):
    E(f"  ds_read_b64 v[{S+2*j}:{S+2*j+1}], v3 offset:{LS+8*j}")
E("  s_waitcnt lgkmcnt(0)")
for i in range(9):
    for d in range(3):
        E(f"  v_pk_mul_f32 v[{U+6*i+2*d}:{U+6*i+2*d+1}], v[{U+6*i+2*d}:{U+6*i+2*d+1}], v[{S+2*d}:{S+2*d+1}]")
    for d in range(3):
        E(f"  v_cvt_pk_bf16_f32 v{D+4*i+d}, v{U+6*i+2*d}, v{U+6*i+2*d+1}")
    if a.thr >= 0 and i > a.thr: E(f"  s_waitcnt vmcnt({a.thr})")
    if a.pat == "wave":
        E(f"  global_store_dwordx3 v1, v[{D+4*i}:{D+4*i+2}], s[8:9] offset:{(i-4)*768} {a.st}")
    else:
        if STEP:
            E(f"  global_store_dwordx3 v1, v[{D+4*i}:{D+4*i+2}], s[8:9] {a.st}")
            if i < 8: E(f"  s_add_u32 s8, s8, {STEP}\n  s_addc_u32 s9, s9, 0")
        else:
            E(f"  global_store_dwordx3 v1, v[{D+4*i}:{D+4*i+2}], s[8:9] offset:{768*(i%3)} {a.st}")
            if i in (2, 5): E(f"  s_add_u32 s8, s8, 2359296\n  s_addc_u32 s9, s9, 0")
    if a.s6 == "first" and i == 0:
        E("  s_waitcnt vmcnt(0)"); stamp(6)
if a.stamp:
    if a.s6 == "": stamp(6)
    E("  s_waitcnt vmcnt(0)")
    if a.s6 == "own": stamp(6)
    E("  s_barrier")
    stamp(7)
    emit_stamp_dump(E, a, cnt="s24")
if a.delay:
    E(f'''  s_waitcnt vmcnt(0)
  s_barrier
  s_cmp_lg_u32 s14, 0
  s_cbranch_scc1 L_end
  s_memrealtime s[20:21]
  s_waitcnt lgkmcnt(0)
  s_add_u32 s19, s20, {a.delay}
L_spin2:
  s_memrealtime s[20:21]
  s_waitcnt lgkmcnt(0)
  s_sub_u32 s22, s19, s20
  s_cmp_gt_i32 s22, 0
  s_cbranch_scc1 L_spin2''')
E("L_end:\n  s_endpgm")
E(kd(KN, 128, 64))
open(a.o, "w").write("\n".join(o) + "\n")
print(build(a.o))
```

```python
import sys, argparse
from asmlib import *
from common import *
ap = argparse.ArgumentParser()
ap.add_argument("-o", default="v4.s")
ap.add_argument("--fw", type=int, default=11)
ap.add_argument("--ob", type=int, default=17)
ap.add_argument("--os", type=int, default=2)
ap.add_argument("--stamp", action="store_true")
ap.add_argument("--allw", action="store_true")
ap.add_argument("--fine", action="store_true")
ap.add_argument("--exf", default="")
ap.add_argument("--ld", default="nt")
ap.add_argument("--st", default="nt")
ap.add_argument("--sy", default="sc1")
ap.add_argument("--pl", default="sc1")
ap.add_argument("--pat", default="wave")
ap.add_argument("--thr", type=int, default=-1)
ap.add_argument("--s6", default="")
ap.add_argument("--xw", type=int, default=0)
ap.add_argument("--wb0", type=int, default=0)
ap.add_argument("--wbw", type=int, default=1)
ap.add_argument("--wbs", type=int, default=-1)
ap.add_argument("--delay", type=int, default=0)
ap.add_argument("--probe", default="")
ap.add_argument("--prio", type=int, default=3)
ap.add_argument("--sleep", type=int, default=0)
ap.add_argument("--sleep2", type=int, default=0)
ap.add_argument("--maxpoll", type=int, default=200000)
a = ap.parse_args()
if a.exf or a.allw: a.stamp = True
o = []; E = o.append
def stamp(k):
    if a.stamp: E(f"  s_memrealtime s[{32+2*k}:{33+2*k}]")
def fine(k):
    if a.fine: stamp(k)
NC = 16
LA, LB, LS = 0, 8192, 10240
FIN = 98304
NCS = 7
E(HEADER + "; @launch grid=(256,1,1) block=(1024,1,1) lds=10752")
E(f""".amdgcn_target "amdgcn-amd-amdhsa--gfx950"
.text
.globl {KN}
.p2align 8
.type {KN},@function
{KN}:""")
D = 4; U = 40; P = 94; SEL = P; ACC = P + 4; T = P + 8; S = P + 16
M = D + 3
VI, VA, VB = 120, 121, 122
if a.pat == "wave":
    ADDR = "  s_mul_i32 s3, s2, 110592\n  s_mul_i32 s15, s14, 6912\n  s_add_u32 s3, s3, 3072\n  s_add_u32 s3, s3, s15"
elif a.pat == "seq":
    ADDR = "  s_and_b32 s15, s14, 3\n  s_lshl_b32 s3, s2, 2\n  s_add_u32 s3, s3, s15\n  s_mul_i32 s3, s3, 768\n  s_lshr_b32 s15, s14, 2\n  s_mul_i32 s15, s15, 7077888\n  s_add_u32 s3, s3, s15"
    STEP = 786432
elif a.pat == "seqx":
    ADDR = "  s_and_b32 s3, s2, 7\n  s_lshl_b32 s3, s3, 5\n  s_lshr_b32 s15, s2, 3\n  s_add_u32 s3, s3, s15\n  s_lshl_b32 s3, s3, 2\n  s_and_b32 s15, s14, 3\n  s_add_u32 s3, s3, s15\n  s_mul_i32 s3, s3, 768\n  s_lshr_b32 s15, s14, 2\n  s_mul_i32 s15, s15, 7077888\n  s_add_u32 s3, s3, s15"
    STEP = 786432
elif a.pat == "seqw":
    ADDR = "  s_and_b32 s15, s14, 3\n  s_lshl_b32 s15, s15, 8\n  s_add_u32 s3, s2, s15\n  s_mul_i32 s3, s3, 768\n  s_lshr_b32 s15, s14, 2\n  s_mul_i32 s15, s15, 7077888\n  s_add_u32 s3, s3, s15"
    STEP = 786432
elif a.pat == "seq3":
    ADDR = "  s_and_b32 s15, s14, 3\n  s_lshl_b32 s3, s2, 2\n  s_add_u32 s3, s3, s15\n  s_mul_i32 s3, s3, 2304\n  s_lshr_b32 s15, s14, 2\n  s_mul_i32 s15, s15, 7077888\n  s_add_u32 s3, s3, s15"
    STEP = None
elif a.pat == "seq16":
    ADDR = "  s_lshl_b32 s3, s2, 4\n  s_add_u32 s3, s3, s14\n  s_mul_i32 s3, s3, 768"
    STEP = 3145728
elif a.pat == "wg":
    ADDR = "  s_mul_i32 s3, s2, 110592\n  s_and_b32 s15, s14, 3\n  s_mul_i32 s15, s15, 768\n  s_add_u32 s3, s3, s15\n  s_lshr_b32 s15, s14, 2\n  s_mul_i32 s15, s15, 27648\n  s_add_u32 s3, s3, s15"
    STEP = 3072
PROBE = ""
if a.probe:
    base = {"x": "s[4:5]", "o": "s[8:9]", "w": "s[12:13]"}[a.probe]
    PROBE = f'''  s_or_b32 s18, s2, s14
  s_cmp_lg_u32 s18, 0
  s_cbranch_scc1 L_pwait
  s_mov_b64 exec, 1
  v_mov_b32 v5, 0x100000
  s_mov_b32 s18, 13
L_pwarm:
  global_load_dword v6, v5, {base} nt
  s_waitcnt vmcnt(0)
  v_add_u32 v5, 0x200000, v5
  s_sub_u32 s18, s18, 1
  s_cbranch_scc0 L_pwarm
  v_mov_b32 v5, 0x1000
  s_mov_b32 s18, 31
  s_memrealtime s[44:45]
  s_waitcnt lgkmcnt(0)
L_ploop:
  global_load_dword v6, v5, {base} nt
  s_waitcnt vmcnt(0)
  v_and_b32 v6, 0, v6
  v_add_u32 v5, 0xc9080, v5
  v_add_u32 v5, v6, v5
  s_sub_u32 s18, s18, 1
  s_cbranch_scc0 L_ploop
  s_memrealtime s[46:47]
  s_waitcnt lgkmcnt(0)
  s_sub_u32 s52, s46, s44
  v_mov_b32 v5, 252
  v_mov_b32 v6, s52
  global_store_dword v5, v6, s[10:11] sc1
  s_mov_b64 exec, -1
L_pwait:
  v_mov_b32 v5, 252
  s_mov_b32 s18, 100000
L_pw2:
  global_load_dword v6, v5, s[10:11] sc1
  s_waitcnt vmcnt(0)
  v_readfirstlane_b32 s52, v6
  s_sub_u32 s18, s18, 1
  s_cbranch_scc1 L_pw3
  s_sleep 8
  s_cmp_eq_u32 s52, 0
  s_cbranch_scc1 L_pw2
L_pw3:
  s_cmp_eq_u32 s15, 0'''
stamp(0)
E(f"""  s_cmp_ge_u32 s2, 256
  s_cbranch_scc1 L_end
  s_load_dwordx4 s[4:7], s[0:1], 0
  s_load_dwordx4 s[8:11], s[0:1], 16
  s_load_dwordx2 s[12:13], s[0:1], 32
  v_lshrrev_b32 v2, 6, v0
  v_and_b32 v3, 63, v0
  v_readfirstlane_b32 s14, v2
  v_mul_u32_u24 v0, 12, v3
{ADDR}
  v_add_u32 v1, s3, v0
  s_cmp_lt_u32 s2, {NC}
  s_cselect_b32 s15, 1, 0
  s_cmp_eq_u32 s14, 0
  s_cselect_b32 s15, s15, 0
  s_cmp_eq_u32 s15, 0
  s_waitcnt lgkmcnt(0)
{PROBE}
  s_cbranch_scc1 L_noclear
  s_mul_i32 s18, s2, {NCS*1024}
  s_add_u32 s18, s18, 4096
  v_lshl_add_u32 v{T}, v3, 4, s18
  v_mov_b32 v{P}, -1
  v_mov_b32 v{P+1}, -1
  v_mov_b32 v{P+2}, -1
  v_mov_b32 v{P+3}, -1""")
for k in range(NCS):
    E(f"  global_store_dwordx4 v{T}, v[{P}:{P+3}], s[12:13] offset:{1024*k-4096} {a.sy}")
E("L_noclear:")
if a.wb0:
    E(f"  s_cmp_ge_u32 s2, {a.wb0}\n  s_cbranch_scc1 L_nowb\n  s_cmp_lg_u32 s14, {a.wbw}\n  s_cbranch_scc1 L_nowb\n  buffer_wbl2 sc1\n  s_waitcnt vmcnt(0)\nL_nowb:")
    if a.wbs >= 0: stamp(a.wbs)
for i in range(9):
    if a.pat == "wave":
        E(f"  global_load_dwordx3 v[{D+4*i}:{D+4*i+2}], v1, s[4:5] offset:{(i-4)*768} {a.ld}")
    else:
        if STEP:
            E(f"  global_load_dwordx3 v[{D+4*i}:{D+4*i+2}], v1, s[4:5] {a.ld}")
            if i < 8: E(f"  s_add_u32 s4, s4, {STEP}\n  s_addc_u32 s5, s5, 0")
        else:
            E(f"  global_load_dwordx3 v[{D+4*i}:{D+4*i+2}], v1, s[4:5] offset:{768*(i%3)} {a.ld}")
            if i in (2, 5): E(f"  s_add_u32 s4, s4, 2359296\n  s_addc_u32 s5, s5, 0")
if not a.fine: stamp(1)
E(f"""  s_load_dwordx2 s[16:17], s[6:7], 0
  s_cmp_eq_u32 s15, 0
  s_cbranch_scc1 L_noflag
  s_waitcnt vmcnt(9)
  s_lshl_b32 s18, s2, 2
  v_mov_b32 v{T}, 1
  v_mov_b32 v{T+1}, s18
  s_mov_b64 exec, 1
  global_store_dword v{T+1}, v{T}, s[10:11] {a.sy}
  s_mov_b64 exec, -1
  s_waitcnt vmcnt(0)
L_noflag:""")
for i in range(9):
    E(f"  v_mov_b32 v{D+4*i+3}, 0")
E(f"""  v_and_b32 v{T}, 15, v3
  v_lshrrev_b32 v{T+1}, 2, v{T}
  v_sub_u32 v{T+1}, v{T}, v{T+1}
  v_and_b32 v{T+2}, 3, v{T}
  v_cmp_ne_u32 s[18:19], 3, v{T+2}
  v_cmp_gt_u32 s[20:21], 8, v{T}
  v_and_b32 v{T+2}, 1, v{T+1}
  v_lshlrev_b32 v{T+2}, 4, v{T+2}
  s_and_b64 s[18:19], s[18:19], s[20:21]
  v_mov_b32 v{T+3}, 0x3f80
  v_lshlrev_b32 v{T+2}, v{T+2}, v{T+3}
  v_lshrrev_b32 v{T+1}, 1, v{T+1}
  v_cndmask_b32 v{T+2}, 0, v{T+2}, s[18:19]
  v_cmp_eq_u32 s[18:19], 0, v{T+1}
  v_cmp_eq_u32 s[20:21], 1, v{T+1}
  v_cmp_eq_u32 s[22:23], 2, v{T+1}
  v_mov_b32 v{SEL+3}, 0
  v_cndmask_b32 v{SEL}, 0, v{T+2}, s[18:19]
  v_cndmask_b32 v{SEL+1}, 0, v{T+2}, s[20:21]
  v_cndmask_b32 v{SEL+2}, 0, v{T+2}, s[22:23]
  v_lshrrev_b32 v{T+1}, 4, v3
  v_lshlrev_b32 v{T+1}, 4, v{T+1}
  v_lshl_add_u32 v{T+1}, v{T}, 5, v{T+1}
  s_lshl_b32 s26, s14, 9
  v_add_u32 v{T+1}, s26, v{T+1}
  s_mov_b32 s25, 0xffff0000
  v_lshlrev_b32 v3, 2, v3
  s_mov_b32 s24, {a.maxpoll}
  s_mov_b32 s27, {a.maxpoll}""")
E(f"""  s_lshl_b32 s18, s14, 8
  v_add_u32 v{VI}, s18, v3
  v_mul_u32_u24 v2, 171, v{VI}
  v_lshrrev_b32 v2, 11, v2
  v_lshl_add_u32 v2, v2, 2, v{VI}
  v_and_b32 v{VA}, 0x7c, v{VI}
  v_lshrrev_b32 v{VI}, 7, v{VI}
  v_lshlrev_b32 v{VI}, 15, v{VI}
  s_lshl_b32 s18, s2, 7
  v_add3_u32 v{VI}, v{VI}, v{VA}, s18""")
for i in range(9):
    E(f"  s_waitcnt vmcnt({8-i})")
    c = "0" if i == 0 else f"v[{ACC}:{ACC+3}]"
    E(f"  v_mfma_f32_16x16x32_bf16 v[{ACC}:{ACC+3}], v[{SEL}:{SEL+3}], v[{D+4*i}:{D+4*i+3}], {c}")
if not a.fine: stamp(2)
E(f"""  s_nop 6
  s_mov_b32 exec_hi, 0
  ds_write_b128 v{T+1}, v[{ACC}:{ACC+3}] offset:{LA}
  s_mov_b32 exec_hi, -1
  s_cmp_lg_u32 s14, {a.fw}
  s_cbranch_scc1 L_bar2
  s_mov_b64 exec, {(1<<NC)-1}
L_flagpoll:
  global_load_dword v{T+2}, v3, s[10:11] {a.pl}
  s_waitcnt vmcnt(0)
  v_cmp_ne_u32 vcc, 0, v{T+2}
  s_sub_u32 s27, s27, 1
  s_cbranch_scc1 L_flagok
  s_cmp_eq_u64 vcc, exec
  s_cbranch_scc0 L_flagpoll
L_flagok:
  s_mov_b64 exec, -1
L_bar2:
  s_sub_u32 s28, s2, {a.ob}
  s_waitcnt lgkmcnt(0)
  s_barrier""")
stamp(3)
E("  s_cmp_ge_u32 s14, 2\n  s_cbranch_scc1 L_nopub")
if a.prio: E(f"  s_setprio {a.prio}")
for k in range(8):
    E(f"  ds_read2st64_b32 v[{P+2*k}:{P+2*k+1}], v2 offset0:{4*k} offset1:{4*k+2}")
E("  s_cmp_eq_u32 s14, 0\n  s_cselect_b32 s18, -1, 0")
for k in range(1, 8):
    E(f"  s_waitcnt lgkmcnt({7-k})")
    E(f"  v_pk_add_f32 v[{P}:{P+1}], v[{P}:{P+1}], v[{P+2*k}:{P+2*k+1}]")
E(f"""  v_add_f32 v{P}, v{P}, v{P+1}
  s_mov_b32 exec_hi, s18
  v_min_u32 v{P}, -2, v{P}""")
fine(1)
E(f"""  global_store_dword v{VI}, v{P}, s[12:13] {a.sy}
  s_mov_b32 exec_hi, -1
L_nopub:""")
E(f"""  s_cmp_eq_u32 s28, 0
  s_cselect_b32 s29, 0, 3
  s_cmp_eq_u32 s28, {a.os}
  s_cselect_b32 s29, 1, s29
  s_cmp_eq_u32 s28, {2*a.os}
  s_cselect_b32 s29, 2, s29
  s_cmp_eq_u32 s29, 3
  s_cbranch_scc1 L_notown
  s_lshl_b32 s18, s29, 15
  s_lshl_b32 s19, s14, 11
  s_add_u32 s18, s18, s19
  v_add_u32 v{VA}, s18, v3
  s_lshl_b32 s19, s14, 7
  v_add_u32 v{VB}, s19, v3
L_own:""")
Q = P + 16
for k in range(8):
    E(f"  global_load_dword v{Q+k}, v{VA}, s[12:13] offset:{256*k} {a.pl}")
E(f"""  s_waitcnt vmcnt(5)
  v_max3_u32 v{M}, v{Q}, v{Q+1}, v{Q+2}
  v_pk_add_f32 v[{Q}:{Q+1}], v[{Q}:{Q+1}], v[{Q}:{Q+1}] op_sel:[0,0] op_sel_hi:[1,1] neg_lo:[0,0]""".rsplit("\n",1)[0])
E(f"""  v_add_f32 v{P}, v{Q}, v{Q+1}
  v_add_f32 v{P}, v{P}, v{Q+2}
  s_waitcnt vmcnt(3)
  v_max3_u32 v{M}, v{M}, v{Q+3}, v{Q+4}
  v_add_f32 v{P}, v{P}, v{Q+3}
  v_add_f32 v{P}, v{P}, v{Q+4}
  s_waitcnt vmcnt(1)
  v_max3_u32 v{M}, v{M}, v{Q+5}, v{Q+6}
  v_add_f32 v{P}, v{P}, v{Q+5}
  v_add_f32 v{P}, v{P}, v{Q+6}
  s_waitcnt vmcnt(0)
  v_max_u32 v{M}, v{M}, v{Q+7}
  v_add_f32 v{P}, v{P}, v{Q+7}
  v_cmp_eq_u32 vcc, -1, v{M}
  v_mov_b32 v{P+1}, v{P}
  s_sub_u32 s24, s24, 1
  s_cbranch_scc1 L_own_ok
  s_cbranch_vccz L_own_ok""")
if a.sleep: E(f"  s_sleep {a.sleep}")
E(f"""  s_branch L_own
L_own_ok:""")
if a.fine: E("  s_cmp_lt_u32 s14, 2\n  s_cbranch_scc1 L_f1"); stamp(1); E("L_f1:")
E(f"""  v_permlane32_swap_b32 v{P}, v{P+1}
  s_mov_b32 exec_hi, 0
  v_add_f32 v{P}, v{P}, v{P+1}
  ds_write_b32 v{VB}, v{P} offset:{LB}
  s_mov_b32 exec_hi, -1
  s_movk_i32 s18, {LB}
  v_and_b32 v{VA}, 0x80, v3
  v_mul_u32_u24 v{VA}, 7, v{VA}
  v_add3_u32 v{VA}, v{VA}, v3, s18
  s_waitcnt lgkmcnt(0)
  s_barrier
  s_cmp_lg_u32 s14, 0
  s_cbranch_scc1 L_notown""")
for k in range(4):
    E(f"  ds_read2_b32 v[{P+2*k}:{P+2*k+1}], v{VA} offset0:{64*k} offset1:{64*k+32}".replace(f"v{VA} ", f"v{VA} "))
E(f"""  s_lshl_b32 s18, s29, 7
  s_add_u32 s18, s18, {FIN}
  v_add_u32 v{VB}, s18, v3""")
for k in range(1, 4):
    E(f"  s_waitcnt lgkmcnt({3-k})")
    E(f"  v_pk_add_f32 v[{P}:{P+1}], v[{P}:{P+1}], v[{P+2*k}:{P+2*k+1}]")
E(f"""  v_add_f32 v{P}, v{P}, v{P+1}
  v_mov_b32 v{P+1}, v{P}
  s_nop 1
  v_permlane32_swap_b32 v{P}, v{P+1}
  s_mov_b32 exec_hi, 0
  v_add_f32 v{P}, v{P}, v{P+1}
  v_min_u32 v{P}, -2, v{P}
  global_store_dword v{VB}, v{P}, s[12:13] {a.sy}
  s_mov_b32 exec_hi, -1""")
fine(2)
E("L_notown:")
for i in range(9):
    for d in range(3):
        E(f"  v_lshlrev_b32 v{U+6*i+2*d}, 16, v{D+4*i+d}")
        E(f"  v_and_b32 v{U+6*i+2*d+1}, s25, v{D+4*i+d}")
E(f"""  s_cmp_ge_u32 s14, 2
  s_cbranch_scc1 L_wait
  s_mul_i32 s22, s14, 192
  s_add_u32 s23, s22, {FIN-4}
  v_add_u32 v{VA}, s23, v3
  s_add_u32 s23, s22, {LS-4}
  v_add_u32 v{VB}, s23, v3
  s_lshl_b32 s18, s16, 16
  s_and_b32 s19, s16, 0xffff0000
  s_lshl_b32 s20, s17, 16
  s_mov_b32 s21, {f2u(1.0/147456.0)}
  s_lshr_b32 s23, 0x3ffff, s14
  s_cmp_eq_u32 s14, 0
  s_cselect_b32 exec_lo, -2, -1
  s_mov_b32 exec_hi, s23
  s_mov_b32 s30, {a.maxpoll}
L_poll:
  global_load_dword v{P}, v{VA}, s[12:13] {a.pl}
  s_waitcnt vmcnt(0)
  v_cmp_eq_u32 vcc, -1, v{P}
  s_sub_u32 s30, s30, 1
  s_cbranch_scc1 L_poll_ok
  s_cbranch_vccz L_poll_ok""")
if a.sleep2: E(f"  s_sleep {a.sleep2}")
E("  s_branch L_poll\nL_poll_ok:")
stamp(4)
if a.fine: E("  s_mov_b32 s27, s30")
emit_gate1(E, P, P+2)
E(f"""  s_mov_b32 exec_lo, -2
  s_mov_b32 exec_hi, 0x1ffff
  ds_write_b32 v{VB}, v{P}
  s_mov_b64 exec, -1""")
if a.prio: E("  s_setprio 0")
E(f"""  s_waitcnt lgkmcnt(0)
L_wait:
  v_and_b32 v3, 60, v3
  v_mul_u32_u24 v3, 6, v3
  s_barrier""")
stamp(5)
for j in range(3):
    E(f"  ds_read_b64 v[{S+2*j}:{S+2*j+1}], v3 offset:{LS+8*j}")
E("  s_waitcnt lgkmcnt(0)")
for i in range(9):
    for d in range(3):
        E(f"  v_pk_mul_f32 v[{U+6*i+2*d}:{U+6*i+2*d+1}], v[{U+6*i+2*d}:{U+6*i+2*d+1}], v[{S+2*d}:{S+2*d+1}]")
    for d in range(3):
        E(f"  v_cvt_pk_bf16_f32 v{D+4*i+d}, v{U+6*i+2*d}, v{U+6*i+2*d+1}")
    if a.thr >= 0 and i > a.thr: E(f"  s_waitcnt vmcnt({a.thr})")
    if a.pat == "wave":
        E(f"  global_store_dwordx3 v1, v[{D+4*i}:{D+4*i+2}], s[8:9] offset:{(i-4)*768} {a.st}")
    else:
        if STEP:
            E(f"  global_store_dwordx3 v1, v[{D+4*i}:{D+4*i+2}], s[8:9] {a.st}")
            if i < 8: E(f"  s_add_u32 s8, s8, {STEP}\n  s_addc_u32 s9, s9, 0")
        else:
            E(f"  global_store_dwordx3 v1, v[{D+4*i}:{D+4*i+2}], s[8:9] offset:{768*(i%3)} {a.st}")
            if i in (2, 5): E(f"  s_add_u32 s8, s8, 2359296\n  s_addc_u32 s9, s9, 0")
    if a.s6 == "first" and i == 0:
        E("  s_waitcnt vmcnt(0)"); stamp(6)
if a.stamp:
    if a.s6 == "": stamp(6)
    E("  s_waitcnt vmcnt(0)")
    if a.s6 == "own": stamp(6)
    E("  s_barrier")
    stamp(7)
    emit_stamp_dump(E, a, cnt="s24")
if a.probe:
    E(f'''  s_or_b32 s18, s2, s14
  s_cmp_lg_u32 s18, 0
  s_cbranch_scc1 L_end
  s_waitcnt vmcnt(0)
  s_mov_b64 exec, 1
  v_mov_b32 v5, 0
  v_mov_b32 v6, s52
  global_store_dword v5, v6, s[10:11] offset:0 sc1
  s_min_u32 s52, s52, 10000
  s_mul_i32 s19, s52, {a.delay}
  s_memrealtime s[20:21]
  s_waitcnt lgkmcnt(0)
  s_add_u32 s19, s19, s20
L_spin3:
  s_memrealtime s[20:21]
  s_waitcnt lgkmcnt(0)
  s_sub_u32 s22, s19, s20
  s_cmp_gt_i32 s22, 0
  s_cbranch_scc1 L_spin3''')
elif a.delay:
    E(f'''  s_waitcnt vmcnt(0)
  s_barrier
  s_cmp_lg_u32 s14, 0
  s_cbranch_scc1 L_end
  s_memrealtime s[20:21]
  s_waitcnt lgkmcnt(0)
  s_add_u32 s19, s20, {a.delay}
L_spin2:
  s_memrealtime s[20:21]
  s_waitcnt lgkmcnt(0)
  s_sub_u32 s22, s19, s20
  s_cmp_gt_i32 s22, 0
  s_cbranch_scc1 L_spin2''')
E("L_end:\n  s_endpgm")
E(kd(KN, 128, 64))
open(a.o, "w").write("\n".join(o) + "\n")
print(build(a.o))
```

```python
import sys, argparse
from asmlib import *
from common import *
ap = argparse.ArgumentParser()
ap.add_argument("-o", default="v4.s")
ap.add_argument("--fw", type=int, default=11)
ap.add_argument("--ob", type=int, default=17)
ap.add_argument("--os", type=int, default=2)
ap.add_argument("--stamp", action="store_true")
ap.add_argument("--allw", action="store_true")
ap.add_argument("--fine", action="store_true")
ap.add_argument("--exf", default="")
ap.add_argument("--ld", default="nt")
ap.add_argument("--st", default="nt")
ap.add_argument("--sy", default="sc1")
ap.add_argument("--pl", default="sc1")
ap.add_argument("--pat", default="wave")
ap.add_argument("--thr", type=int, default=-1)
ap.add_argument("--s6", default="")
ap.add_argument("--xw", type=int, default=0)
ap.add_argument("--wb0", type=int, default=0)
ap.add_argument("--wbw", type=int, default=1)
ap.add_argument("--wbs", type=int, default=-1)
ap.add_argument("--delay", type=int, default=0)
ap.add_argument("--probe", default="")
ap.add_argument("--prio", type=int, default=3)
ap.add_argument("--sleep", type=int, default=0)
ap.add_argument("--sleep2", type=int, default=0)
ap.add_argument("--cpf", type=int, default=-1)
ap.add_argument("--dual", type=int, default=0)
ap.add_argument("--gw", type=int, default=12)
ap.add_argument("--lsleep", type=int, default=0)
ap.add_argument("--xc", type=int, default=0)
ap.add_argument("--xs", type=int, default=384)
ap.add_argument("--maxpoll", type=int, default=200000)
a = ap.parse_args()
if a.exf or a.allw: a.stamp = True
o = []; E = o.append
def stamp(k):
    if a.stamp: E(f"  s_memrealtime s[{32+2*k}:{33+2*k}]")
def fine(k):
    if a.fine: stamp(k)
NC = 16
LA, LB, LS = 0, 8192, 10240
FIN = 98304
NCS = 7
E(HEADER + "; @launch grid=(256,1,1) block=(1024,1,1) lds=11008")
E(f""".amdgcn_target "amdgcn-amd-amdhsa--gfx950"
.text
.globl {KN}
.p2align 8
.type {KN},@function
{KN}:""")
D = 4; U = 40; P = 94; SEL = P; ACC = P + 4; T = P + 8; S = P + 16
M = D + 3
VI, VA, VB = 120, 121, 122
if a.pat == "wave":
    ADDR = "  s_mul_i32 s3, s2, 110592\n  s_mul_i32 s15, s14, 6912\n  s_add_u32 s3, s3, 3072\n  s_add_u32 s3, s3, s15"
elif a.pat == "seq":
    ADDR = "  s_and_b32 s15, s14, 3\n  s_lshl_b32 s3, s2, 2\n  s_add_u32 s3, s3, s15\n  s_mul_i32 s3, s3, 768\n  s_lshr_b32 s15, s14, 2\n  s_mul_i32 s15, s15, 7077888\n  s_add_u32 s3, s3, s15"
    STEP = 786432
elif a.pat == "seqx":
    ADDR = "  s_and_b32 s3, s2, 7\n  s_lshl_b32 s3, s3, 5\n  s_lshr_b32 s15, s2, 3\n  s_add_u32 s3, s3, s15\n  s_lshl_b32 s3, s3, 2\n  s_and_b32 s15, s14, 3\n  s_add_u32 s3, s3, s15\n  s_mul_i32 s3, s3, 768\n  s_lshr_b32 s15, s14, 2\n  s_mul_i32 s15, s15, 7077888\n  s_add_u32 s3, s3, s15"
    STEP = 786432
elif a.pat == "seqw":
    ADDR = "  s_and_b32 s15, s14, 3\n  s_lshl_b32 s15, s15, 8\n  s_add_u32 s3, s2, s15\n  s_mul_i32 s3, s3, 768\n  s_lshr_b32 s15, s14, 2\n  s_mul_i32 s15, s15, 7077888\n  s_add_u32 s3, s3, s15"
    STEP = 786432
elif a.pat == "seq3":
    ADDR = "  s_and_b32 s15, s14, 3\n  s_lshl_b32 s3, s2, 2\n  s_add_u32 s3, s3, s15\n  s_mul_i32 s3, s3, 2304\n  s_lshr_b32 s15, s14, 2\n  s_mul_i32 s15, s15, 7077888\n  s_add_u32 s3, s3, s15"
    STEP = None
elif a.pat == "seq16":
    ADDR = "  s_lshl_b32 s3, s2, 4\n  s_add_u32 s3, s3, s14\n  s_mul_i32 s3, s3, 768"
    STEP = 3145728
elif a.pat == "wg":
    ADDR = "  s_mul_i32 s3, s2, 110592\n  s_and_b32 s15, s14, 3\n  s_mul_i32 s15, s15, 768\n  s_add_u32 s3, s3, s15\n  s_lshr_b32 s15, s14, 2\n  s_mul_i32 s15, s15, 27648\n  s_add_u32 s3, s3, s15"
    STEP = 3072
PROBE = ""
if a.probe:
    base = {"x": "s[4:5]", "o": "s[8:9]", "w": "s[12:13]"}[a.probe]
    PROBE = f'''  s_or_b32 s18, s2, s14
  s_cmp_lg_u32 s18, 0
  s_cbranch_scc1 L_pwait
  s_mov_b64 exec, 1
  v_mov_b32 v5, 0x100000
  s_mov_b32 s18, 13
L_pwarm:
  global_load_dword v6, v5, {base} nt
  s_waitcnt vmcnt(0)
  v_add_u32 v5, 0x200000, v5
  s_sub_u32 s18, s18, 1
  s_cbranch_scc0 L_pwarm
  v_mov_b32 v5, 0x1000
  s_mov_b32 s18, 31
  s_memrealtime s[44:45]
  s_waitcnt lgkmcnt(0)
L_ploop:
  global_load_dword v6, v5, {base} nt
  s_waitcnt vmcnt(0)
  v_and_b32 v6, 0, v6
  v_add_u32 v5, 0xc9080, v5
  v_add_u32 v5, v6, v5
  s_sub_u32 s18, s18, 1
  s_cbranch_scc0 L_ploop
  s_memrealtime s[46:47]
  s_waitcnt lgkmcnt(0)
  s_sub_u32 s52, s46, s44
  v_mov_b32 v5, 252
  v_mov_b32 v6, s52
  global_store_dword v5, v6, s[10:11] sc1
  s_mov_b64 exec, -1
L_pwait:
  v_mov_b32 v5, 252
  s_mov_b32 s18, 100000
L_pw2:
  global_load_dword v6, v5, s[10:11] sc1
  s_waitcnt vmcnt(0)
  v_readfirstlane_b32 s52, v6
  s_sub_u32 s18, s18, 1
  s_cbranch_scc1 L_pw3
  s_sleep 8
  s_cmp_eq_u32 s52, 0
  s_cbranch_scc1 L_pw2
L_pw3:
  s_cmp_eq_u32 s15, 0'''
PRESET = ""
if a.dual:
    PRESET = f"""  s_cmp_lg_u32 s14, 2
  s_cbranch_scc1 L_nopre
  v_mov_b32 v{T+2}, -1
  ds_write2st64_b32 v3, v{T+2}, v{T+2} offset0:{LS//256} offset1:{LS//256+1}
L_nopre:
"""
XSEL = ""
if a.xc:
    XSEL = f"  s_getreg_b32 s31, hwreg(HW_REG_XCC_ID, 0, 3)\n  s_and_b32 s31, s31, {a.xc-1}\n  s_mul_i32 s31, s31, {a.xs}\n  s_add_u32 s23, s23, s31\n"
def CPF():
    if a.cpf < 0: return
    E(f"""  s_cmp_lg_u32 s14, {a.cpf}
  s_cbranch_scc1 L_nocpf
  s_getpc_b64 s[60:61]
L_pc:
  v_lshlrev_b32 v127, 6, v3
  v_min_u32 v127, L_end-L_pc, v127
  global_load_dword v127, v127, s[60:61]
L_nocpf:""")
stamp(0)
E(f"""  s_cmp_ge_u32 s2, 256
  s_cbranch_scc1 L_end
  s_load_dwordx4 s[4:7], s[0:1], 0
  s_load_dwordx4 s[8:11], s[0:1], 16
  s_load_dwordx2 s[12:13], s[0:1], 32
  v_lshrrev_b32 v2, 6, v0
  v_and_b32 v3, 63, v0
  v_readfirstlane_b32 s14, v2
  v_mul_u32_u24 v0, 12, v3
{ADDR}
  v_add_u32 v1, s3, v0
  s_cmp_lt_u32 s2, {NC}
  s_cselect_b32 s15, 1, 0
  s_cmp_eq_u32 s14, 0
  s_cselect_b32 s15, s15, 0
  s_cmp_eq_u32 s15, 0
  s_waitcnt lgkmcnt(0)
{PROBE}
  s_cbranch_scc1 L_noclear
  s_mul_i32 s18, s2, {NCS*1024}
  s_add_u32 s18, s18, 4096
  v_lshl_add_u32 v{T}, v3, 4, s18
  v_mov_b32 v{P}, -1
  v_mov_b32 v{P+1}, -1
  v_mov_b32 v{P+2}, -1
  v_mov_b32 v{P+3}, -1""")
for k in range(NCS):
    E(f"  global_store_dwordx4 v{T}, v[{P}:{P+3}], s[12:13] offset:{1024*k-4096} {a.sy}")
E("L_noclear:")
CPF()
if a.wb0:
    E(f"  s_cmp_ge_u32 s2, {a.wb0}\n  s_cbranch_scc1 L_nowb\n  s_cmp_lg_u32 s14, {a.wbw}\n  s_cbranch_scc1 L_nowb\n  buffer_wbl2 sc1\n  s_waitcnt vmcnt(0)\nL_nowb:")
    if a.wbs >= 0: stamp(a.wbs)
for i in range(9):
    if a.pat == "wave":
        E(f"  global_load_dwordx3 v[{D+4*i}:{D+4*i+2}], v1, s[4:5] offset:{(i-4)*768} {a.ld}")
    else:
        if STEP:
            E(f"  global_load_dwordx3 v[{D+4*i}:{D+4*i+2}], v1, s[4:5] {a.ld}")
            if i < 8: E(f"  s_add_u32 s4, s4, {STEP}\n  s_addc_u32 s5, s5, 0")
        else:
            E(f"  global_load_dwordx3 v[{D+4*i}:{D+4*i+2}], v1, s[4:5] offset:{768*(i%3)} {a.ld}")
            if i in (2, 5): E(f"  s_add_u32 s4, s4, 2359296\n  s_addc_u32 s5, s5, 0")
if not a.fine: stamp(1)
E(f"""  s_load_dwordx2 s[16:17], s[6:7], 0
  s_cmp_eq_u32 s15, 0
  s_cbranch_scc1 L_noflag
  s_waitcnt vmcnt(9)
  s_lshl_b32 s18, s2, 2
  v_mov_b32 v{T}, 1
  v_mov_b32 v{T+1}, s18
  s_mov_b64 exec, 1
  global_store_dword v{T+1}, v{T}, s[10:11] {a.sy}
  s_mov_b64 exec, -1
  s_waitcnt vmcnt(0)
L_noflag:""")
for i in range(9):
    E(f"  v_mov_b32 v{D+4*i+3}, 0")
E(f"""  v_and_b32 v{T}, 15, v3
  v_lshrrev_b32 v{T+1}, 2, v{T}
  v_sub_u32 v{T+1}, v{T}, v{T+1}
  v_and_b32 v{T+2}, 3, v{T}
  v_cmp_ne_u32 s[18:19], 3, v{T+2}
  v_cmp_gt_u32 s[20:21], 8, v{T}
  v_and_b32 v{T+2}, 1, v{T+1}
  v_lshlrev_b32 v{T+2}, 4, v{T+2}
  s_and_b64 s[18:19], s[18:19], s[20:21]
  v_mov_b32 v{T+3}, 0x3f80
  v_lshlrev_b32 v{T+2}, v{T+2}, v{T+3}
  v_lshrrev_b32 v{T+1}, 1, v{T+1}
  v_cndmask_b32 v{T+2}, 0, v{T+2}, s[18:19]
  v_cmp_eq_u32 s[18:19], 0, v{T+1}
  v_cmp_eq_u32 s[20:21], 1, v{T+1}
  v_cmp_eq_u32 s[22:23], 2, v{T+1}
  v_mov_b32 v{SEL+3}, 0
  v_cndmask_b32 v{SEL}, 0, v{T+2}, s[18:19]
  v_cndmask_b32 v{SEL+1}, 0, v{T+2}, s[20:21]
  v_cndmask_b32 v{SEL+2}, 0, v{T+2}, s[22:23]
  v_lshrrev_b32 v{T+1}, 4, v3
  v_lshlrev_b32 v{T+1}, 4, v{T+1}
  v_lshl_add_u32 v{T+1}, v{T}, 5, v{T+1}
  s_lshl_b32 s26, s14, 9
  v_add_u32 v{T+1}, s26, v{T+1}
  s_mov_b32 s25, 0xffff0000
  v_lshlrev_b32 v3, 2, v3
  s_mov_b32 s24, {a.maxpoll}
  s_mov_b32 s27, {a.maxpoll}""")
E(f"""  s_lshl_b32 s18, s14, 8
  v_add_u32 v{VI}, s18, v3
  v_mul_u32_u24 v2, 171, v{VI}
  v_lshrrev_b32 v2, 11, v2
  v_lshl_add_u32 v2, v2, 2, v{VI}
  v_and_b32 v{VA}, 0x7c, v{VI}
  v_lshrrev_b32 v{VI}, 7, v{VI}
  v_lshlrev_b32 v{VI}, 15, v{VI}
  s_lshl_b32 s18, s2, 7
  v_add3_u32 v{VI}, v{VI}, v{VA}, s18""")
for i in range(9):
    E(f"  s_waitcnt vmcnt({8-i})")
    c = "0" if i == 0 else f"v[{ACC}:{ACC+3}]"
    E(f"  v_mfma_f32_16x16x32_bf16 v[{ACC}:{ACC+3}], v[{SEL}:{SEL+3}], v[{D+4*i}:{D+4*i+3}], {c}")
if not a.fine: stamp(2)
E(f"""  s_nop 6
  s_mov_b32 exec_hi, 0
  ds_write_b128 v{T+1}, v[{ACC}:{ACC+3}] offset:{LA}
  s_mov_b32 exec_hi, -1
{PRESET}  s_cmp_lg_u32 s14, {a.fw}
  s_cbranch_scc1 L_bar2
  s_mov_b64 exec, {(1<<NC)-1}
L_flagpoll:
  global_load_dword v{T+2}, v3, s[10:11] {a.pl}
  s_waitcnt vmcnt(0)
  v_cmp_ne_u32 vcc, 0, v{T+2}
  s_sub_u32 s27, s27, 1
  s_cbranch_scc1 L_flagok
  s_cmp_eq_u64 vcc, exec
  s_cbranch_scc0 L_flagpoll
L_flagok:
  s_mov_b64 exec, -1
L_bar2:
  s_sub_u32 s28, s2, {a.ob}
  s_waitcnt lgkmcnt(0)
  s_barrier""")
stamp(3)
E("  s_cmp_ge_u32 s14, 2\n  s_cbranch_scc1 L_nopub")
if a.prio: E(f"  s_setprio {a.prio}")
for k in range(8):
    E(f"  ds_read2st64_b32 v[{P+2*k}:{P+2*k+1}], v2 offset0:{4*k} offset1:{4*k+2}")
E("  s_cmp_eq_u32 s14, 0\n  s_cselect_b32 s18, -1, 0")
for k in range(1, 8):
    E(f"  s_waitcnt lgkmcnt({7-k})")
    E(f"  v_pk_add_f32 v[{P}:{P+1}], v[{P}:{P+1}], v[{P+2*k}:{P+2*k+1}]")
E(f"""  v_add_f32 v{P}, v{P}, v{P+1}
  s_mov_b32 exec_hi, s18
  v_min_u32 v{P}, -2, v{P}""")
fine(1)
E(f"""  global_store_dword v{VI}, v{P}, s[12:13] {a.sy}
  s_mov_b32 exec_hi, -1
L_nopub:""")
E(f"""  s_cmp_eq_u32 s28, 0
  s_cselect_b32 s29, 0, 3
  s_cmp_eq_u32 s28, {a.os}
  s_cselect_b32 s29, 1, s29
  s_cmp_eq_u32 s28, {2*a.os}
  s_cselect_b32 s29, 2, s29
  s_cmp_eq_u32 s29, 3
  s_cbranch_scc1 L_notown
  s_lshl_b32 s18, s29, 15
  s_lshl_b32 s19, s14, 11
  s_add_u32 s18, s18, s19
  v_add_u32 v{VA}, s18, v3
  s_lshl_b32 s19, s14, 7
  v_add_u32 v{VB}, s19, v3
L_own:""")
Q = P + 16
for k in range(8):
    E(f"  global_load_dword v{Q+k}, v{VA}, s[12:13] offset:{256*k} {a.pl}")
E(f"""  s_waitcnt vmcnt(5)
  v_max3_u32 v{M}, v{Q}, v{Q+1}, v{Q+2}
  v_pk_add_f32 v[{Q}:{Q+1}], v[{Q}:{Q+1}], v[{Q}:{Q+1}] op_sel:[0,0] op_sel_hi:[1,1] neg_lo:[0,0]""".rsplit("\n",1)[0])
E(f"""  v_add_f32 v{P}, v{Q}, v{Q+1}
  v_add_f32 v{P}, v{P}, v{Q+2}
  s_waitcnt vmcnt(3)
  v_max3_u32 v{M}, v{M}, v{Q+3}, v{Q+4}
  v_add_f32 v{P}, v{P}, v{Q+3}
  v_add_f32 v{P}, v{P}, v{Q+4}
  s_waitcnt vmcnt(1)
  v_max3_u32 v{M}, v{M}, v{Q+5}, v{Q+6}
  v_add_f32 v{P}, v{P}, v{Q+5}
  v_add_f32 v{P}, v{P}, v{Q+6}
  s_waitcnt vmcnt(0)
  v_max_u32 v{M}, v{M}, v{Q+7}
  v_add_f32 v{P}, v{P}, v{Q+7}
  v_cmp_eq_u32 vcc, -1, v{M}
  v_mov_b32 v{P+1}, v{P}
  s_sub_u32 s24, s24, 1
  s_cbranch_scc1 L_own_ok
  s_cbranch_vccz L_own_ok""")
if a.sleep: E(f"  s_sleep {a.sleep}")
E(f"""  s_branch L_own
L_own_ok:""")
if a.fine: E("  s_cmp_lt_u32 s14, 2\n  s_cbranch_scc1 L_f1"); stamp(1); E("L_f1:")
E(f"""  v_permlane32_swap_b32 v{P}, v{P+1}
  s_mov_b32 exec_hi, 0
  v_add_f32 v{P}, v{P}, v{P+1}
  ds_write_b32 v{VB}, v{P} offset:{LB}
  s_mov_b32 exec_hi, -1
  s_movk_i32 s18, {LB}
  v_and_b32 v{VA}, 0x80, v3
  v_mul_u32_u24 v{VA}, 7, v{VA}
  v_add3_u32 v{VA}, v{VA}, v3, s18
  s_waitcnt lgkmcnt(0)
  s_barrier
  s_cmp_lg_u32 s14, 0
  s_cbranch_scc1 L_notown""")
for k in range(4):
    E(f"  ds_read2_b32 v[{P+2*k}:{P+2*k+1}], v{VA} offset0:{64*k} offset1:{64*k+32}".replace(f"v{VA} ", f"v{VA} "))
E(f"""  s_lshl_b32 s18, s29, 7
  s_add_u32 s18, s18, {FIN}
  v_add_u32 v{VB}, s18, v3""")
if a.xc:
    E(f"""  v_lshrrev_b32 v{VA}, 7, v3
  v_mul_u32_u24 v{VA}, {a.xs-128}, v{VA}
  v_add_u32 v{VB}, v{VB}, v{VA}""")
for k in range(1, 4):
    E(f"  s_waitcnt lgkmcnt({3-k})")
    E(f"  v_pk_add_f32 v[{P}:{P+1}], v[{P}:{P+1}], v[{P+2*k}:{P+2*k+1}]")
E(f"""  v_add_f32 v{P}, v{P}, v{P+1}
  v_mov_b32 v{P+1}, v{P}
  s_nop 1
  v_permlane32_swap_b32 v{P}, v{P+1}""")
if not a.xc:
    E(f"""  s_mov_b32 exec_hi, 0
  v_add_f32 v{P}, v{P}, v{P+1}
  v_min_u32 v{P}, -2, v{P}
  global_store_dword v{VB}, v{P}, s[12:13] {a.sy}""")
else:
    E(f"""  v_add_f32 v{P}, v{P}, v{P+1}
  v_min_u32 v{P}, -2, v{P}""")
    cur = 0
    for k in range(a.xc // 2):
        off = 2*a.xs*k - cur
        if off > 4095:
            E(f"  v_add_u32 v{VB}, {off}, v{VB}"); cur += off; off = 0
        E(f"  global_store_dword v{VB}, v{P}, s[12:13] offset:{off} {a.sy}")
if a.dual: E(f"  v_add_u32 v{VB}, 0x2000, v{VB}\n  global_store_dword v{VB}, v{P}, s[12:13] {a.sy}")
E("  s_mov_b32 exec_hi, -1")
fine(2)
E("L_notown:")
for i in range(9):
    for d in range(3):
        E(f"  v_lshlrev_b32 v{U+6*i+2*d}, 16, v{D+4*i+d}")
        E(f"  v_and_b32 v{U+6*i+2*d+1}, s25, v{D+4*i+d}")
if not a.dual:
    E(f"""  s_cmp_ge_u32 s14, 2
      s_cbranch_scc1 L_wait
      s_mul_i32 s22, s14, 192
      s_add_u32 s23, s22, {FIN-4}
    {XSEL}  v_add_u32 v{VA}, s23, v3
      s_add_u32 s23, s22, {LS-4}
      v_add_u32 v{VB}, s23, v3
      s_lshl_b32 s18, s16, 16
      s_and_b32 s19, s16, 0xffff0000
      s_lshl_b32 s20, s17, 16
      s_mov_b32 s21, {f2u(1.0/147456.0)}
      s_lshr_b32 s23, 0x3ffff, s14
      s_cmp_eq_u32 s14, 0
      s_cselect_b32 exec_lo, -2, -1
      s_mov_b32 exec_hi, s23
      s_mov_b32 s30, {a.maxpoll}
    L_poll:
      global_load_dword v{P}, v{VA}, s[12:13] {a.pl}
      s_waitcnt vmcnt(0)
      v_cmp_eq_u32 vcc, -1, v{P}
      s_sub_u32 s30, s30, 1
      s_cbranch_scc1 L_poll_ok
      s_cbranch_vccz L_poll_ok""")
    if a.sleep2: E(f"  s_sleep {a.sleep2}")
    E("  s_branch L_poll\nL_poll_ok:")
    stamp(4)
    if a.fine: E("  s_mov_b32 s27, s30")
    emit_gate1(E, P, P+2)
    E(f"""  s_mov_b32 exec_lo, -2
      s_mov_b32 exec_hi, 0x1ffff
      ds_write_b32 v{VB}, v{P}
      s_mov_b64 exec, -1""")
    if a.prio: E("  s_setprio 0")
    E(f"""  s_waitcnt lgkmcnt(0)
    L_wait:
      v_and_b32 v3, 60, v3
      v_mul_u32_u24 v3, 6, v3
      s_barrier""")
    stamp(5)
    for j in range(3):
        E(f"  ds_read_b64 v[{S+2*j}:{S+2*j+1}], v3 offset:{LS+8*j}")
    E("  s_waitcnt lgkmcnt(0)")
else:
    G0 = a.gw
    if a.prio: E("  s_setprio 0")
    E(f"""  s_sub_u32 s22, s14, {G0}
  s_cmp_ge_u32 s22, 4
  s_cbranch_scc1 L_wait""")
    if a.prio: E(f"  s_setprio {a.prio}")
    E(f"""  s_and_b32 s29, s22, 1
  s_lshr_b32 s22, s22, 1
  s_lshl_b32 s23, s22, 13
  s_mul_i32 s22, s29, 192
  s_add_u32 s23, s23, s22
  s_add_u32 s23, s23, {FIN-4}
  v_add_u32 v{VA}, s23, v3
  s_add_u32 s23, s22, {LS-4}
  v_add_u32 v{VB}, s23, v3
  s_lshl_b32 s18, s16, 16
  s_and_b32 s19, s16, 0xffff0000
  s_lshl_b32 s20, s17, 16
  s_mov_b32 s21, {f2u(1.0/147456.0)}
  s_lshr_b32 s23, 0x3ffff, s29
  s_cmp_eq_u32 s29, 0
  s_cselect_b32 exec_lo, -2, -1
  s_mov_b32 exec_hi, s23
  s_mov_b32 s30, {a.maxpoll}
L_poll:
  global_load_dword v{P}, v{VA}, s[12:13] {a.pl}
  s_waitcnt vmcnt(0)
  v_cmp_eq_u32 vcc, -1, v{P}
  s_sub_u32 s30, s30, 1
  s_cbranch_scc1 L_poll_ok
  s_cbranch_vccz L_poll_ok""")
    if a.sleep2: E(f"  s_sleep {a.sleep2}")
    E("  s_branch L_poll\nL_poll_ok:")
    stamp(4)
    if a.fine: E("  s_mov_b32 s27, s30")
    emit_gate1(E, P, P+2)
    E(f"""  s_mov_b32 exec_lo, -2
  s_mov_b32 exec_hi, 0x1ffff
  ds_write_b32 v{VB}, v{P}
  s_mov_b64 exec, -1""")
    if a.prio: E("  s_setprio 0")
    E(f"""L_wait:
  v_and_b32 v3, 60, v3
  v_mul_u32_u24 v3, 6, v3
  s_mov_b32 s30, {a.maxpoll*8}
L_spinl:""")
    for j in range(3):
        E(f"  ds_read_b64 v[{S+2*j}:{S+2*j+1}], v3 offset:{LS+8*j}")
    E(f"""  s_waitcnt lgkmcnt(0)
  v_max3_u32 v{M}, v{S}, v{S+1}, v{S+2}
  v_max3_u32 v{M}, v{M}, v{S+3}, v{S+4}
  v_max_u32 v{M}, v{M}, v{S+5}
  v_cmp_eq_u32 vcc, -1, v{M}
  s_sub_u32 s30, s30, 1
  s_cbranch_scc1 L_spinl_ok
  s_cbranch_vccz L_spinl_ok""")
    if a.lsleep: E(f"  s_sleep {a.lsleep}")
    E("  s_branch L_spinl\nL_spinl_ok:")
    stamp(5)
for i in range(9):
    for d in range(3):
        E(f"  v_pk_mul_f32 v[{U+6*i+2*d}:{U+6*i+2*d+1}], v[{U+6*i+2*d}:{U+6*i+2*d+1}], v[{S+2*d}:{S+2*d+1}]")
    for d in range(3):
        E(f"  v_cvt_pk_bf16_f32 v{D+4*i+d}, v{U+6*i+2*d}, v{U+6*i+2*d+1}")
    if a.thr >= 0 and i > a.thr: E(f"  s_waitcnt vmcnt({a.thr})")
    if a.pat == "wave":
        E(f"  global_store_dwordx3 v1, v[{D+4*i}:{D+4*i+2}], s[8:9] offset:{(i-4)*768} {a.st}")
    else:
        if STEP:
            E(f"  global_store_dwordx3 v1, v[{D+4*i}:{D+4*i+2}], s[8:9] {a.st}")
            if i < 8: E(f"  s_add_u32 s8, s8, {STEP}\n  s_addc_u32 s9, s9, 0")
        else:
            E(f"  global_store_dwordx3 v1, v[{D+4*i}:{D+4*i+2}], s[8:9] offset:{768*(i%3)} {a.st}")
            if i in (2, 5): E(f"  s_add_u32 s8, s8, 2359296\n  s_addc_u32 s9, s9, 0")
    if a.s6 == "first" and i == 0:
        E("  s_waitcnt vmcnt(0)"); stamp(6)
if a.stamp:
    if a.s6 == "": stamp(6)
    E("  s_waitcnt vmcnt(0)")
    if a.s6 == "own": stamp(6)
    E("  s_barrier")
    stamp(7)
    emit_stamp_dump(E, a, cnt="s24")
if a.probe:
    E(f'''  s_or_b32 s18, s2, s14
  s_cmp_lg_u32 s18, 0
  s_cbranch_scc1 L_end
  s_waitcnt vmcnt(0)
  s_mov_b64 exec, 1
  v_mov_b32 v5, 0
  v_mov_b32 v6, s52
  global_store_dword v5, v6, s[10:11] offset:0 sc1
  s_min_u32 s52, s52, 10000
  s_mul_i32 s19, s52, {a.delay}
  s_memrealtime s[20:21]
  s_waitcnt lgkmcnt(0)
  s_add_u32 s19, s19, s20
L_spin3:
  s_memrealtime s[20:21]
  s_waitcnt lgkmcnt(0)
  s_sub_u32 s22, s19, s20
  s_cmp_gt_i32 s22, 0
  s_cbranch_scc1 L_spin3''')
elif a.delay:
    E(f'''  s_waitcnt vmcnt(0)
  s_barrier
  s_cmp_lg_u32 s14, 0
  s_cbranch_scc1 L_end
  s_memrealtime s[20:21]
  s_waitcnt lgkmcnt(0)
  s_add_u32 s19, s20, {a.delay}
L_spin2:
  s_memrealtime s[20:21]
  s_waitcnt lgkmcnt(0)
  s_sub_u32 s22, s19, s20
  s_cmp_gt_i32 s22, 0
  s_cbranch_scc1 L_spin2''')
E("L_end:\n  s_endpgm")
E(kd(KN, 128, 64))
open(a.o, "w").write("\n".join(o) + "\n")
print(build(a.o))
```

```python
import sys, argparse
from asmlib import *
from common import *
ap = argparse.ArgumentParser()
ap.add_argument("-o", default="v10.s")
ap.add_argument("--nw", type=int, default=16)
ap.add_argument("--pre", type=int, default=99)
ap.add_argument("--inl", type=int, default=1)
ap.add_argument("--ob", type=int, default=16)
ap.add_argument("--ng", type=int, default=4)
ap.add_argument("--xc", type=int, default=8)
ap.add_argument("--gs", type=int, default=4)
ap.add_argument("--stamp", action="store_true")
ap.add_argument("--allw", action="store_true")
ap.add_argument("--fine", action="store_true")
ap.add_argument("--exf", default="")
ap.add_argument("--xw", type=int, default=0)
ap.add_argument("--ld", default="nt")
ap.add_argument("--st", default="sc1")
ap.add_argument("--sy", default="sc1")
ap.add_argument("--pl", default="sc1")
ap.add_argument("--prio", type=int, default=3)
ap.add_argument("--cpf", type=int, default=1)
ap.add_argument("--lds", type=int, default=0)
ap.add_argument("--vg", type=int, default=0)
ap.add_argument("--warm", type=int, default=0)
ap.add_argument("--maxpoll", type=int, default=200000)
a = ap.parse_args()
if a.exf or a.allw: a.stamp = True
o = []; E = o.append
def stamp(k):
    if a.stamp: E(f"  s_memrealtime s[{32+2*k}:{33+2*k}]")
def fine(k):
    if a.fine: stamp(k)
NW = a.nw; NL = 144 // NW; GS = a.gs
NG = a.ng; NO = 3 * NG; NLD = 128 // (NG * NW)
assert 1 <= NLD <= 8
LA = 0; LB = 512 * NW; LS = LB + 128 * NW; LDS = a.lds or (LS + 512)
FIN = 98304
XS = 384 * NG
EPO = 131072
STEP = 256 * GS * 768
VMAX = 128 if NW == 16 else 256
D = 4; U = D + 4 * NL
PRE = min(a.pre, NL, (VMAX - U - 30) // 6)
P = U + 6 * PRE; P += P & 1
SEL = P; ACC = P + 4; T = P + 8; S = P + 16; Q = P + 16
VI, VA, VB, VX = P + 24, P + 25, P + 26, P + 27
TMP = P
NV = P + 28
assert NV <= VMAX
M = D + 3
E(HEADER + f"; @launch grid=(256,1,1) block=({64*NW},1,1) lds={LDS}")
E(f""".amdgcn_target "amdgcn-amd-amdhsa--gfx950"
.text
.globl {KN}
.p2align 8
.type {KN},@function
{KN}:""")
stamp(0)
E(f"""  s_cmp_ge_u32 s2, 256
  s_cbranch_scc1 L_end
  s_load_dwordx4 s[4:7], s[0:1], 0
  s_load_dwordx4 s[8:11], s[0:1], 16
  s_load_dwordx2 s[12:13], s[0:1], 32
  v_lshrrev_b32 v2, 6, v0
  v_and_b32 v3, 63, v0
  v_readfirstlane_b32 s14, v2
  v_mul_u32_u24 v0, 12, v3
  s_and_b32 s3, s2, 7
  s_lshl_b32 s3, s3, 5
  s_lshr_b32 s15, s2, 3
  s_add_u32 s3, s3, s15
  s_mul_i32 s3, s3, {GS}
  s_and_b32 s15, s14, {GS-1}
  s_add_u32 s3, s3, s15
  s_mul_i32 s3, s3, 768""")
if NW > GS:
    E(f"""  s_lshr_b32 s15, s14, {GS.bit_length()-1}
  s_mul_i32 s15, s15, {NL*STEP}
  s_add_u32 s3, s3, s15""")
E(f"""  v_add_u32 v1, s3, v0
  s_waitcnt lgkmcnt(0)""")
if a.cpf >= 100:
    E(f"""  s_cmp_lg_u32 s14, {a.cpf-100}
  s_cbranch_scc1 L_nocpf
  s_getpc_b64 s[60:61]
L_pc:
  v_lshlrev_b32 v{VX}, 7, v3
  v_min_u32 v{VX}, L_end-L_pc, v{VX}
  global_load_dword v{VX}, v{VX}, s[60:61]
L_nocpf:""")
for i in range(NL):
    E(f"  global_load_dwordx3 v[{D+4*i}:{D+4*i+2}], v1, s[4:5] {a.ld}")
    if i < NL - 1: E(f"  s_add_u32 s4, s4, {STEP}\n  s_addc_u32 s5, s5, 0")
    if i == 0:
        E(f"  s_load_dword s15, s[12:13], {EPO}")
        E("  s_load_dwordx2 s[16:17], s[6:7], 0")
if not a.fine: stamp(1)
for i in range(NL):
    E(f"  v_mov_b32 v{D+4*i+3}, 0")
E(f"""  v_and_b32 v{T}, 15, v3
  v_lshrrev_b32 v{T+1}, 2, v{T}
  v_sub_u32 v{T+1}, v{T}, v{T+1}
  v_and_b32 v{T+2}, 3, v{T}
  v_cmp_ne_u32 s[18:19], 3, v{T+2}
  v_cmp_gt_u32 s[20:21], 8, v{T}
  v_and_b32 v{T+2}, 1, v{T+1}
  v_lshlrev_b32 v{T+2}, 4, v{T+2}
  s_and_b64 s[18:19], s[18:19], s[20:21]
  v_mov_b32 v{T+3}, 0x3f80
  v_lshlrev_b32 v{T+2}, v{T+2}, v{T+3}
  v_lshrrev_b32 v{T+1}, 1, v{T+1}
  v_cndmask_b32 v{T+2}, 0, v{T+2}, s[18:19]
  v_cmp_eq_u32 s[18:19], 0, v{T+1}
  v_cmp_eq_u32 s[20:21], 1, v{T+1}
  v_cmp_eq_u32 s[22:23], 2, v{T+1}
  v_mov_b32 v{SEL+3}, 0
  v_cndmask_b32 v{SEL}, 0, v{T+2}, s[18:19]
  v_cndmask_b32 v{SEL+1}, 0, v{T+2}, s[20:21]
  v_cndmask_b32 v{SEL+2}, 0, v{T+2}, s[22:23]
  v_lshrrev_b32 v{T+1}, 4, v3
  v_lshlrev_b32 v{T+1}, 4, v{T+1}
  v_lshl_add_u32 v{T+1}, v{T}, 5, v{T+1}
  s_lshl_b32 s26, s14, 9
  v_add_u32 v{T+1}, s26, v{T+1}
  s_mov_b32 s25, 0xffff0000
  v_lshlrev_b32 v3, 2, v3
  s_mov_b32 s24, {a.maxpoll}""")
E(f"""  s_lshl_b32 s18, s14, 8
  v_add_u32 v{VI}, s18, v3
  v_mul_u32_u24 v2, 171, v{VI}
  v_lshrrev_b32 v2, 11, v2
  v_lshl_add_u32 v2, v2, 2, v{VI}
  v_and_b32 v{VA}, 0x7c, v{VI}
  v_lshrrev_b32 v{VI}, 7, v{VI}
  v_lshlrev_b32 v{VI}, 15, v{VI}
  s_lshl_b32 s18, s2, 7
  v_add3_u32 v{VI}, v{VI}, v{VA}, s18""")
E(f"""  s_sub_u32 s28, s2, {a.ob}
  s_mul_i32 s18, s28, 43
  s_lshr_b32 s18, s18, 7
  s_mul_i32 s19, s18, 3
  s_sub_u32 s19, s28, s19
  s_lshl_b32 s20, s19, 15
  s_mul_i32 s21, s18, {32768//NG}
  s_add_u32 s20, s20, s21
  s_mul_i32 s21, s14, {32768//NG//NW}
  s_add_u32 s20, s20, s21
  v_add_u32 v{VA}, s20, v3
  s_lshl_b32 s21, s14, 7
  v_add_u32 v{VB}, s21, v3
  s_lshl_b32 s29, s19, 7
  s_mul_i32 s18, s18, 384
  s_add_u32 s29, s29, s18
  s_add_u32 s29, s29, {FIN}
  s_getreg_b32 s31, hwreg(HW_REG_XCC_ID, 0, 3)
  s_and_b32 s31, s31, {a.xc-1}
  s_mul_i32 s31, s31, {XS}""")
def unpack(i, dst):
    for d in range(3):
        E(f"  v_lshlrev_b32 v{dst+2*d}, 16, v{D+4*i+d}")
        E(f"  v_and_b32 v{dst+2*d+1}, s25, v{D+4*i+d}")
INL = (NL - 2) if a.inl else 0
for i in range(NL):
    E(f"  s_waitcnt vmcnt({NL-1-i})")
    c = "0" if i == 0 else f"v[{ACC}:{ACC+3}]"
    E(f"  v_mfma_f32_16x16x32_bf16 v[{ACC}:{ACC+3}], v[{SEL}:{SEL+3}], v[{D+4*i}:{D+4*i+3}], {c}")
    if i < PRE and i < INL: unpack(i, U + 6*i)
if not a.fine: stamp(2)
E(f"""  s_waitcnt lgkmcnt(0)
  s_add_u32 s15, s15, 1
  s_and_b32 s27, s15, 15
  s_nop 3
  s_mov_b32 exec_hi, 0
  ds_write_b128 v{T+1}, v[{ACC}:{ACC+3}] offset:{LA}
  s_mov_b32 exec_hi, -1""")
if 0 <= a.cpf < 100:
    E(f"""  s_cmp_lg_u32 s14, {a.cpf}
  s_cbranch_scc1 L_nocpf
  s_getpc_b64 s[60:61]
L_pc:
  v_lshlrev_b32 v{VX}, 6, v3
  v_min_u32 v{VX}, L_end-L_pc, v{VX}
  global_load_dword v{VX}, v{VX}, s[60:61]
L_nocpf:""")
E("""  s_waitcnt lgkmcnt(0)
  s_barrier""")
stamp(3)
E("  s_cmp_ge_u32 s14, 2\n  s_cbranch_scc1 L_nopub")
if a.prio: E(f"  s_setprio {a.prio}")
for k in range(NW // 2):
    E(f"  ds_read2st64_b32 v[{P+2*k}:{P+2*k+1}], v2 offset0:{4*k} offset1:{4*k+2}")
E("  s_cmp_eq_u32 s14, 0\n  s_cselect_b32 s18, -1, 0")
def tree(n):
    def pk(d, s): E(f"  v_pk_add_f32 v[{P+2*d}:{P+2*d+1}], v[{P+2*d}:{P+2*d+1}], v[{P+2*s}:{P+2*s+1}]")
    if n == 1: E("  s_waitcnt lgkmcnt(0)")
    for k in range(0, n - 1, 2):
        E(f"  s_waitcnt lgkmcnt({n-2-k})"); pk(k, k + 1)
        if k == 2: pk(0, 2)
        if k == 6: pk(4, 6); pk(0, 4)
    E(f"  v_add_f32 v{P}, v{P}, v{P+1}")
tree(NW // 2)
E(f"""  s_mov_b32 exec_hi, s18
  v_and_or_b32 v{P}, v{P}, -16, s27""")
fine(1)
E(f"""  global_store_dword v{VI}, v{P}, s[12:13] {a.sy}
  s_mov_b32 exec_hi, -1
L_nopub:
  s_cmp_ge_u32 s28, {NO}
  s_cbranch_scc1 L_notown
L_own:""")
def polln(n, areg, offs):
    for k in range(n):
        E(f"  global_load_dword v{Q+k}, v{areg}, s[12:13] offset:{offs(k)} {a.pl}")
    for k in range(n):
        E(f"  s_waitcnt vmcnt({n-1-k})")
        E(f"  v_xor_b32 v{Q+k}, s27, v{Q+k}")
        if k == 1:
            E(f"  v_or_b32 v{M}, v{Q}, v{Q+1}\n  v_add_f32 v{P}, v{Q}, v{Q+1}")
        elif k > 1:
            E(f"  v_or_b32 v{M}, v{M}, v{Q+k}\n  v_add_f32 v{P}, v{P}, v{Q+k}")
    if n == 1:
        E(f"  v_and_b32 v{M}, 15, v{Q}\n  v_mov_b32 v{P}, v{Q}")
    else:
        E(f"  v_and_b32 v{M}, 15, v{M}")
    E(f"  v_cmp_ne_u32 vcc, 0, v{M}")
polln(NLD, VA, lambda k: 256*k)
E(f"""  v_mov_b32 v{P+1}, v{P}
  s_sub_u32 s24, s24, 1
  s_cbranch_scc1 L_own_ok
  s_cbranch_vccz L_own_ok
  s_branch L_own
L_own_ok:""")
if a.fine: E("  s_cmp_lt_u32 s14, 2\n  s_cbranch_scc1 L_f1"); stamp(1); E("L_f1:")
E(f"""  v_permlane32_swap_b32 v{P}, v{P+1}
  s_mov_b32 exec_hi, 0
  v_add_f32 v{P}, v{P}, v{P+1}
  ds_write_b32 v{VB}, v{P} offset:{LB}
  s_mov_b32 exec_hi, -1
  s_movk_i32 s18, {LB}
  v_and_b32 v{VA}, 0x80, v3
  v_mul_u32_u24 v{VA}, {NW//2-1}, v{VA}
  v_add3_u32 v{VA}, v{VA}, v3, s18
  v_lshrrev_b32 v{VB}, 7, v3
  v_mul_u32_u24 v{VB}, {XS-128}, v{VB}
  v_add3_u32 v{VB}, v{VB}, v3, s29
  s_waitcnt lgkmcnt(0)
  s_barrier
  s_cmp_lg_u32 s14, 0
  s_cbranch_scc1 L_notown""")
for k in range(NW // 4):
    E(f"  ds_read2_b32 v[{P+2*k}:{P+2*k+1}], v{VA} offset0:{64*k} offset1:{64*k+32}")
tree(NW // 4)
E(f"""  v_mov_b32 v{P+1}, v{P}
  s_nop 1
  v_permlane32_swap_b32 v{P}, v{P+1}""")
if a.xc == 1: E("  s_mov_b32 exec_hi, 0")
E(f"""  v_add_f32 v{P}, v{P}, v{P+1}
  v_and_or_b32 v{P}, v{P}, -16, s27""")
cur = 0
for k in range(max(1, a.xc // 2)):
    off = 2*XS*k - cur
    if off > 4095:
        E(f"  v_add_u32 v{VB}, {off}, v{VB}"); cur += off; off = 0
    E(f"  global_store_dword v{VB}, v{P}, s[12:13] offset:{off} {a.sy}")
if a.xc == 1: E("  s_mov_b32 exec_hi, -1")
fine(2)
E("L_notown:")
for i in range(NL):
    if i < PRE and i >= INL: unpack(i, U + 6*i)
E(f"""  s_cmp_ge_u32 s14, 2
  s_cbranch_scc1 L_wait
  s_mul_i32 s22, s14, 192
  s_add_u32 s23, s22, {FIN-4}
  s_add_u32 s23, s23, s31
  v_add_u32 v{VA}, s23, v3
  s_add_u32 s23, s22, {LS-4}
  v_add_u32 v{VB}, s23, v3
  s_lshl_b32 s18, s16, 16
  s_and_b32 s19, s16, 0xffff0000
  s_lshl_b32 s20, s17, 16
  s_mov_b32 s21, {f2u(1.0/147456.0)}
  s_lshr_b32 s23, 0x3ffff, s14
  s_cmp_eq_u32 s14, 0
  s_cselect_b32 exec_lo, -2, -1
  s_mov_b32 exec_hi, s23
  s_mov_b32 s30, {a.maxpoll}
L_poll:""")
polln(NG, VA, lambda k: 384*k)
E(f"""  s_sub_u32 s30, s30, 1
  s_cbranch_scc1 L_poll_ok
  s_cbranch_vccz L_poll_ok
  s_branch L_poll
L_poll_ok:""")
stamp(4)
emit_gate1(E, P, P+2)
E(f"""  s_mov_b32 exec_lo, -2
  s_mov_b32 exec_hi, 0x1ffff
  ds_write_b32 v{VB}, v{P}""")
if a.prio: E("  s_setprio 0")
E(f"""  s_or_b32 s18, s2, s14
  s_cmp_lg_u32 s18, 0
  s_cbranch_scc1 L_noepo
  s_mov_b64 exec, 1
  v_mov_b32 v{VA}, {EPO}
  v_mov_b32 v{VX}, s15
  global_store_dword v{VA}, v{VX}, s[12:13] {a.sy}
L_noepo:
  s_mov_b64 exec, -1
  s_waitcnt lgkmcnt(0)
L_wait:
  v_and_b32 v3, 60, v3
  v_mul_u32_u24 v3, 6, v3
  s_barrier""")
stamp(5)
for j in range(3):
    E(f"  ds_read_b64 v[{S+2*j}:{S+2*j+1}], v3 offset:{LS+8*j}")
E("  s_waitcnt lgkmcnt(0)")
for i in range(NL):
    if i < PRE: src = U + 6*i
    else:
        src = TMP + 6*(i & 1); unpack(i, src)
    for d in range(3):
        E(f"  v_pk_mul_f32 v[{src+2*d}:{src+2*d+1}], v[{src+2*d}:{src+2*d+1}], v[{S+2*d}:{S+2*d+1}]")
    for d in range(3):
        E(f"  v_cvt_pk_bf16_f32 v{D+4*i+d}, v{src+2*d}, v{src+2*d+1}")
    E(f"  global_store_dwordx3 v1, v[{D+4*i}:{D+4*i+2}], s[8:9] {a.st}")
    if i < NL - 1: E(f"  s_add_u32 s8, s8, {STEP}\n  s_addc_u32 s9, s9, 0")
if a.stamp:
    stamp(6)
    E("  s_waitcnt vmcnt(0)")
    E("  s_barrier")
    stamp(7)
    E("  s_mov_b32 s27, s30")
    emit_stamp_dump(E, a, cnt="s24")
E("L_end:\n  s_endpgm")
nv = max(NV, a.vg)
if nv <= 256: E(kd(KN, nv, 64))
else: E(kd(KN, 256, 64).replace("next_free_vgpr 256", f"next_free_vgpr {nv}"))
open(a.o, "w").write("\n".join(o) + "\n")
print(build(a.o), "NV", NV, "PRE", PRE, "LDS", LDS)
```

```python
import sys, argparse
from asmlib import *
from common import *
ap = argparse.ArgumentParser()
ap.add_argument("-o", default="v10.s")
ap.add_argument("--nw", type=int, default=16)
ap.add_argument("--pre", type=int, default=99)
ap.add_argument("--inl", type=int, default=1)
ap.add_argument("--ob", type=int, default=16)
ap.add_argument("--ng", type=int, default=4)
ap.add_argument("--xc", type=int, default=8)
ap.add_argument("--gs", type=int, default=4)
ap.add_argument("--stamp", action="store_true")
ap.add_argument("--allw", action="store_true")
ap.add_argument("--fine", action="store_true")
ap.add_argument("--exf", default="")
ap.add_argument("--xw", type=int, default=0)
ap.add_argument("--ld", default="nt")
ap.add_argument("--st", default="sc1")
ap.add_argument("--sy", default="sc1")
ap.add_argument("--pl", default="sc1")
ap.add_argument("--prio", type=int, default=3)
ap.add_argument("--cpf", type=int, default=1)
ap.add_argument("--lds", type=int, default=0)
ap.add_argument("--vg", type=int, default=0)
ap.add_argument("--warm", type=int, default=0)
ap.add_argument("--pat", default="seqx")
ap.add_argument("--stmix", default="")
ap.add_argument("--ldmix", default="")
ap.add_argument("--stg", default="")
ap.add_argument("--rep", type=int, default=0)
ap.add_argument("--obk", type=int, default=2)
ap.add_argument("--w4", type=int, default=1)
ap.add_argument("--fp", type=int, default=0)
ap.add_argument("--d1", type=int, default=1)
ap.add_argument("--d2", type=int, default=1)
ap.add_argument("--ps", type=int, default=0)
ap.add_argument("--ps2", type=int, default=0)
ap.add_argument("--tlb", type=int, default=0)
ap.add_argument("--tlbw", type=int, default=2)
ap.add_argument("--one", type=int, default=0)
ap.add_argument("--dbgx", type=int, default=0)
ap.add_argument("--maxpoll", type=int, default=200000)
a = ap.parse_args()
if a.exf or a.allw: a.stamp = True
o = []; E = o.append
def stamp(k):
    if a.stamp: E(f"  s_memrealtime s[{32+2*k}:{33+2*k}]")
def fine(k):
    if a.fine: stamp(k)
NW = a.nw; NL = 144 // NW; GS = a.gs
NG = a.ng; NO = 3 * NG; NLD = 128 // (NG * NW)
assert 1 <= NLD <= 8
LA = 0; LB = 512 * NW; LS = LB + 128 * NW; LDS = a.lds or (LS + 512)
REP = a.rep
FIN = 98304 * max(1, REP)
XS = 384 * NG
EPO = 131072 if not REP else 1048512
if REP: a.xc = 1
STEP = 256 * GS * 768
VMAX = 128 if NW == 16 else 256
D = 4; U = D + 4 * NL
PRE = min(a.pre, NL, (VMAX - U - 30) // 6)
P = U + 6 * PRE; P += P & 1
SEL = P; ACC = P + 4; T = P + 8; S = P + 16; Q = P + 16
if a.d2 > 1 or a.d1 > 1: S = P + 8
VI, VA, VB, VX = P + 24, P + 25, P + 26, P + 27
TMP = P
NV = P + 28
assert NV <= VMAX
M = D + 3
E(HEADER + f"; @launch grid=(256,1,1) block=({64*NW},1,1) lds={LDS}")
E(f""".amdgcn_target "amdgcn-amd-amdhsa--gfx950"
.text
.globl {KN}
.p2align 8
.type {KN},@function
{KN}:""")
stamp(0)
if a.fp:
    assert GS == 4 and not a.cpf >= 100
    E(f"""  s_load_dwordx2 s[4:5], s[0:1], 0
  s_cmp_ge_u32 s2, 256
  s_cbranch_scc1 L_end
  v_and_b32 v1, 0xff, v0
  v_mul_u32_u24 v1, 12, v1
  s_mul_i32 s3, s2, 3072""")
    if NW > 4:
        E(f"""  v_lshrrev_b32 v2, 8, v0
  v_mul_u32_u24 v2, {NL*STEP}, v2
  v_add3_u32 v1, v1, v2, s3""")
    else:
        E("  v_add_u32 v1, s3, v1")
    E("  s_waitcnt lgkmcnt(0)")
    for i in range(NL):
        lf = a.ldmix.split(",")[i % len(a.ldmix.split(","))] if a.ldmix else a.ld
        E(f"  global_load_dwordx3 v[{D+4*i}:{D+4*i+2}], v1, s[4:5] {lf}")
        if i < NL - 1: E(f"  s_add_u32 s4, s4, {STEP}\n  s_addc_u32 s5, s5, 0")
        if i == a.fp - 1:
            E("  s_load_dwordx2 s[6:7], s[0:1], 8\n  s_load_dwordx2 s[12:13], s[0:1], 32\n  s_load_dwordx4 s[8:11], s[0:1], 16")
    E(f"""  v_lshrrev_b32 v2, 6, v0
  v_and_b32 v3, 63, v0
  v_readfirstlane_b32 s14, v2
  v_mul_u32_u24 v0, 12, v3
  s_waitcnt lgkmcnt(0)
  s_load_dword s15, s[12:13], {EPO}
  s_load_dwordx2 s[16:17], s[6:7], 0""")
else:
    E(f"""  s_cmp_ge_u32 s2, 256
      s_cbranch_scc1 L_end
      s_load_dwordx4 s[4:7], s[0:1], 0
      s_load_dwordx4 s[8:11], s[0:1], 16
      s_load_dwordx2 s[12:13], s[0:1], 32
      v_lshrrev_b32 v2, 6, v0
      v_and_b32 v3, 63, v0
      v_readfirstlane_b32 s14, v2
      v_mul_u32_u24 v0, 12, v3
    """)
    sh = GS.bit_length() - 1
    if a.pat == "seqx":
        E(f"  s_and_b32 s3, s2, 7\n  s_lshl_b32 s3, s3, 5\n  s_lshr_b32 s15, s2, 3\n  s_add_u32 s3, s3, s15\n  s_mul_i32 s3, s3, {GS}\n  s_and_b32 s15, s14, {GS-1}\n  s_add_u32 s3, s3, s15\n  s_mul_i32 s3, s3, 768")
        GST = NL * STEP
    elif a.pat == "seq":
        E(f"  s_mul_i32 s3, s2, {GS}\n  s_and_b32 s15, s14, {GS-1}\n  s_add_u32 s3, s3, s15\n  s_mul_i32 s3, s3, 768")
        GST = NL * STEP
    elif a.pat == "xmaj":
        STEP = 32 * GS * 768
        E(f"  s_and_b32 s3, s2, 7\n  s_mul_i32 s3, s3, 3538944\n  s_lshr_b32 s15, s2, 3\n  s_mul_i32 s15, s15, {GS}\n  s_and_b32 s18, s14, {GS-1}\n  s_add_u32 s15, s15, s18\n  s_mul_i32 s15, s15, 768\n  s_add_u32 s3, s3, s15")
        GST = NL * STEP
    elif a.pat == "xpair":
        E(f"  s_and_b32 s3, s2, 6\n  s_lshl_b32 s3, s3, 5\n  s_lshr_b32 s15, s2, 3\n  s_lshl_b32 s15, s15, 1\n  s_add_u32 s3, s3, s15\n  s_and_b32 s15, s2, 1\n  s_add_u32 s3, s3, s15\n  s_mul_i32 s3, s3, {GS}\n  s_and_b32 s15, s14, {GS-1}\n  s_add_u32 s3, s3, s15\n  s_mul_i32 s3, s3, 768")
        GST = NL * STEP
    elif a.pat == "half":
        STEP = 128 * GS * 768
        E(f"  s_lshr_b32 s3, s2, 2\n  s_and_b32 s3, s3, 1\n  s_mul_i32 s3, s3, 14155776\n  s_and_b32 s15, s2, 3\n  s_lshl_b32 s15, s15, 5\n  s_lshr_b32 s18, s2, 3\n  s_add_u32 s15, s15, s18\n  s_mul_i32 s15, s15, {GS}\n  s_and_b32 s18, s14, {GS-1}\n  s_add_u32 s15, s15, s18\n  s_mul_i32 s15, s15, 768\n  s_add_u32 s3, s3, s15")
        GST = NL * STEP
    if NW > GS:
        E(f"  s_lshr_b32 s15, s14, {sh}\n  s_mul_i32 s15, s15, {GST}\n  s_add_u32 s3, s3, s15")
    E(f"""  v_add_u32 v1, s3, v0
      s_waitcnt lgkmcnt(0)""")
    if a.tlb & 1:
        E(f"""  s_cmp_lg_u32 s14, {a.tlbw}
  s_cbranch_scc1 L_notlb
  v_min_u32 v{VX}, 13, v3
  v_lshlrev_b32 v{VX}, 21, v{VX}
  s_lshl_b32 s18, s2, 7
  v_add_u32 v{VX}, s18, v{VX}
  s_mov_b64 exec, 0x3fff
  global_load_dword v{VX}, v{VX}, s[4:5] nt
  s_mov_b64 exec, -1
L_notlb:""")
    if a.cpf >= 100:
        E(f"""  s_cmp_lg_u32 s14, {a.cpf-100}
      s_cbranch_scc1 L_nocpf
      s_getpc_b64 s[60:61]
    L_pc:
      v_lshlrev_b32 v{VX}, 7, v3
      v_min_u32 v{VX}, L_end-L_pc, v{VX}
      global_load_dword v{VX}, v{VX}, s[60:61]
    L_nocpf:""")
    for i in range(NL):
        lf = a.ldmix.split(",")[i % len(a.ldmix.split(","))] if a.ldmix else a.ld
        E(f"  global_load_dwordx3 v[{D+4*i}:{D+4*i+2}], v1, s[4:5] {lf}")
        if i < NL - 1: E(f"  s_add_u32 s4, s4, {STEP}\n  s_addc_u32 s5, s5, 0")
        if i == 0:
            E(f"  s_load_dword s15, s[12:13], {EPO}")
            E("  s_load_dwordx2 s[16:17], s[6:7], 0")
if not a.fine: stamp(1)
for i in range(NL):
    E(f"  v_mov_b32 v{D+4*i+3}, 0")
E(f"""  v_and_b32 v{T}, 15, v3
  v_lshrrev_b32 v{T+1}, 2, v{T}
  v_sub_u32 v{T+1}, v{T}, v{T+1}
  v_and_b32 v{T+2}, 3, v{T}
  v_cmp_ne_u32 s[18:19], 3, v{T+2}
  v_cmp_gt_u32 s[20:21], 8, v{T}
  v_and_b32 v{T+2}, 1, v{T+1}
  v_lshlrev_b32 v{T+2}, 4, v{T+2}
  s_and_b64 s[18:19], s[18:19], s[20:21]
  v_mov_b32 v{T+3}, 0x3f80
  v_lshlrev_b32 v{T+2}, v{T+2}, v{T+3}
  v_lshrrev_b32 v{T+1}, 1, v{T+1}
  v_cndmask_b32 v{T+2}, 0, v{T+2}, s[18:19]
  v_cmp_eq_u32 s[18:19], 0, v{T+1}
  v_cmp_eq_u32 s[20:21], 1, v{T+1}
  v_cmp_eq_u32 s[22:23], 2, v{T+1}
  v_mov_b32 v{SEL+3}, 0
  v_cndmask_b32 v{SEL}, 0, v{T+2}, s[18:19]
  v_cndmask_b32 v{SEL+1}, 0, v{T+2}, s[20:21]
  v_cndmask_b32 v{SEL+2}, 0, v{T+2}, s[22:23]
  v_lshrrev_b32 v{T+1}, 4, v3
  v_lshlrev_b32 v{T+1}, 4, v{T+1}
  v_lshl_add_u32 v{T+1}, v{T}, 5, v{T+1}
  s_lshl_b32 s26, s14, 9
  v_add_u32 v{T+1}, s26, v{T+1}
  s_mov_b32 s25, 0xffff0000
  v_lshlrev_b32 v3, 2, v3
  s_mov_b32 s24, {a.maxpoll}""")
E(f"""  s_lshl_b32 s18, s14, 8
  v_add_u32 v{VI}, s18, v3
  v_mul_u32_u24 v2, 171, v{VI}
  v_lshrrev_b32 v2, 11, v2
  v_lshl_add_u32 v2, v2, 2, v{VI}
  v_and_b32 v{VA}, 0x7c, v{VI}
  v_lshrrev_b32 v{VI}, 7, v{VI}
  v_lshlrev_b32 v{VI}, 15, v{VI}
  s_lshl_b32 s18, s2, 7
  v_add3_u32 v{VI}, v{VI}, v{VA}, s18""")
if REP:
    E(f"  s_lshr_b32 s28, s2, {REP.bit_length()-1}\n  s_sub_u32 s28, s28, {a.obk}\n  s_and_b32 s62, s2, {REP-1}")
else:
    E(f"  s_sub_u32 s28, s2, {a.ob}")
E(f"""  s_mul_i32 s18, s28, 43
  s_lshr_b32 s18, s18, 7
  s_mul_i32 s19, s18, 3
  s_sub_u32 s19, s28, s19
  s_lshl_b32 s20, s19, 15
  s_mul_i32 s21, s18, {32768//NG}
  s_add_u32 s20, s20, s21
  s_mul_i32 s21, s14, {32768//NG//NW}
  s_add_u32 s20, s20, s21
  v_add_u32 v{VA}, s20, v3
  s_lshl_b32 s21, s14, 7
  v_add_u32 v{VB}, s21, v3
  s_lshl_b32 s29, s19, 7
  s_mul_i32 s18, s18, 384
  s_add_u32 s29, s29, s18
  s_add_u32 s29, s29, {FIN}
""")
if REP:
    E(f"""  s_mul_i32 s31, s62, {XS}
  s_add_u32 s29, s29, s31
  s_mul_i32 s18, s62, 98304
  v_add_u32 v{VA}, s18, v{VA}
  s_mov_b64 s[62:63], s[12:13]""")
else:
    E(f"""  s_getreg_b32 s31, hwreg(HW_REG_XCC_ID, 0, 3)
  s_and_b32 s31, s31, {a.xc-1}
  s_mul_i32 s31, s31, {XS}""")
def unpack(i, dst):
    for d in range(3):
        E(f"  v_lshlrev_b32 v{dst+2*d}, 16, v{D+4*i+d}")
        E(f"  v_and_b32 v{dst+2*d+1}, s25, v{D+4*i+d}")
INL = (NL - 2) if a.inl else 0
for i in range(NL):
    E(f"  s_waitcnt vmcnt({NL-1-i})")
    c = "0" if i == 0 else f"v[{ACC}:{ACC+3}]"
    E(f"  v_mfma_f32_16x16x32_bf16 v[{ACC}:{ACC+3}], v[{SEL}:{SEL+3}], v[{D+4*i}:{D+4*i+3}], {c}")
    if i < PRE and i < INL: unpack(i, U + 6*i)
if not a.fine: stamp(2)
E(f"""  s_waitcnt lgkmcnt(0)
  s_add_u32 s15, s15, 1
  s_and_b32 s27, s15, 15
  s_nop 3
  s_mov_b32 exec_hi, 0
  ds_write_b128 v{T+1}, v[{ACC}:{ACC+3}] offset:{LA}
  s_mov_b32 exec_hi, -1""")
if a.tlb & 2:
    E(f"""  s_cmp_lg_u32 s14, {a.tlbw+1}
  s_cbranch_scc1 L_notlb2
  v_lshrrev_b32 v{VX}, 2, v3
  v_min_u32 v{VX}, 13, v{VX}
  v_lshlrev_b32 v{VX}, 21, v{VX}
  s_lshl_b32 s18, s2, 7
  v_add_u32 v{VX}, s18, v{VX}
  s_mov_b64 exec, 0x3fff
  global_load_dword v{VX}, v{VX}, s[8:9] nt
  s_mov_b64 exec, -1
L_notlb2:""")
if 0 <= a.cpf < 100:
    E(f"""  s_cmp_lg_u32 s14, {a.cpf}
  s_cbranch_scc1 L_nocpf
  s_getpc_b64 s[60:61]
L_pc:
  v_lshlrev_b32 v{VX}, 6, v3
  v_min_u32 v{VX}, L_end-L_pc, v{VX}
  global_load_dword v{VX}, v{VX}, s[60:61]
L_nocpf:""")
if a.warm & 1:
    E(f"  s_cmp_ge_u32 s28, {NO}\n  s_cbranch_scc1 L_nowarm")
    for k in range(NLD):
        E(f"  global_load_dword v{Q+k}, v{VA}, s[12:13] offset:{256*k} {a.pl}")
    E("L_nowarm:")
if a.warm & 2:
    E(f"""  s_cmp_ge_u32 s14, 2
  s_cbranch_scc1 L_nowarm2
  s_mul_i32 s22, s14, 192
  s_add_u32 s23, s22, {FIN}
  s_add_u32 s23, s23, s31
  v_add_u32 v{VX}, s23, v3""")
    for k in range(NG):
        E(f"  global_load_dword v{Q+4+k}, v{VX}, s[12:13] offset:{384*k} {a.pl}")
    E("L_nowarm2:")
E("""  s_waitcnt lgkmcnt(0)
  s_barrier""")
stamp(3)
E("  s_cmp_ge_u32 s14, 2\n  s_cbranch_scc1 L_nopub")
if a.prio: E(f"  s_setprio {a.prio}")
for k in range(NW // 2):
    E(f"  ds_read2st64_b32 v[{P+2*k}:{P+2*k+1}], v2 offset0:{4*k} offset1:{4*k+2}")
E("  s_cmp_eq_u32 s14, 0\n  s_cselect_b32 s18, -1, 0")
def tree(n):
    def pk(d, s): E(f"  v_pk_add_f32 v[{P+2*d}:{P+2*d+1}], v[{P+2*d}:{P+2*d+1}], v[{P+2*s}:{P+2*s+1}]")
    if n == 1: E("  s_waitcnt lgkmcnt(0)")
    for k in range(0, n - 1, 2):
        E(f"  s_waitcnt lgkmcnt({n-2-k})"); pk(k, k + 1)
        if k == 2: pk(0, 2)
        if k == 6: pk(4, 6); pk(0, 4)
    E(f"  v_add_f32 v{P}, v{P}, v{P+1}")
def gather4():
    E("  s_nop 1")
    for j in (1, 2, 3):
        E(f"  v_mov_b32_dpp v{P+j}, v{P} quad_perm:[{j},{j},{j},{j}] row_mask:0xf bank_mask:0xf")
tree(NW // 2)
if a.w4:
    E(f"  v_and_or_b32 v{P}, v{P}, -16, s27\n  s_and_b32 s18, s18, 0x11111111")
    gather4()
    E("  s_mov_b32 exec_lo, 0x11111111\n  s_mov_b32 exec_hi, s18")
else:
    E(f"""  s_mov_b32 exec_hi, s18
  v_and_or_b32 v{P}, v{P}, -16, s27""")
HS = f"global_store_dwordx4" if a.w4 else "global_store_dword"
HD = f"v[{P}:{P+3}]" if a.w4 else f"v{P}"
fine(1)
if REP:
    for c in range(REP):
        E(f"  {HS} v{VI}, {HD}, s[62:63] {a.sy}")
        if c < REP - 1: E("  s_add_u32 s62, s62, 98304\n  s_addc_u32 s63, s63, 0")
else:
    E(f"  {HS} v{VI}, {HD}, s[12:13] {a.sy}")
E(f"""  s_mov_b64 exec, -1
  s_nop 0
L_nopub:
  s_cmp_ge_u32 s28, {NO}
  s_cbranch_scc1 L_notown
L_own:""")
if a.one:
    assert a.xc == 8 and a.w4
    FADDR = f"""  v_lshrrev_b32 v{VB}, 7, v3
  v_mul_u32_u24 v{VB}, {4*XS-128}, v{VB}
  v_and_b32 v{VX}, 12, v3
  v_mul_u32_u24 v{VX}, {XS//4-1}, v{VX}
  v_add3_u32 v{VB}, v{VB}, v3, s29
  v_add_u32 v{VB}, v{VB}, v{VX}"""
else:
    FADDR = f"""  v_lshrrev_b32 v{VB}, 7, v3
  v_mul_u32_u24 v{VB}, {XS-128}, v{VB}
  v_add3_u32 v{VB}, v{VB}, v3, s29"""
def polln(n, areg, offs):
    for k in range(n):
        E(f"  global_load_dword v{Q+k}, v{areg}, s[12:13] offset:{offs(k)} {a.pl}")
    for k in range(n):
        E(f"  s_waitcnt vmcnt({n-1-k})")
        E(f"  v_xor_b32 v{Q+k}, s27, v{Q+k}")
        if k == 1:
            E(f"  v_or_b32 v{M}, v{Q}, v{Q+1}\n  v_add_f32 v{P}, v{Q}, v{Q+1}")
        elif k > 1:
            E(f"  v_or_b32 v{M}, v{M}, v{Q+k}\n  v_add_f32 v{P}, v{P}, v{Q+k}")
    if n == 1:
        E(f"  v_and_b32 v{M}, 15, v{Q}\n  v_mov_b32 v{P}, v{Q}")
    else:
        E(f"  v_and_b32 v{M}, 15, v{M}")
    E(f"  v_cmp_ne_u32 vcc, 0, v{M}")
def ppoll(label, n, areg, offs, cnt, dup, depth, sl):
    assert n * depth <= 8
    def issue(r):
        for k in range(n): E(f"  global_load_dword v{Q+n*r+k}, v{areg}, s[12:13] offset:{offs(k)} {a.pl}")
    def check(r):
        q = Q + n*r
        for k in range(n):
            E(f"  s_waitcnt vmcnt({n*(depth-1) + n-1-k})")
            E(f"  v_xor_b32 v{q+k}, s27, v{q+k}")
            if k == 1: E(f"  v_or_b32 v{M}, v{q}, v{q+1}\n  v_add_f32 v{P}, v{q}, v{q+1}")
            elif k > 1: E(f"  v_or_b32 v{M}, v{M}, v{q+k}\n  v_add_f32 v{P}, v{P}, v{q+k}")
        if n == 1: E(f"  v_and_b32 v{M}, 15, v{q}\n  v_mov_b32 v{P}, v{q}")
        else: E(f"  v_and_b32 v{M}, 15, v{M}")
        E(f"  v_cmp_ne_u32 vcc, 0, v{M}")
        if dup: E(f"  v_mov_b32 v{P+1}, v{P}")
        E(f"  s_sub_u32 {cnt}, {cnt}, 1\n  s_cbranch_scc1 {label}_ok\n  s_cbranch_vccz {label}_ok")
    for r in range(depth - 1):
        issue(r)
        if sl: E(f"  s_sleep {sl}")
    E(f"{label}_l:")
    for r in range(depth):
        issue((r + depth - 1) % depth); check(r)
        if sl: E(f"  s_sleep {sl}")
    E(f"  s_branch {label}_l\n{label}_ok:")
if a.d1 > 1:
    ppoll("L_own", NLD, VA, lambda k: 256*k, "s24", True, a.d1, a.ps)
else:
    polln(NLD, VA, lambda k: 256*k)
    E(f"""  v_mov_b32 v{P+1}, v{P}
  s_sub_u32 s24, s24, 1
  s_cbranch_scc1 L_own_ok
  s_cbranch_vccz L_own_ok
  s_branch L_own
L_own_ok:""")
if a.fine: E("  s_cmp_lt_u32 s14, 2\n  s_cbranch_scc1 L_f1"); stamp(1); E("L_f1:")
E(f"""  v_permlane32_swap_b32 v{P}, v{P+1}
  s_mov_b32 exec_hi, 0
  v_add_f32 v{P}, v{P}, v{P+1}
  ds_write_b32 v{VB}, v{P} offset:{LB}
  s_mov_b32 exec_hi, -1
  s_movk_i32 s18, {LB}
  v_and_b32 v{VA}, 0x80, v3
  v_mul_u32_u24 v{VA}, {NW//2-1}, v{VA}
  v_add3_u32 v{VA}, v{VA}, v3, s18
{FADDR}
  s_waitcnt lgkmcnt(0)
  s_barrier
  s_cmp_lg_u32 s14, 0
  s_cbranch_scc1 L_notown""")
for k in range(NW // 4):
    E(f"  ds_read2_b32 v[{P+2*k}:{P+2*k+1}], v{VA} offset0:{64*k} offset1:{64*k+32}")
tree(NW // 4)
E(f"""  v_mov_b32 v{P+1}, v{P}
  s_nop 1
  v_permlane32_swap_b32 v{P}, v{P+1}""")
if a.xc == 1: E("  s_mov_b32 exec_hi, 0")
E(f"""  v_add_f32 v{P}, v{P}, v{P+1}
  v_and_or_b32 v{P}, v{P}, -16, s27""")
if a.one:
    E("  s_nop 1")
    for j in range(4):
        E(f"  v_mov_b32_dpp v{P+4+j}, v{P} quad_perm:[{j},{j},{j},{j}] row_mask:0xf bank_mask:0xf")
    E(f"  global_store_dwordx4 v{VB}, v[{P+4}:{P+7}], s[12:13] {a.sy}")
elif a.w4:
    gather4()
    E("  s_mov_b32 exec_lo, 0x11111111")
    if a.xc > 1: E("  s_mov_b32 exec_hi, 0x11111111")
cur = 0
for k in range(0 if a.one else max(1, a.xc // 2)):
    off = 2*XS*k - cur
    if off > 4095:
        E(f"  v_add_u32 v{VB}, {off}, v{VB}"); cur += off; off = 0
    E(f"  {HS} v{VB}, {HD}, s[12:13] offset:{off} {a.sy}")
E("  s_mov_b64 exec, -1")
fine(2)
E("L_notown:")
for i in range(NL):
    if i < PRE and i >= INL: unpack(i, U + 6*i)
E(f"""  s_cmp_ge_u32 s14, 2
  s_cbranch_scc1 L_wait
  s_mul_i32 s22, s14, 192
  s_add_u32 s23, s22, {FIN-4}
  s_add_u32 s23, s23, s31
  v_add_u32 v{VA}, s23, v3
  s_add_u32 s23, s22, {LS-4}
  v_add_u32 v{VB}, s23, v3
  s_lshl_b32 s18, s16, 16
  s_and_b32 s19, s16, 0xffff0000
  s_lshl_b32 s20, s17, 16
  s_mov_b32 s21, {f2u(1.0/147456.0)}
  s_lshr_b32 s23, 0x3ffff, s14
  s_cmp_eq_u32 s14, 0
  s_cselect_b32 exec_lo, -2, -1
  s_mov_b32 exec_hi, s23
  s_mov_b32 s30, {a.maxpoll}
L_poll:""")
if a.d2 > 1:
    ppoll("L_poll", NG, VA, lambda k: 384*k, "s30", False, a.d2, a.ps2)
else:
    polln(NG, VA, lambda k: 384*k)
    E(f"""  s_sub_u32 s30, s30, 1
  s_cbranch_scc1 L_poll_ok
  s_cbranch_vccz L_poll_ok
  s_branch L_poll
L_poll_ok:""")
stamp(4)
emit_gate1(E, P, P+2)
E(f"""  s_mov_b32 exec_lo, -2
  s_mov_b32 exec_hi, 0x1ffff
  ds_write_b32 v{VB}, v{P}""")
if a.prio: E("  s_setprio 0")
E(f"""  s_or_b32 s18, s2, s14
  s_cmp_lg_u32 s18, 0
  s_cbranch_scc1 L_noepo
  s_mov_b64 exec, 1
  v_mov_b32 v{VA}, {EPO}
  v_mov_b32 v{VX}, s15
  global_store_dword v{VA}, v{VX}, s[12:13] {a.sy}
L_noepo:
  s_mov_b64 exec, -1
  s_waitcnt lgkmcnt(0)
L_wait:
  v_and_b32 v3, 60, v3
  v_mul_u32_u24 v3, 6, v3
  s_barrier""")
stamp(5)
for j in range(3):
    E(f"  ds_read_b64 v[{S+2*j}:{S+2*j+1}], v3 offset:{LS+8*j}")
E("  s_waitcnt lgkmcnt(0)")
for i in range(NL):
    if i < PRE: src = U + 6*i
    else:
        src = TMP + 6*(i & 1); unpack(i, src)
    for d in range(3):
        E(f"  v_pk_mul_f32 v[{src+2*d}:{src+2*d+1}], v[{src+2*d}:{src+2*d+1}], v[{S+2*d}:{S+2*d+1}]")
    for d in range(3):
        E(f"  v_cvt_pk_bf16_f32 v{D+4*i+d}, v{src+2*d}, v{src+2*d+1}")
    sf = a.stmix.split(",")[i % len(a.stmix.split(","))] if a.stmix else a.st
    E(f"  global_store_dwordx3 v1, v[{D+4*i}:{D+4*i+2}], s[8:9] {sf}")
    if i < NL - 1: E(f"  s_add_u32 s8, s8, {STEP}\n  s_addc_u32 s9, s9, 0")
if a.stamp:
    stamp(6)
    E("  s_waitcnt vmcnt(0)")
    E("  s_barrier")
    stamp(7)
    E("  s_mov_b32 s27, s30")
    emit_stamp_dump(E, a, cnt="s24")
if a.dbgx:
    E(f"""  s_cmp_ge_u32 s2, 16
  s_cbranch_scc1 L_end
  s_cmp_lg_u32 s14, 0
  s_cbranch_scc1 L_end
  s_getreg_b32 s18, hwreg(HW_REG_XCC_ID, 0, 4)
  s_lshl_b32 s19, s2, 2
  s_mov_b64 exec, 1
  v_mov_b32 v2, s19
  v_mov_b32 v3, s18
  global_store_dword v2, v3, s[10:11]""")
E("L_end:\n  s_endpgm")
nv = max(NV, a.vg)
if nv <= 256: E(kd(KN, nv, 72))
else: E(kd(KN, 256, 64).replace("next_free_vgpr 256", f"next_free_vgpr {nv}"))
open(a.o, "w").write("\n".join(o) + "\n")
print(build(a.o), "NV", NV, "PRE", PRE, "LDS", LDS)
```

```python
import struct
def f2u(x): return hex(struct.unpack('<I', struct.pack('<f', x))[0])
def emit_stamp_dump(E, a, nwg=256, cnt="s24"):
    if a.exf:
        parts = a.exf.split(","); k, K = int(parts[0]), int(parts[1]); mode = parts[2] if len(parts) > 2 else ""
        if mode:
            E(f'''  s_cmp_lg_u32 s14, {getattr(a,'xw',0)}
  s_cbranch_scc1 L_end
  s_waitcnt lgkmcnt(0)
  s_getreg_b32 s50, hwreg(HW_REG_XCC_ID)
  s_and_b32 s50, s50, 7
  s_lshl_b32 s50, s50, 2
  s_mov_b64 exec, 1
  s_not_b32 s18, s32
  v_mov_b32 v4, s18
  v_mov_b32 v5, s{32+2*k}
  v_mov_b32 v6, 1
  v_mov_b32 v1, 128
  v_mov_b32 v2, s50
  global_atomic_umax v1, v4, s[10:11]
  global_atomic_umax v2, v5, s[10:11] offset:192
  s_waitcnt vmcnt(0)
  global_atomic_add v7, v1, v6, s[10:11] offset:8 sc0
  s_waitcnt vmcnt(0)
  v_readfirstlane_b32 s18, v7
  s_cmp_lg_u32 s18, {nwg-1}
  s_cbranch_scc1 L_end
  global_load_dword v4, v1, s[10:11] sc1
  global_load_dwordx4 v[8:11], v1, s[10:11] offset:64 sc1
  global_load_dwordx4 v[12:15], v1, s[10:11] offset:80 sc1
  s_waitcnt vmcnt(0)
  v_readfirstlane_b32 s18, v4
  s_not_b32 s18, s18''')
            for j in range(8): E(f"  v_subrev_u32 v{8+j}, s18, v{8+j}")
            if mode == "xmin":
                E("  v_min3_u32 v5, v8, v9, v10\n  v_min3_u32 v5, v5, v11, v12\n  v_min3_u32 v5, v5, v13, v14\n  v_min_u32 v5, v5, v15")
            elif mode == "xmax":
                E("  v_max3_u32 v5, v8, v9, v10\n  v_max3_u32 v5, v5, v11, v12\n  v_max3_u32 v5, v5, v13, v14\n  v_max_u32 v5, v5, v15")
            elif mode == "xavg":
                E("  v_add3_u32 v5, v8, v9, v10\n  v_add3_u32 v5, v5, v11, v12\n  v_add3_u32 v5, v5, v13, v14\n  v_add_u32 v5, v5, v15\n  v_lshrrev_b32 v5, 3, v5")
            else:
                E(f"  v_mov_b32 v5, v{8+int(mode[1:])}")
            E(f'''  global_store_dwordx4 v1, v[8:11], s[10:11] offset:-128
  global_store_dwordx4 v1, v[12:15], s[10:11] offset:-112
  s_nop 0
  v_readfirstlane_b32 s19, v5
  s_min_u32 s19, s19, 10000
  s_mul_i32 s19, s19, {K}
  s_memrealtime s[20:21]
  s_waitcnt lgkmcnt(0)
  s_add_u32 s19, s19, s20
L_spin:
  s_memrealtime s[20:21]
  s_waitcnt lgkmcnt(0)
  s_sub_u32 s22, s19, s20
  s_cmp_gt_i32 s22, 0
  s_cbranch_scc1 L_spin
  s_branch L_end''')
            return
        E(f'''  s_cmp_lg_u32 s14, {getattr(a,'xw',0)}
  s_cbranch_scc1 L_end
  s_waitcnt lgkmcnt(0)
  s_mov_b64 exec, 1
  s_not_b32 s18, s32
  v_mov_b32 v4, s18
  v_mov_b32 v5, s{32+2*k}
  v_mov_b32 v6, 1
  v_mov_b32 v1, 128
  global_atomic_umax v1, v4, s[10:11]
  global_atomic_umax v1, v5, s[10:11] offset:4
  s_waitcnt vmcnt(0)
  global_atomic_add v7, v1, v6, s[10:11] offset:8 sc0
  s_waitcnt vmcnt(0)
  v_readfirstlane_b32 s18, v7
  s_cmp_lg_u32 s18, {nwg-1}
  s_cbranch_scc1 L_end
  global_load_dwordx2 v[4:5], v1, s[10:11] sc1
  s_waitcnt vmcnt(0)
  v_readfirstlane_b32 s18, v4
  v_readfirstlane_b32 s19, v5
  s_not_b32 s18, s18
  s_sub_u32 s19, s19, s18
  s_min_u32 s19, s19, 10000
  v_mov_b32 v4, s19
  global_store_dword v1, v4, s[10:11] offset:12
  s_mul_i32 s19, s19, {K}
  s_memrealtime s[20:21]
  s_waitcnt lgkmcnt(0)
  s_add_u32 s19, s19, s20
L_spin:
  s_memrealtime s[20:21]
  s_waitcnt lgkmcnt(0)
  s_sub_u32 s22, s19, s20
  s_cmp_gt_i32 s22, 0
  s_cbranch_scc1 L_spin
  s_branch L_end''')
        return
    if a.allw:
        E("  s_lshl_b32 s2, s2, 4\n  s_add_u32 s2, s2, s14")
    else:
        E("  s_cmp_lg_u32 s14, 0\n  s_cbranch_scc1 L_end")
    E(f"""  s_getreg_b32 s50, hwreg(HW_REG_XCC_ID)
  s_getreg_b32 s51, hwreg(HW_REG_HW_ID)
  s_waitcnt lgkmcnt(0)
  s_lshl_b32 s18, s2, 6
  s_add_u32 s18, s18, {64<<20}
  v_mov_b32 v1, s18""")
    for k in range(8):
        E(f"  v_mov_b32 v{4+k}, s{32+2*k}")
    E(f"""  v_mov_b32 v12, s50
  v_mov_b32 v13, s51
  v_mov_b32 v14, {cnt}
  v_mov_b32 v15, s27
  s_mov_b64 exec, 1
  global_store_dwordx4 v1, v[4:7], s[12:13]
  global_store_dwordx4 v1, v[8:11], s[12:13] offset:16
  global_store_dwordx4 v1, v[12:15], s[12:13] offset:32""")

def emit_gate(E, P, wreg="s16", wreg2="s17", mask="s25"):
    E(f"""  s_lshl_b32 s18, {wreg}, 16
  s_and_b32 s19, {wreg}, 0xffff0000
  s_lshl_b32 s20, {wreg2}, 16
  s_mov_b32 s21, {f2u(1.0/147456.0)}""")
    def rne3(src, dst, tmp):
        E(f"  v_cvt_pk_bf16_f32 v{tmp}, v{src[0]}, v{src[1]}")
        E(f"  v_cvt_pk_bf16_f32 v{tmp+1}, v{src[2]}, v{src[2]}")
        E(f"  v_lshlrev_b32 v{dst[0]}, 16, v{tmp}")
        E(f"  v_and_b32 v{dst[1]}, {mask}, v{tmp}")
        E(f"  v_lshlrev_b32 v{dst[2]}, 16, v{tmp+1}")
    src = [P, P+1, P+2]
    g = [P+9, P+10, P+11]
    rne3(src, src, P+14)
    for j in range(3): E(f"  v_mul_f32 v{src[j]}, s21, v{src[j]}")
    rne3(src, g, P+14)
    E("  s_nop 1")
    E(f"  v_mov_b32_dpp v{P+8}, v{P+11} wave_shr:1 row_mask:0xf bank_mask:0xf bound_ctrl:0")
    E(f"  v_mov_b32_dpp v{P+12}, v{P+9} wave_shl:1 row_mask:0xf bank_mask:0xf bound_ctrl:0")
    p0 = [P+5, P+6, P+7]; p1 = [P, P+1, P+2]
    for j in range(3): E(f"  v_mul_f32 v{p0[j]}, s18, v{P+8+j}")
    for j in range(3): E(f"  v_mul_f32 v{p1[j]}, s19, v{P+9+j}")
    rne3(p0, p0, P+14); rne3(p1, p1, P+3)
    for j in range(3): E(f"  v_add_f32 v{p0[j]}, v{p0[j]}, v{p1[j]}")
    for j in range(3): E(f"  v_mul_f32 v{p1[j]}, s20, v{P+10+j}")
    rne3(p0, p0, P+14); rne3(p1, p1, P+3)
    for j in range(3): E(f"  v_add_f32 v{p0[j]}, v{p0[j]}, v{p1[j]}")
    rne3(p0, p0, P+14)
    for j in range(3): E(f"  v_mul_f32 v{p0[j]}, 0xbfb8aa3b, v{p0[j]}")
    for j in range(3): E(f"  v_exp_f32 v{p0[j]}, v{p0[j]}")
    E("  s_nop 0")
    for j in range(3): E(f"  v_add_f32 v{p0[j]}, 1.0, v{p0[j]}")
    for j in range(3): E(f"  v_rcp_f32 v{p0[j]}, v{p0[j]}")
    E("  s_nop 0")
    rne3(p0, p0, P+14)
    return p0

def emit_gate1(E, X, T, wreg="s16", wreg2="s17", mask="s25"):
    E(f"""  v_cvt_pk_bf16_f32 v{X}, v{X}, v{X}
  v_and_b32 v{X}, {mask}, v{X}
  v_mul_f32 v{X}, s21, v{X}
  v_cvt_pk_bf16_f32 v{X}, v{X}, v{X}
  v_and_b32 v{X}, {mask}, v{X}
  v_mul_f32 v{T+1}, s19, v{X}
  v_mul_f32 v{T+3}, s18, v{X}
  v_mul_f32 v{T+4}, s20, v{X}
  v_cvt_pk_bf16_f32 v{T+1}, v{T+1}, v{T+1}
  v_cvt_pk_bf16_f32 v{T+5}, v{T+3}, v{T+4}
  v_and_b32 v{T+1}, {mask}, v{T+1}
  s_nop 0
  v_mov_b32_dpp v{T}, v{T+5} wave_shr:1 row_mask:0xf bank_mask:0xf bound_ctrl:0
  v_mov_b32_dpp v{T+2}, v{T+5} wave_shl:1 row_mask:0xf bank_mask:0xf bound_ctrl:0
  v_lshlrev_b32 v{T}, 16, v{T}
  v_and_b32 v{T+2}, {mask}, v{T+2}
  v_add_f32 v{X}, v{T}, v{T+1}
  v_cvt_pk_bf16_f32 v{X}, v{X}, v{X}
  v_and_b32 v{X}, {mask}, v{X}
  v_add_f32 v{X}, v{X}, v{T+2}
  v_cvt_pk_bf16_f32 v{X}, v{X}, v{X}
  v_and_b32 v{X}, {mask}, v{X}
  v_mul_f32 v{X}, 0xbfb8aa3b, v{X}
  v_exp_f32 v{X}, v{X}
  s_nop 0
  v_add_f32 v{X}, 1.0, v{X}
  v_rcp_f32 v{X}, v{X}
  s_nop 0
  v_cvt_pk_bf16_f32 v{X}, v{X}, v{X}
  v_and_b32 v{X}, {mask}, v{X}""")

def emit_gate2(E, X, T):
    E(f"""  v_cvt_pk_bf16_f32 v{X}, 0, v{X}
  v_mul_f32 v{X}, s21, v{X}
  v_cvt_pk_bf16_f32 v{X}, 0, v{X}
  v_mul_f32 v{T}, s18, v{X}
  v_mul_f32 v{T+2}, s20, v{X}
  v_mul_f32 v{T+1}, s19, v{X}
  v_cvt_pk_bf16_f32 v{T}, 0, v{T}
  v_cvt_pk_bf16_f32 v{T+2}, 0, v{T+2}
  v_cvt_pk_bf16_f32 v{T+1}, 0, v{T+1}
  v_add_f32_dpp v{X}, v{T}, v{T+1} wave_shr:1 row_mask:0xf bank_mask:0xf bound_ctrl:0
  v_cvt_pk_bf16_f32 v{X}, 0, v{X}
  v_add_f32_dpp v{X}, v{T+2}, v{X} wave_shl:1 row_mask:0xf bank_mask:0xf bound_ctrl:0
  v_cvt_pk_bf16_f32 v{X}, 0, v{X}
  v_mul_f32 v{X}, 0xbfb8aa3b, v{X}
  v_exp_f32 v{X}, v{X}
  s_nop 0
  v_add_f32 v{X}, 1.0, v{X}
  v_rcp_f32 v{X}, v{X}
  s_nop 0
  v_cvt_pk_bf16_f32 v{X}, 0, v{X}""")
```

```python
import sys, argparse
from asmlib import *
from common import *
ap = argparse.ArgumentParser()
ap.add_argument("-o", default="v10.s")
ap.add_argument("--nw", type=int, default=16)
ap.add_argument("--pre", type=int, default=99)
ap.add_argument("--inl", type=int, default=1)
ap.add_argument("--ob", type=int, default=16)
ap.add_argument("--ng", type=int, default=4)
ap.add_argument("--xc", type=int, default=8)
ap.add_argument("--gs", type=int, default=4)
ap.add_argument("--stamp", action="store_true")
ap.add_argument("--allw", action="store_true")
ap.add_argument("--fine", action="store_true")
ap.add_argument("--exf", default="")
ap.add_argument("--xw", type=int, default=0)
ap.add_argument("--ld", default="nt")
ap.add_argument("--st", default="sc1")
ap.add_argument("--sy", default="sc1")
ap.add_argument("--pl", default="sc1")
ap.add_argument("--prio", type=int, default=3)
ap.add_argument("--cpf", type=int, default=1)
ap.add_argument("--lds", type=int, default=0)
ap.add_argument("--vg", type=int, default=0)
ap.add_argument("--warm", type=int, default=0)
ap.add_argument("--pat", default="seqx")
ap.add_argument("--stmix", default="")
ap.add_argument("--ldmix", default="")
ap.add_argument("--stg", default="")
ap.add_argument("--rep", type=int, default=0)
ap.add_argument("--obk", type=int, default=2)
ap.add_argument("--w4", type=int, default=1)
ap.add_argument("--fp", type=int, default=0)
ap.add_argument("--d1", type=int, default=1)
ap.add_argument("--d2", type=int, default=1)
ap.add_argument("--ps", type=int, default=0)
ap.add_argument("--ps2", type=int, default=0)
ap.add_argument("--tlb", type=int, default=0)
ap.add_argument("--tlbw", type=int, default=2)
ap.add_argument("--one", type=int, default=0)
ap.add_argument("--dbgx", type=int, default=0)
ap.add_argument("--thr", type=int, default=0)
ap.add_argument("--thp", type=int, default=0)
ap.add_argument("--pw", type=int, default=0)
ap.add_argument("--pwf", default="sc1")
ap.add_argument("--g2", type=int, default=1)
ap.add_argument("--iod", type=int, default=0)
ap.add_argument("--maxpoll", type=int, default=200000)
a = ap.parse_args()
if a.exf or a.allw: a.stamp = True
o = []; E = o.append
def stamp(k):
    if a.stamp: E(f"  s_memrealtime s[{32+2*k}:{33+2*k}]")
def fine(k):
    if a.fine: stamp(k)
NW = a.nw; NL = 144 // NW; GS = a.gs
NG = a.ng; NO = 3 * NG; NLD = 128 // (NG * NW)
assert 1 <= NLD <= 8
LA = 0; LB = 512 * NW; LS = LB + 128 * NW; LDS = a.lds or (LS + 512)
REP = a.rep
FIN = 98304 * max(1, REP)
XS = 384 * NG
EPO = 131072 if not REP else 1048512
if REP: a.xc = 1
IOD = a.iod & 3; FLIP = (a.iod >> 2) & 1
if IOD:
    assert NG == 4 and a.xc == 8 and not REP and not a.one
    FIN = 131072; EPO = 163840
STEP = 256 * GS * 768
VMAX = 128 if NW == 16 else 256
D = 4; U = D + 4 * NL
PRE = min(a.pre, NL, (VMAX - U - 30) // 6)
P = U + 6 * PRE; P += P & 1
SEL = P; ACC = P + 4; T = P + 8; S = P + 16; Q = P + 16
if a.d2 > 1 or a.d1 > 1: S = P + 8
VI, VA, VB, VX = P + 24, P + 25, P + 26, P + 27
TMP = P
NV = P + 28
assert NV <= VMAX
M = D + 3
E(HEADER + f"; @launch grid=(256,1,1) block=({64*NW},1,1) lds={LDS}")
E(f""".amdgcn_target "amdgcn-amd-amdhsa--gfx950"
.text
.globl {KN}
.p2align 8
.type {KN},@function
{KN}:""")
stamp(0)
if a.fp:
    assert GS == 4 and not a.cpf >= 100
    E(f"""  s_load_dwordx2 s[4:5], s[0:1], 0
  s_cmp_ge_u32 s2, 256
  s_cbranch_scc1 L_end
  v_and_b32 v1, 0xff, v0
  v_mul_u32_u24 v1, 12, v1
  s_mul_i32 s3, s2, 3072""")
    if NW > 4:
        E(f"""  v_lshrrev_b32 v2, 8, v0
  v_mul_u32_u24 v2, {NL*STEP}, v2
  v_add3_u32 v1, v1, v2, s3""")
    else:
        E("  v_add_u32 v1, s3, v1")
    E("  s_waitcnt lgkmcnt(0)")
    for i in range(NL):
        lf = a.ldmix.split(",")[i % len(a.ldmix.split(","))] if a.ldmix else a.ld
        E(f"  global_load_dwordx3 v[{D+4*i}:{D+4*i+2}], v1, s[4:5] {lf}")
        if i < NL - 1: E(f"  s_add_u32 s4, s4, {STEP}\n  s_addc_u32 s5, s5, 0")
        if i == a.fp - 1:
            E("  s_load_dwordx2 s[6:7], s[0:1], 8\n  s_load_dwordx2 s[12:13], s[0:1], 32\n  s_load_dwordx4 s[8:11], s[0:1], 16")
    E(f"""  v_lshrrev_b32 v2, 6, v0
  v_and_b32 v3, 63, v0
  v_readfirstlane_b32 s14, v2
  v_mul_u32_u24 v0, 12, v3
  s_waitcnt lgkmcnt(0)
  s_load_dword s15, s[12:13], {EPO}
  s_load_dwordx2 s[16:17], s[6:7], 0""")
else:
    E(f"""  s_cmp_ge_u32 s2, 256
      s_cbranch_scc1 L_end
      s_load_dwordx4 s[4:7], s[0:1], 0
      s_load_dwordx4 s[8:11], s[0:1], 16
      s_load_dwordx2 s[12:13], s[0:1], 32
      v_lshrrev_b32 v2, 6, v0
      v_and_b32 v3, 63, v0
      v_readfirstlane_b32 s14, v2
      v_mul_u32_u24 v0, 12, v3
    """)
    sh = GS.bit_length() - 1
    if a.pat == "seqx":
        E(f"  s_and_b32 s3, s2, 7\n  s_lshl_b32 s3, s3, 5\n  s_lshr_b32 s15, s2, 3\n  s_add_u32 s3, s3, s15\n  s_mul_i32 s3, s3, {GS}\n  s_and_b32 s15, s14, {GS-1}\n  s_add_u32 s3, s3, s15\n  s_mul_i32 s3, s3, 768")
        GST = NL * STEP
    elif a.pat == "seq":
        E(f"  s_mul_i32 s3, s2, {GS}\n  s_and_b32 s15, s14, {GS-1}\n  s_add_u32 s3, s3, s15\n  s_mul_i32 s3, s3, 768")
        GST = NL * STEP
    elif a.pat == "xmaj":
        STEP = 32 * GS * 768
        E(f"  s_and_b32 s3, s2, 7\n  s_mul_i32 s3, s3, 3538944\n  s_lshr_b32 s15, s2, 3\n  s_mul_i32 s15, s15, {GS}\n  s_and_b32 s18, s14, {GS-1}\n  s_add_u32 s15, s15, s18\n  s_mul_i32 s15, s15, 768\n  s_add_u32 s3, s3, s15")
        GST = NL * STEP
    elif a.pat == "xpair":
        E(f"  s_and_b32 s3, s2, 6\n  s_lshl_b32 s3, s3, 5\n  s_lshr_b32 s15, s2, 3\n  s_lshl_b32 s15, s15, 1\n  s_add_u32 s3, s3, s15\n  s_and_b32 s15, s2, 1\n  s_add_u32 s3, s3, s15\n  s_mul_i32 s3, s3, {GS}\n  s_and_b32 s15, s14, {GS-1}\n  s_add_u32 s3, s3, s15\n  s_mul_i32 s3, s3, 768")
        GST = NL * STEP
    elif a.pat == "half":
        STEP = 128 * GS * 768
        E(f"  s_lshr_b32 s3, s2, 2\n  s_and_b32 s3, s3, 1\n  s_mul_i32 s3, s3, 14155776\n  s_and_b32 s15, s2, 3\n  s_lshl_b32 s15, s15, 5\n  s_lshr_b32 s18, s2, 3\n  s_add_u32 s15, s15, s18\n  s_mul_i32 s15, s15, {GS}\n  s_and_b32 s18, s14, {GS-1}\n  s_add_u32 s15, s15, s18\n  s_mul_i32 s15, s15, 768\n  s_add_u32 s3, s3, s15")
        GST = NL * STEP
    if NW > GS:
        E(f"  s_lshr_b32 s15, s14, {sh}\n  s_mul_i32 s15, s15, {GST}\n  s_add_u32 s3, s3, s15")
    E(f"""  v_add_u32 v1, s3, v0
      s_waitcnt lgkmcnt(0)""")
    if a.tlb & 1:
        E(f"""  s_cmp_lg_u32 s14, {a.tlbw}
  s_cbranch_scc1 L_notlb
  v_min_u32 v{VX}, 13, v3
  v_lshlrev_b32 v{VX}, 21, v{VX}
  s_lshl_b32 s18, s2, 7
  v_add_u32 v{VX}, s18, v{VX}
  s_mov_b64 exec, 0x3fff
  global_load_dword v{VX}, v{VX}, s[4:5] nt
  s_mov_b64 exec, -1
L_notlb:""")
    if a.cpf >= 100:
        E(f"""  s_cmp_lg_u32 s14, {a.cpf-100}
      s_cbranch_scc1 L_nocpf
      s_getpc_b64 s[60:61]
    L_pc:
      v_lshlrev_b32 v{VX}, 7, v3
      v_min_u32 v{VX}, L_end-L_pc, v{VX}
      global_load_dword v{VX}, v{VX}, s[60:61]
    L_nocpf:""")
    for i in range(NL):
        lf = a.ldmix.split(",")[i % len(a.ldmix.split(","))] if a.ldmix else a.ld
        E(f"  global_load_dwordx3 v[{D+4*i}:{D+4*i+2}], v1, s[4:5] {lf}")
        if i < NL - 1: E(f"  s_add_u32 s4, s4, {STEP}\n  s_addc_u32 s5, s5, 0")
        if i == 0:
            E(f"  s_load_dword s15, s[12:13], {EPO}")
            E("  s_load_dwordx2 s[16:17], s[6:7], 0")
if not a.fine: stamp(1)
for i in range(NL):
    E(f"  v_mov_b32 v{D+4*i+3}, 0")
E(f"""  v_and_b32 v{T}, 15, v3
  v_lshrrev_b32 v{T+1}, 2, v{T}
  v_sub_u32 v{T+1}, v{T}, v{T+1}
  v_and_b32 v{T+2}, 3, v{T}
  v_cmp_ne_u32 s[18:19], 3, v{T+2}
  v_cmp_gt_u32 s[20:21], 8, v{T}
  v_and_b32 v{T+2}, 1, v{T+1}
  v_lshlrev_b32 v{T+2}, 4, v{T+2}
  s_and_b64 s[18:19], s[18:19], s[20:21]
  v_mov_b32 v{T+3}, 0x3f80
  v_lshlrev_b32 v{T+2}, v{T+2}, v{T+3}
  v_lshrrev_b32 v{T+1}, 1, v{T+1}
  v_cndmask_b32 v{T+2}, 0, v{T+2}, s[18:19]
  v_cmp_eq_u32 s[18:19], 0, v{T+1}
  v_cmp_eq_u32 s[20:21], 1, v{T+1}
  v_cmp_eq_u32 s[22:23], 2, v{T+1}
  v_mov_b32 v{SEL+3}, 0
  v_cndmask_b32 v{SEL}, 0, v{T+2}, s[18:19]
  v_cndmask_b32 v{SEL+1}, 0, v{T+2}, s[20:21]
  v_cndmask_b32 v{SEL+2}, 0, v{T+2}, s[22:23]
  v_lshrrev_b32 v{T+1}, 4, v3
  v_lshlrev_b32 v{T+1}, 4, v{T+1}
  v_lshl_add_u32 v{T+1}, v{T}, 5, v{T+1}
  s_lshl_b32 s26, s14, 9
  v_add_u32 v{T+1}, s26, v{T+1}
  s_mov_b32 s25, 0xffff0000
  v_lshlrev_b32 v3, 2, v3
  s_mov_b32 s24, {a.maxpoll}""")
E(f"""  s_lshl_b32 s18, s14, 8
  v_add_u32 v{VI}, s18, v3
  v_mul_u32_u24 v2, 171, v{VI}
  v_lshrrev_b32 v2, 11, v2
  v_lshl_add_u32 v2, v2, 2, v{VI}
  v_and_b32 v{VA}, 0x7c, v{VI}
  v_lshrrev_b32 v{VI}, 7, v{VI}""")
if IOD == 2:
    E(f"""  s_lshr_b32 s18, s2, 6
  s_mul_i32 s18, s18, 3
  v_add_u32 v{VI}, s18, v{VI}
  v_and_b32 v{VB}, 3, v{VI}
  v_lshrrev_b32 v{VX}, 3, v{VI}
  v_lshl_add_u32 v{VB}, v{VX}, 2, v{VB}
  v_add_u32 v{VI}, {a.ob + 4*FLIP}, v{VI}
  v_bfe_u32 v{VI}, v{VI}, 2, 1
  v_lshlrev_b32 v{VI}, 13, v{VI}
  v_lshl_add_u32 v{VI}, v{VB}, 14, v{VI}
  s_and_b32 s18, s2, 63
  s_lshl_b32 s18, s18, 7
  v_add3_u32 v{VI}, v{VI}, v{VA}, s18""")
else:
    E(f"""  v_lshlrev_b32 v{VI}, 15, v{VI}
  s_lshl_b32 s18, s2, 7
  v_add3_u32 v{VI}, v{VI}, v{VA}, s18""")
if REP:
    E(f"  s_lshr_b32 s28, s2, {REP.bit_length()-1}\n  s_sub_u32 s28, s28, {a.obk}\n  s_and_b32 s62, s2, {REP-1}")
else:
    E(f"  s_sub_u32 s28, s2, {a.ob}")
E(f"""  s_mul_i32 s18, s28, 43
  s_lshr_b32 s18, s18, 7
  s_mul_i32 s19, s18, 3
  s_sub_u32 s19, s28, s19
""")
if IOD == 2:
    E(f"""  s_and_b32 s20, s28, 3
  s_lshr_b32 s21, s28, 3
  s_lshl_b32 s21, s21, 2
  s_add_u32 s20, s20, s21
  s_lshl_b32 s20, s20, 14
  s_add_u32 s21, s2, {4*FLIP}
  s_bfe_u32 s21, s21, 0x10002
  s_lshl_b32 s21, s21, 13
  s_add_u32 s20, s20, s21""")
else:
    E(f"""  s_lshl_b32 s20, s19, 15
  s_mul_i32 s21, s18, {32768//NG}
  s_add_u32 s20, s20, s21""")
E(f"""  s_mul_i32 s21, s14, {32768//NG//NW}
  s_add_u32 s20, s20, s21
  v_add_u32 v{VA}, s20, v3
  s_lshl_b32 s21, s14, 7
  v_add_u32 v{VB}, s21, v3
  s_lshl_b32 s29, s19, 7
  s_mul_i32 s18, s18, 384
  s_add_u32 s29, s29, s18
  s_add_u32 s29, s29, {FIN}
""")
if REP:
    E(f"""  s_mul_i32 s31, s62, {XS}
  s_add_u32 s29, s29, s31
  s_mul_i32 s18, s62, 98304
  v_add_u32 v{VA}, s18, v{VA}
  s_mov_b64 s[62:63], s[12:13]""")
else:
    if IOD:
        E(f"""  s_getreg_b32 s31, hwreg(HW_REG_XCC_ID, 0, 3)
  s_xor_b32 s31, s31, {4*FLIP}
  s_lshr_b32 s18, s31, 2
  s_lshl_b32 s18, s18, 13
  s_and_b32 s31, s31, 3
  s_mul_i32 s31, s31, {XS}
  s_add_u32 s31, s31, s18""")
    else:
        E(f"""  s_getreg_b32 s31, hwreg(HW_REG_XCC_ID, 0, 3)
  s_and_b32 s31, s31, {a.xc-1}
  s_mul_i32 s31, s31, {XS}""")
def unpack(i, dst):
    for d in range(3):
        E(f"  v_lshlrev_b32 v{dst+2*d}, 16, v{D+4*i+d}")
        E(f"  v_and_b32 v{dst+2*d+1}, s25, v{D+4*i+d}")
INL = (NL - 2) if a.inl else 0
for i in range(NL):
    E(f"  s_waitcnt vmcnt({NL-1-i})")
    c = "0" if i == 0 else f"v[{ACC}:{ACC+3}]"
    E(f"  v_mfma_f32_16x16x32_bf16 v[{ACC}:{ACC+3}], v[{SEL}:{SEL+3}], v[{D+4*i}:{D+4*i+3}], {c}")
    if i < PRE and i < INL: unpack(i, U + 6*i)
if not a.fine: stamp(2)
E(f"""  s_waitcnt lgkmcnt(0)
  s_add_u32 s15, s15, 1
  s_and_b32 s27, s15, 15
  s_nop 3
  s_mov_b32 exec_hi, 0
  ds_write_b128 v{T+1}, v[{ACC}:{ACC+3}] offset:{LA}
  s_mov_b32 exec_hi, -1""")
if a.tlb & 2:
    E(f"""  s_cmp_lg_u32 s14, {a.tlbw+1}
  s_cbranch_scc1 L_notlb2
  v_lshrrev_b32 v{VX}, 2, v3
  v_min_u32 v{VX}, 13, v{VX}
  v_lshlrev_b32 v{VX}, 21, v{VX}
  s_lshl_b32 s18, s2, 7
  v_add_u32 v{VX}, s18, v{VX}
  s_mov_b64 exec, 0x3fff
  global_load_dword v{VX}, v{VX}, s[8:9] nt
  s_mov_b64 exec, -1
L_notlb2:""")
if 0 <= a.cpf < 100:
    E(f"""  s_cmp_lg_u32 s14, {a.cpf}
  s_cbranch_scc1 L_nocpf
  s_getpc_b64 s[60:61]
L_pc:
  v_lshlrev_b32 v{VX}, 6, v3
  v_min_u32 v{VX}, L_end-L_pc, v{VX}
  global_load_dword v{VX}, v{VX}, s[60:61]
L_nocpf:""")
if a.warm & 1:
    E(f"  s_cmp_ge_u32 s28, {NO}\n  s_cbranch_scc1 L_nowarm")
    for k in range(NLD):
        E(f"  global_load_dword v{Q+k}, v{VA}, s[12:13] offset:{256*k} {a.pl}")
    E("L_nowarm:")
if a.warm & 2:
    E(f"""  s_cmp_ge_u32 s14, 2
  s_cbranch_scc1 L_nowarm2
  s_mul_i32 s22, s14, 192
  s_add_u32 s23, s22, {FIN}
  s_add_u32 s23, s23, s31
  v_add_u32 v{VX}, s23, v3""")
    for k in range(NG):
        E(f"  global_load_dword v{Q+4+k}, v{VX}, s[12:13] offset:{384*k} {a.pl}")
    E("L_nowarm2:")
E("""  s_waitcnt lgkmcnt(0)
  s_barrier""")
stamp(3)
E("  s_cmp_ge_u32 s14, 2\n  s_cbranch_scc1 L_nopub")
if a.prio: E(f"  s_setprio {a.prio}")
for k in range(NW // 2):
    E(f"  ds_read2st64_b32 v[{P+2*k}:{P+2*k+1}], v2 offset0:{4*k} offset1:{4*k+2}")
E("  s_cmp_eq_u32 s14, 0\n  s_cselect_b32 s18, -1, 0")
def tree(n):
    def pk(d, s): E(f"  v_pk_add_f32 v[{P+2*d}:{P+2*d+1}], v[{P+2*d}:{P+2*d+1}], v[{P+2*s}:{P+2*s+1}]")
    if n == 1: E("  s_waitcnt lgkmcnt(0)")
    for k in range(0, n - 1, 2):
        E(f"  s_waitcnt lgkmcnt({n-2-k})"); pk(k, k + 1)
        if k == 2: pk(0, 2)
        if k == 6: pk(4, 6); pk(0, 4)
    E(f"  v_add_f32 v{P}, v{P}, v{P+1}")
def gather4():
    E("  s_nop 1")
    for j in (1, 2, 3):
        E(f"  v_mov_b32_dpp v{P+j}, v{P} quad_perm:[{j},{j},{j},{j}] row_mask:0xf bank_mask:0xf")
tree(NW // 2)
if a.w4:
    E(f"  v_and_or_b32 v{P}, v{P}, -16, s27\n  s_and_b32 s18, s18, 0x11111111")
    gather4()
    E("  s_mov_b32 exec_lo, 0x11111111\n  s_mov_b32 exec_hi, s18")
else:
    E(f"""  s_mov_b32 exec_hi, s18
  v_and_or_b32 v{P}, v{P}, -16, s27""")
HS = f"global_store_dwordx4" if a.w4 else "global_store_dword"
HD = f"v[{P}:{P+3}]" if a.w4 else f"v{P}"
fine(1)
if REP:
    for c in range(REP):
        E(f"  {HS} v{VI}, {HD}, s[62:63] {a.sy}")
        if c < REP - 1: E("  s_add_u32 s62, s62, 98304\n  s_addc_u32 s63, s63, 0")
else:
    E(f"  {HS} v{VI}, {HD}, s[12:13] {a.sy}")
E(f"""  s_mov_b64 exec, -1
  s_nop 0
L_nopub:
  s_cmp_ge_u32 s28, {NO}
  s_cbranch_scc1 L_notown
L_own:""")
if a.one:
    assert a.xc == 8 and a.w4
    FADDR = f"""  v_lshrrev_b32 v{VB}, 7, v3
  v_mul_u32_u24 v{VB}, {4*XS-128}, v{VB}
  v_and_b32 v{VX}, 12, v3
  v_mul_u32_u24 v{VX}, {XS//4-1}, v{VX}
  v_add3_u32 v{VB}, v{VB}, v3, s29
  v_add_u32 v{VB}, v{VB}, v{VX}"""
else:
    FADDR = f"""  v_lshrrev_b32 v{VB}, 7, v3
  v_mul_u32_u24 v{VB}, {XS-128}, v{VB}
  v_add3_u32 v{VB}, v{VB}, v3, s29"""
def polln(n, areg, offs):
    for k in range(n):
        E(f"  global_load_dword v{Q+k}, v{areg}, s[12:13] offset:{offs(k)} {a.pl}")
    for k in range(n):
        E(f"  s_waitcnt vmcnt({n-1-k})")
        E(f"  v_xor_b32 v{Q+k}, s27, v{Q+k}")
        if k == 1:
            E(f"  v_or_b32 v{M}, v{Q}, v{Q+1}\n  v_add_f32 v{P}, v{Q}, v{Q+1}")
        elif k > 1:
            E(f"  v_or_b32 v{M}, v{M}, v{Q+k}\n  v_add_f32 v{P}, v{P}, v{Q+k}")
    if n == 1:
        E(f"  v_and_b32 v{M}, 15, v{Q}\n  v_mov_b32 v{P}, v{Q}")
    else:
        E(f"  v_and_b32 v{M}, 15, v{M}")
    E(f"  v_cmp_ne_u32 vcc, 0, v{M}")
def ppoll(label, n, areg, offs, cnt, dup, depth, sl):
    assert n * depth <= 8
    def issue(r):
        for k in range(n): E(f"  global_load_dword v{Q+n*r+k}, v{areg}, s[12:13] offset:{offs(k)} {a.pl}")
    def check(r):
        q = Q + n*r
        for k in range(n):
            E(f"  s_waitcnt vmcnt({n*(depth-1) + n-1-k})")
            E(f"  v_xor_b32 v{q+k}, s27, v{q+k}")
            if k == 1: E(f"  v_or_b32 v{M}, v{q}, v{q+1}\n  v_add_f32 v{P}, v{q}, v{q+1}")
            elif k > 1: E(f"  v_or_b32 v{M}, v{M}, v{q+k}\n  v_add_f32 v{P}, v{P}, v{q+k}")
        if n == 1: E(f"  v_and_b32 v{M}, 15, v{q}\n  v_mov_b32 v{P}, v{q}")
        else: E(f"  v_and_b32 v{M}, 15, v{M}")
        E(f"  v_cmp_ne_u32 vcc, 0, v{M}")
        if dup: E(f"  v_mov_b32 v{P+1}, v{P}")
        E(f"  s_sub_u32 {cnt}, {cnt}, 1\n  s_cbranch_scc1 {label}_ok\n  s_cbranch_vccz {label}_ok")
    for r in range(depth - 1):
        issue(r)
        if sl: E(f"  s_sleep {sl}")
    E(f"{label}_l:")
    for r in range(depth):
        issue((r + depth - 1) % depth); check(r)
        if sl: E(f"  s_sleep {sl}")
    E(f"  s_branch {label}_l\n{label}_ok:")
if a.d1 > 1:
    ppoll("L_own", NLD, VA, lambda k: 256*k, "s24", True, a.d1, a.ps)
else:
    polln(NLD, VA, lambda k: 256*k)
    E(f"""  v_mov_b32 v{P+1}, v{P}
  s_sub_u32 s24, s24, 1
  s_cbranch_scc1 L_own_ok
  s_cbranch_vccz L_own_ok
  s_branch L_own
L_own_ok:""")
if a.fine: E("  s_cmp_lt_u32 s14, 2\n  s_cbranch_scc1 L_f1"); stamp(1); E("L_f1:")
E(f"""  v_permlane32_swap_b32 v{P}, v{P+1}
  s_mov_b32 exec_hi, 0
  v_add_f32 v{P}, v{P}, v{P+1}
  ds_write_b32 v{VB}, v{P} offset:{LB}
  s_mov_b32 exec_hi, -1
  s_movk_i32 s18, {LB}
  v_and_b32 v{VA}, 0x80, v3
  v_mul_u32_u24 v{VA}, {NW//2-1}, v{VA}
  v_add3_u32 v{VA}, v{VA}, v3, s18
{FADDR}
  s_waitcnt lgkmcnt(0)
  s_barrier
  s_cmp_lg_u32 s14, 0
  s_cbranch_scc1 L_notown""")
for k in range(NW // 4):
    E(f"  ds_read2_b32 v[{P+2*k}:{P+2*k+1}], v{VA} offset0:{64*k} offset1:{64*k+32}")
tree(NW // 4)
E(f"""  v_mov_b32 v{P+1}, v{P}
  s_nop 1
  v_permlane32_swap_b32 v{P}, v{P+1}""")
if a.xc == 1: E("  s_mov_b32 exec_hi, 0")
E(f"""  v_add_f32 v{P}, v{P}, v{P+1}
  v_and_or_b32 v{P}, v{P}, -16, s27""")
if a.one:
    E("  s_nop 1")
    for j in range(4):
        E(f"  v_mov_b32_dpp v{P+4+j}, v{P} quad_perm:[{j},{j},{j},{j}] row_mask:0xf bank_mask:0xf")
    E(f"  global_store_dwordx4 v{VB}, v[{P+4}:{P+7}], s[12:13] {a.sy}")
elif a.w4:
    gather4()
    E("  s_mov_b32 exec_lo, 0x11111111")
    if a.xc > 1: E("  s_mov_b32 exec_hi, 0x11111111")
cur = 0
for k in range(0 if a.one else max(1, a.xc // 2)):
    off = (2*XS*k if not IOD else 2*XS*(k & 1) + 8192*(k >> 1)) - cur
    if off > 4095:
        E(f"  v_add_u32 v{VB}, {off}, v{VB}"); cur += off; off = 0
    E(f"  {HS} v{VB}, {HD}, s[12:13] offset:{off} {a.sy}")
E("  s_mov_b64 exec, -1")
fine(2)
E("L_notown:")
if a.pw:
    E("  s_cmp_lt_u32 s14, 2\n  s_cbranch_scc1 L_nopw\n  s_mov_b64 s[62:63], s[8:9]")
    for i in range(a.pw):
        E(f"  global_store_dwordx3 v1, v[{D+4*i}:{D+4*i+2}], s[62:63] {a.pwf}")
        if i < a.pw - 1: E(f"  s_add_u32 s62, s62, {STEP}\n  s_addc_u32 s63, s63, 0")
    E("L_nopw:")
for i in range(NL):
    if i < PRE and i >= INL: unpack(i, U + 6*i)
E(f"""  s_cmp_ge_u32 s14, 2
  s_cbranch_scc1 L_wait
  s_mul_i32 s22, s14, 192
  s_add_u32 s23, s22, {FIN-4}
  s_add_u32 s23, s23, s31
  v_add_u32 v{VA}, s23, v3
  s_add_u32 s23, s22, {LS-4}
  v_add_u32 v{VB}, s23, v3
  s_lshl_b32 s18, s16, 16
  s_and_b32 s19, s16, 0xffff0000
  s_lshl_b32 s20, s17, 16
  s_mov_b32 s21, {f2u(1.0/147456.0)}
  s_lshr_b32 s23, 0x3ffff, s14
  s_cmp_eq_u32 s14, 0
  s_cselect_b32 exec_lo, -2, -1
  s_mov_b32 exec_hi, s23
  s_mov_b32 s30, {a.maxpoll}
L_poll:""")
if a.d2 > 1:
    ppoll("L_poll", NG, VA, lambda k: 384*k, "s30", False, a.d2, a.ps2)
else:
    polln(NG, VA, lambda k: 384*k)
    E(f"""  s_sub_u32 s30, s30, 1
  s_cbranch_scc1 L_poll_ok
  s_cbranch_vccz L_poll_ok
  s_branch L_poll
L_poll_ok:""")
stamp(4)
emit_gate2(E, P, P+2) if a.g2 else emit_gate1(E, P, P+2)
E(f"""  s_mov_b32 exec_lo, -2
  s_mov_b32 exec_hi, 0x1ffff
  ds_write_b32 v{VB}, v{P}""")
if a.prio: E("  s_setprio 0")
E(f"""  s_or_b32 s18, s2, s14
  s_cmp_lg_u32 s18, 0
  s_cbranch_scc1 L_noepo
  s_mov_b64 exec, 1
  v_mov_b32 v{VA}, {EPO}
  v_mov_b32 v{VX}, s15
  global_store_dword v{VA}, v{VX}, s[12:13] {a.sy}
L_noepo:
  s_mov_b64 exec, -1
  s_waitcnt lgkmcnt(0)
L_wait:
  v_and_b32 v3, 60, v3
  v_mul_u32_u24 v3, 6, v3
  s_barrier""")
stamp(5)
for j in range(3):
    E(f"  ds_read_b64 v[{S+2*j}:{S+2*j+1}], v3 offset:{LS+8*j}")
if a.thr:
    if a.thp == 2: E("  s_mov_b64 vcc, 0")
    else: E(f"  s_getreg_b32 s18, hwreg(HW_REG_XCC_ID, 0, 1)\n  s_cmp_lg_u32 s18, {a.thp}\n  s_cselect_b64 vcc, -1, 0")
E("  s_waitcnt lgkmcnt(0)")
for i in range(NL):
    if i < PRE: src = U + 6*i
    else:
        src = TMP + 6*(i & 1); unpack(i, src)
    for d in range(3):
        E(f"  v_pk_mul_f32 v[{src+2*d}:{src+2*d+1}], v[{src+2*d}:{src+2*d+1}], v[{S+2*d}:{S+2*d+1}]")
    for d in range(3):
        E(f"  v_cvt_pk_bf16_f32 v{D+4*i+d}, v{src+2*d}, v{src+2*d+1}")
    if a.thr and i >= a.thr:
        E(f"  s_cbranch_vccnz L_thr{i}\n  s_waitcnt vmcnt({a.thr-1})\nL_thr{i}:")
    sf = a.stmix.split(",")[i % len(a.stmix.split(","))] if a.stmix else a.st
    E(f"  global_store_dwordx3 v1, v[{D+4*i}:{D+4*i+2}], s[8:9] {sf}")
    if i < NL - 1: E(f"  s_add_u32 s8, s8, {STEP}\n  s_addc_u32 s9, s9, 0")
if a.stamp:
    stamp(6)
    E("  s_waitcnt vmcnt(0)")
    E("  s_barrier")
    stamp(7)
    E("  s_mov_b32 s27, s30")
    emit_stamp_dump(E, a, cnt="s24")
if a.dbgx:
    E(f"""  s_cmp_ge_u32 s2, 16
  s_cbranch_scc1 L_end
  s_cmp_lg_u32 s14, 0
  s_cbranch_scc1 L_end
  s_getreg_b32 s18, hwreg(HW_REG_XCC_ID, 0, 4)
  s_lshl_b32 s19, s2, 2
  s_mov_b64 exec, 1
  v_mov_b32 v2, s19
  v_mov_b32 v3, s18
  global_store_dword v2, v3, s[10:11]""")
E("L_end:\n  s_endpgm")
nv = max(NV, a.vg)
if nv <= 256: E(kd(KN, nv, 72))
else: E(kd(KN, 256, 64).replace("next_free_vgpr 256", f"next_free_vgpr {nv}"))
open(a.o, "w").write("\n".join(o) + "\n")
print(build(a.o), "NV", NV, "PRE", PRE, "LDS", LDS)
```

```python
import sys, argparse
from asmlib import *
from common import *
ap = argparse.ArgumentParser()
ap.add_argument("-o", default="v12.s")
ap.add_argument("--ob", type=int, default=16)
ap.add_argument("--nv", type=int, default=32)
ap.add_argument("--vb", type=int, default=32)
ap.add_argument("--pw", type=int, default=12)
ap.add_argument("--fw", type=int, default=11)
ap.add_argument("--side", default="auto")
ap.add_argument("--stamp", action="store_true")
ap.add_argument("--allw", action="store_true")
ap.add_argument("--fine", action="store_true")
ap.add_argument("--exf", default="")
ap.add_argument("--xw", type=int, default=0)
ap.add_argument("--ld", default="nt")
ap.add_argument("--st", default="sc1")
ap.add_argument("--cpf", type=int, default=1)
ap.add_argument("--d1", type=int, default=2)
ap.add_argument("--vprio", type=int, default=3)
ap.add_argument("--maxpoll", type=int, default=1 << 20)
ap.add_argument("--skip", default="")
ap.add_argument("--x2", type=int, default=1)
ap.add_argument("--cm", type=int, default=1)
a = ap.parse_args()
if a.exf or a.allw: a.stamp = True
if a.stamp: a.maxpoll = 200000
o = []; E = o.append
def C(t):
    if a.cm:
        for l in t.strip("\n").split("\n"): E("  ; " + l.strip())
def stamp(k):
    if a.stamp: E(f"  s_memrealtime s[{32+2*k}:{33+2*k}]")
def fine(k):
    if a.fine: stamp(k)
NW = 16; NL = 9; NG = 4; NO = 12
LA = 0; LB = 8192; LS = 10240; LF = LS + 384; LDS = LS + 512
FIN = 0x30000; XS = 1536; EPO = 0x34000; VOT = 0x35000; PRB = 0x38000
STEP = 786432
D = 4; U = 40; P = 94
SEL = P; ACC = P + 4; T = P + 8; S = P + 8; Q = P + 16
VI, VA, VB, VX, VY = P + 24, P + 25, P + 26, P + 27, P + 28
M = D + 3
SY = PL = "sc1"
TOP = f"""{HEADER}; @launch grid=(256,1,1) block=(1024,1,1) lds={LDS}
;
;
"""
E(TOP + f""".amdgcn_target "amdgcn-amd-amdhsa--gfx950"
.text
.globl {KN}
.p2align 8
.type {KN},@function
{KN}:""")
stamp(0)
C("s2 = workgroup, s14 = wave, v3 = lane, v0 = 12*lane, v1 = byte offset of this lane's first row piece\n"
  "row r of wave w: offset (w/4)*9*STEP + r*STEP + ((id%8)*32 + id/8)*3072 + (w%4)*768 + 12*lane, STEP = 786432")
E(f"""  s_cmp_ge_u32 s2, 256
  s_cbranch_scc1 L_end
  s_load_dwordx4 s[4:7], s[0:1], 0
  s_load_dwordx4 s[8:11], s[0:1], 16
  s_load_dwordx2 s[12:13], s[0:1], 32
  v_lshrrev_b32 v2, 6, v0
  v_and_b32 v3, 63, v0
  v_readfirstlane_b32 s14, v2
  v_mul_u32_u24 v0, 12, v3
  s_and_b32 s3, s2, 7
  s_lshl_b32 s3, s3, 5
  s_lshr_b32 s15, s2, 3
  s_add_u32 s3, s3, s15
  s_lshl_b32 s3, s3, 2
  s_and_b32 s15, s14, 3
  s_add_u32 s3, s3, s15
  s_mul_i32 s3, s3, 768
  s_lshr_b32 s15, s14, 2
  s_mul_i32 s15, s15, {NL*STEP}
  s_add_u32 s3, s3, s15
  v_add_u32 v1, s3, v0
  s_getreg_b32 s31, hwreg(HW_REG_XCC_ID, 0, 3)
  s_sub_u32 s28, s2, {a.vb}
  s_sub_u32 s29, s14, {a.pw}
  s_lshr_b32 s18, s28, {a.nv.bit_length()-1}
  s_lshr_b32 s19, s29, 2
  s_or_b32 s18, s18, s19
  s_cmp_lg_u32 s18, 0
  s_waitcnt lgkmcnt(0)
  {'s_branch' if 'p' in a.skip else 's_cbranch_scc1'} L_noprobe""")
C(f"waves {a.pw}..{a.pw+3} of {a.nv} workgroups could not issue their rows yet anyway: each times one scalar load of an\n"
  "untouched line (address bit 13 = wave parity) and reports (cycles << 5 | XCC half << 4 | tag)")
E(f"""  s_load_dword s15, s[12:13], {EPO}
  s_lshl_b32 s28, s28, 2
  s_add_u32 s28, s28, s29
  s_lshr_b32 s18, s28, 3
  s_lshl_b32 s18, s18, 7
  s_and_b32 s19, s28, 1
  s_lshl_b32 s19, s19, 13
  s_add_u32 s18, s18, s19
  s_and_b32 s19, s28, 2
  s_lshl_b32 s19, s19, 11
  s_add_u32 s18, s18, s19
  s_and_b32 s19, s28, 4
  s_lshl_b32 s19, s19, 12
  s_add_u32 s18, s18, s19
  s_add_u32 s18, s18, {PRB}
  s_lshr_b32 s19, s28, 2
  s_lshl_b32 s19, s19, 7
  s_lshl_b32 s29, s29, 2
  s_add_u32 s29, s29, s19
  s_add_u32 s29, s29, {VOT}
  s_waitcnt lgkmcnt(0)
  s_memtime s[20:21]
  s_waitcnt lgkmcnt(0)
  s_load_dword s19, s[12:13], s18
  s_waitcnt lgkmcnt(0)
  s_memtime s[22:23]
  s_add_u32 s15, s15, 1
  s_and_b32 s15, s15, 15
  s_lshr_b32 s19, s31, 2
  s_lshl_b32 s19, s19, 4
  s_or_b32 s15, s15, s19
  v_mov_b32 v{T}, s29
  s_waitcnt lgkmcnt(0)
  s_sub_u32 s18, s22, s20
  s_min_u32 s18, s18, 0xfffff
  s_lshl_b32 s18, s18, 5
  s_or_b32 s18, s18, s15
  v_mov_b32 v{T+1}, s18
  s_mov_b64 exec, 1""")
if a.vprio: E(f"  s_setprio {a.vprio}")
E(f"  global_store_dword v{T}, v{T+1}, s[12:13] {SY}")
if a.vprio: E("  s_setprio 0")
E("  s_mov_b64 exec, -1")
if a.fine: stamp(6)
E("L_noprobe:")
for i in range(NL):
    E(f"  global_load_dwordx3 v[{D+4*i}:{D+4*i+2}], v1, s[4:5] {a.ld}")
    if i < NL - 1: E(f"  s_add_u32 s4, s4, {STEP}\n  s_addc_u32 s5, s5, 0")
    if i == 0:
        E(f"  s_load_dword s15, s[12:13], {EPO}")
        E("  s_load_dwordx2 s[16:17], s[6:7], 0")
if not a.fine: stamp(1)
C("a row is 3 registers + a zero register = the B operand (32 x 16) of one MFMA: column n = lane%16 holds channels 6n..6n+5")
for i in range(NL):
    E(f"  v_mov_b32 v{D+4*i+3}, 0")
C("selector (A operand): rows 0..2 pick elements 0..2, rows 4..6 pick elements 3..5, so lane 16G+n gets channels 6n+3G..+2")
E(f"""  v_and_b32 v{T}, 15, v3
  v_lshrrev_b32 v{T+1}, 2, v{T}
  v_sub_u32 v{T+1}, v{T}, v{T+1}
  v_and_b32 v{T+2}, 3, v{T}
  v_cmp_ne_u32 s[18:19], 3, v{T+2}
  v_cmp_gt_u32 s[20:21], 8, v{T}
  v_and_b32 v{T+2}, 1, v{T+1}
  v_lshlrev_b32 v{T+2}, 4, v{T+2}
  s_and_b64 s[18:19], s[18:19], s[20:21]
  v_mov_b32 v{T+3}, 0x3f80
  v_lshlrev_b32 v{T+2}, v{T+2}, v{T+3}
  v_lshrrev_b32 v{T+1}, 1, v{T+1}
  v_cndmask_b32 v{T+2}, 0, v{T+2}, s[18:19]
  v_cmp_eq_u32 s[18:19], 0, v{T+1}
  v_cmp_eq_u32 s[20:21], 1, v{T+1}
  v_cmp_eq_u32 s[22:23], 2, v{T+1}
  v_mov_b32 v{SEL+3}, 0
  v_cndmask_b32 v{SEL}, 0, v{T+2}, s[18:19]
  v_cndmask_b32 v{SEL+1}, 0, v{T+2}, s[20:21]
  v_cndmask_b32 v{SEL+2}, 0, v{T+2}, s[22:23]
  v_lshrrev_b32 v{T+1}, 4, v3
  v_lshlrev_b32 v{T+1}, 4, v{T+1}
  v_lshl_add_u32 v{T+1}, v{T}, 5, v{T+1}
  s_lshl_b32 s26, s14, 9
  v_add_u32 v{T+1}, s26, v{T+1}
  s_mov_b32 s25, 0xffff0000
  v_lshlrev_b32 v3, 2, v3
  s_mov_b32 s24, {a.maxpoll}""")
C(f"v3 = 4*lane. Waves 0,1 publish channel c = 64w + lane: v2 = its LDS address in a wave row (4c + 4(c/3)),\n"
  f"v{VI} = its inbox address (3*(id/64) + c/32)*16384 + (id%64)*128 + (c%32)*4")
E(f"""  s_lshl_b32 s18, s14, 8
  v_add_u32 v{VI}, s18, v3
  v_mul_u32_u24 v2, 171, v{VI}
  v_lshrrev_b32 v2, 11, v2
  v_lshl_add_u32 v2, v2, 2, v{VI}
  v_and_b32 v{VA}, 0x7c, v{VI}
  v_lshrrev_b32 v{VI}, 7, v{VI}
  v_lshlrev_b32 v{VI}, 14, v{VI}
  s_lshr_b32 s18, s2, 6
  s_mul_i32 s18, s18, 49152
  s_and_b32 s19, s2, 63
  s_lshl_b32 s19, s19, 7
  s_add_u32 s18, s18, s19
  v_add3_u32 v{VI}, v{VI}, v{VA}, s18""")
C(f"owner role s28 = id - {a.ob} (owner iff < 12): v{VA} = the four inbox lines of this wave, s29 = its final line")
E(f"""  s_sub_u32 s28, s2, {a.ob}
  s_lshl_b32 s20, s28, 14
  s_lshl_b32 s21, s14, 9
  s_add_u32 s20, s20, s21
  v_add_u32 v{VA}, s20, v3
  s_lshl_b32 s21, s14, 7
  v_add_u32 v{VB}, s21, v3
  s_lshl_b32 s29, s28, 7
  s_add_u32 s29, s29, {FIN}""")
for i in range(NL):
    E(f"  s_waitcnt vmcnt({NL-1-i})")
    c = "0" if i == 0 else f"v[{ACC}:{ACC+3}]"
    E(f"  v_mfma_f32_16x16x32_bf16 v[{ACC}:{ACC+3}], v[{SEL}:{SEL+3}], v[{D+4*i}:{D+4*i+3}], {c}")
if not a.fine: stamp(2)
E(f"""  s_waitcnt lgkmcnt(0)
  s_add_u32 s15, s15, 1
  s_and_b32 s27, s15, 15
  s_nop 3
  s_mov_b32 exec_hi, 0
  ds_write_b128 v{T+1}, v[{ACC}:{ACC+3}] offset:{LA}
  s_mov_b32 exec_hi, -1""")
C(f"wave {a.fw} counts the probe pairs: which address bit 13 is near for this XCC half -> LDS word (0 or 0x2000)")
E(f"""  s_cmp_lg_u32 s14, {a.fw}
  s_cbranch_scc1 L_nocount
  v_and_b32 v{T+2}, 4, v3
  v_sub_u32 v{VY}, v3, v{T+2}
  v_lshlrev_b32 v{VY}, 4, v{VY}
  v_lshl_add_u32 v{VY}, v{T+2}, 1, v{VY}
  v_add_u32 v{VY}, {VOT}, v{VY}""")
if a.nv < 32: E(f"  s_mov_b64 exec, {hex((1 << (2*a.nv)) - 1)}" if a.nv < 16 else "  s_mov_b32 exec_hi, 0")
E(f"""  {'v_mov_b64 v[%d:%d], 0' % (T+4, T+5) if 'l' in a.skip else 'global_load_dwordx2 v[%d:%d], v%d, s[12:13] %s' % (T+4, T+5, VY, PL)}
  s_lshr_b32 s19, s31, 2
  v_mov_b32 v{T+3}, {LF}
  s_waitcnt vmcnt(0)
  v_xor_b32 v{VX}, s27, v{T+4}
  v_xor_b32 v{VY}, s27, v{T+5}
  v_or_b32 v{T+2}, v{VX}, v{VY}
  v_and_b32 v{T+2}, 15, v{T+2}
  v_cmp_eq_u32 s[20:21], 0, v{T+2}
  v_cmp_lt_u32 vcc, v{VY}, v{VX}
  v_and_b32 v{T+2}, 16, v{VX}
  v_cmp_ne_u32 s[22:23], 0, v{T+2}
  s_xor_b64 vcc, vcc, s[22:23]
  s_and_b64 vcc, vcc, s[20:21]
  s_bcnt1_i32_b64 s18, vcc
  s_bcnt1_i32_b64 s20, s[20:21]""")
if a.stamp: E("  s_lshl_b32 s24, s20, 8\n  s_or_b32 s24, s24, s18")
E("""  s_lshl_b32 s18, s18, 1
  s_cmp_gt_u32 s18, s20
  s_cselect_b32 s18, 1, 0""")
if a.side != "auto": E(f"  s_mov_b32 s18, {a.side}")
E(f"""  s_xor_b32 s18, s18, s19
  s_lshl_b32 s18, s18, 13
  v_mov_b32 v{T+2}, s18
  s_mov_b64 exec, -1
  ds_write_b32 v{T+3}, v{T+2}
L_nocount:""")
if a.cpf >= 0:
    C(f"wave {a.cpf} is done early and pulls the rest of the code into the L2")
    E(f"""  s_cmp_lg_u32 s14, {a.cpf}
  s_cbranch_scc1 L_nocpf
  s_getpc_b64 s[60:61]
L_pc:
  v_lshlrev_b32 v126, 6, v3
  v_min_u32 v126, L_end-L_pc, v126
  global_load_dword v126, v126, s[60:61]
L_nocpf:""")
E(f"""  v_mov_b32 v{VX}, {LF}
  s_waitcnt lgkmcnt(0)
  s_barrier""")
stamp(3)
C("hop 1: waves 0,1 add the 16 wave rows and send them to both inbox copies, 16 bytes per lane")
E("  s_cmp_ge_u32 s14, 2\n  s_cbranch_scc1 L_nopub\n  s_setprio 3")
for k in range(8):
    E(f"  ds_read2st64_b32 v[{P+2*k}:{P+2*k+1}], v2 offset0:{4*k} offset1:{4*k+2}")
E(f"  s_cmp_eq_u32 s14, 0\n  s_cselect_b32 s18, 0x11111111, 0\n  v_xor_b32 v{VY}, 0x2000, v{VI}")
def tree(n):
    def pk(d, s): E(f"  v_pk_add_f32 v[{P+2*d}:{P+2*d+1}], v[{P+2*d}:{P+2*d+1}], v[{P+2*s}:{P+2*s+1}]")
    for k in range(0, n - 1, 2):
        E(f"  s_waitcnt lgkmcnt({n-2-k})"); pk(k, k + 1)
        if k == 2: pk(0, 2)
        if k == 6: pk(4, 6); pk(0, 4)
    E(f"  v_add_f32 v{P}, v{P}, v{P+1}")
def gather4():
    E(f"  v_and_or_b32 v{P}, v{P}, -16, s27\n  s_nop 1")
    for j in (1, 2, 3):
        E(f"  v_mov_b32_dpp v{P+j}, v{P} quad_perm:[{j},{j},{j},{j}] row_mask:0xf bank_mask:0xf")
tree(8)
gather4()
E("  s_mov_b32 exec_lo, 0x11111111\n  s_mov_b32 exec_hi, s18")
fine(1)
E(f"""  global_store_dwordx4 v{VI}, v[{P}:{P+3}], s[12:13] {SY}
  global_store_dwordx4 v{VY}, v[{P}:{P+3}], s[12:13] {SY}
  s_mov_b64 exec, -1
L_nopub:
  ds_read_b32 v{VX}, v{VX} offset:0
  s_cmp_ge_u32 s28, {NO}
  s_cbranch_scc1 L_notown
  s_waitcnt lgkmcnt(0)
  v_add_u32 v{VA}, v{VA}, v{VX}""")
def check(q, n, younger):
    for k in range(n):
        E(f"  s_waitcnt vmcnt({younger + n-1-k})")
        E(f"  v_xor_b32 v{q+k}, s27, v{q+k}")
        if k == 1: E(f"  v_or_b32 v{M}, v{q}, v{q+1}\n  v_add_f32 v{P}, v{q}, v{q+1}")
        elif k > 1: E(f"  v_or_b32 v{M}, v{M}, v{q+k}\n  v_add_f32 v{P}, v{P}, v{q+k}")
    E(f"  v_and_b32 v{M}, 15, v{M}\n  v_cmp_ne_u32 vcc, 0, v{M}")
C("owners: every wave polls four lines (two per load), two rounds in flight; the trip count is bounded")
def issue1(r):
    for k in range(2): E(f"  global_load_dword v{Q+2*r+k}, v{VA}, s[12:13] offset:{256*k} {PL}")
if a.d1 == 2:
    issue1(0)
    E("L_own:")
    for r in range(2):
        issue1(1 - r); check(Q + 2*r, 2, 2)
        E(f"  v_mov_b32 v{P+1}, v{P}\n  s_sub_u32 s24, s24, 1\n  s_cbranch_scc1 L_own_ok\n  s_cbranch_vccz L_own_ok")
else:
    E("L_own:")
    issue1(0); check(Q, 2, 0)
    E(f"  v_mov_b32 v{P+1}, v{P}\n  s_sub_u32 s24, s24, 1\n  s_cbranch_scc1 L_own_ok\n  s_cbranch_vccz L_own_ok")
E("  s_branch L_own\nL_own_ok:")
if a.fine: E("  s_cmp_lt_u32 s14, 2\n  s_cbranch_scc1 L_f1"); stamp(1); E("L_f1:")
E(f"""  v_permlane32_swap_b32 v{P}, v{P+1}
  s_mov_b32 exec_hi, 0
  v_add_f32 v{P}, v{P}, v{P+1}
  ds_write_b32 v{VB}, v{P} offset:{LB}
  s_mov_b32 exec_hi, -1
  s_movk_i32 s18, {LB}
  v_and_b32 v{VA}, 0x80, v3
  v_mul_u32_u24 v{VA}, 7, v{VA}
  v_add3_u32 v{VA}, v{VA}, v3, s18
  v_lshrrev_b32 v{VB}, 7, v3
  v_mul_u32_u24 v{VB}, {XS-128}, v{VB}
  v_add3_u32 v{VB}, v{VB}, v3, s29
  s_waitcnt lgkmcnt(0)
  s_barrier
  s_cmp_lg_u32 s14, 0
  s_cbranch_scc1 L_notown""")
C("hop 2: wave 0 adds the 16 wave rows and writes the line to eight copies (one per XCC, four on either side)")
for k in range(4):
    E(f"  ds_read2_b32 v[{P+2*k}:{P+2*k+1}], v{VA} offset0:{64*k} offset1:{64*k+32}")
E(f"  v_add_u32 v{VY}, 0x2000, v{VB}")
tree(4)
E(f"""  v_mov_b32 v{P+1}, v{P}
  s_nop 1
  v_permlane32_swap_b32 v{P}, v{P+1}
  v_add_f32 v{P}, v{P}, v{P+1}""")
gather4()
E(f"""  s_mov_b32 exec_lo, 0x11111111
  s_mov_b32 exec_hi, 0x11111111
  global_store_dwordx4 v{VB}, v[{P}:{P+3}], s[12:13] {SY}
  global_store_dwordx4 v{VY}, v[{P}:{P+3}], s[12:13] {SY}
  global_store_dwordx4 v{VB}, v[{P}:{P+3}], s[12:13] offset:{2*XS} {SY}
  global_store_dwordx4 v{VY}, v[{P}:{P+3}], s[12:13] offset:{2*XS} {SY}
  s_mov_b64 exec, -1""")
fine(2)
E("L_notown:")
C("bf16 -> f32 while the sums travel")
for i in range(NL):
    for d in range(3):
        E(f"  v_lshlrev_b32 v{U+6*i+2*d}, 16, v{D+4*i+d}")
        E(f"  v_and_b32 v{U+6*i+2*d+1}, s25, v{D+4*i+d}")
C("gate: wave 0 lanes 1..49 hold channels 0..48, wave 1 lanes 0..48 channels 47..95; lanes 1..48 write their scale")
E(f"""  s_cmp_ge_u32 s14, 2
  s_cbranch_scc1 L_wait
  s_and_b32 s31, s31, 3
  s_mul_i32 s31, s31, {XS}
  s_mul_i32 s22, s14, 192
  s_add_u32 s23, s22, {FIN-4}
  s_add_u32 s23, s23, s31
  s_waitcnt lgkmcnt(0)
  v_add3_u32 v{VA}, v{VX}, v3, s23
  s_add_u32 s23, s22, {LS-4}
  v_add_u32 v{VB}, s23, v3
  s_lshl_b32 s18, s16, 16
  s_and_b32 s19, s16, 0xffff0000
  s_lshl_b32 s20, s17, 16
  s_mov_b32 s21, {f2u(1.0/147456.0)}
  s_lshr_b32 s23, 0x3ffff, s14
  s_cmp_eq_u32 s14, 0
  s_cselect_b32 exec_lo, -2, -1
  s_mov_b32 exec_hi, s23
  s_mov_b32 s30, {a.maxpoll}
L_poll:""")
for k in range(NG):
    E(f"  global_load_dword v{Q+4+k}, v{VA}, s[12:13] offset:{384*k} {PL}")
check(Q + 4, NG, 0)
E(f"""  s_sub_u32 s30, s30, 1
  s_cbranch_scc1 L_poll_ok
  s_cbranch_vccz L_poll_ok
  s_branch L_poll
L_poll_ok:""")
stamp(4)
C("v_cvt_pk_bf16_f32 d, 0, x  =  x rounded to bf16, kept as an f32")
emit_gate2(E, P, P+2)
E(f"""  s_mov_b32 exec_lo, -2
  s_mov_b32 exec_hi, 0x1ffff
  ds_write_b32 v{VB}, v{P}
  s_setprio 0""")
C("every workgroup has published, so every wave has read the epoch: workgroup 0 advances it")
E(f"""  s_or_b32 s18, s2, s14
  s_cmp_lg_u32 s18, 0
  s_cbranch_scc1 L_noepo
  s_mov_b64 exec, 1
  v_mov_b32 v{VA}, {EPO}
  v_mov_b32 v{VY}, s15
  global_store_dword v{VA}, v{VY}, s[12:13] {SY}
L_noepo:
  s_mov_b64 exec, -1
L_wait:
  v_and_b32 v3, 60, v3
  v_mul_u32_u24 v3, 6, v3
  s_waitcnt lgkmcnt(0)
  s_barrier""")
stamp(5)
for j in range(3):
    E(f"  ds_read_b64 v[{S+2*j}:{S+2*j+1}], v3 offset:{LS+8*j}")
E("  s_waitcnt lgkmcnt(0)")
for i in range(NL):
    src = U + 6*i
    for d in range(3):
        E(f"  v_pk_mul_f32 v[{src+2*d}:{src+2*d+1}], v[{src+2*d}:{src+2*d+1}], v[{S+2*d}:{S+2*d+1}]")
    for d in range(3):
        E(f"  v_cvt_pk_bf16_f32 v{D+4*i+d}, v{src+2*d}, v{src+2*d+1}")
    E(f"  global_store_dwordx3 v1, v[{D+4*i}:{D+4*i+2}], s[8:9] {a.st}")
    if i < NL - 1: E(f"  s_add_u32 s8, s8, {STEP}\n  s_addc_u32 s9, s9, 0")
if a.stamp:
    if not a.fine: stamp(6)
    E("  s_waitcnt vmcnt(0)")
    E("  s_barrier")
    stamp(7)
    E(f"  v_readfirstlane_b32 s27, v{VX}")
    emit_stamp_dump(E, a, cnt="s24")
E("L_end:\n  s_endpgm")
E(kd(KN, 128, 64))
open(a.o, "w").write("\n".join(o) + "\n")
print(build(a.o))
```

```python
import sys, argparse
from asmlib import *
from common import *
ap = argparse.ArgumentParser()
ap.add_argument("-o", default="v10.s")
ap.add_argument("--nw", type=int, default=16)
ap.add_argument("--pre", type=int, default=99)
ap.add_argument("--inl", type=int, default=1)
ap.add_argument("--ob", type=int, default=16)
ap.add_argument("--ng", type=int, default=4)
ap.add_argument("--xc", type=int, default=8)
ap.add_argument("--gs", type=int, default=4)
ap.add_argument("--stamp", action="store_true")
ap.add_argument("--allw", action="store_true")
ap.add_argument("--fine", action="store_true")
ap.add_argument("--exf", default="")
ap.add_argument("--xw", type=int, default=0)
ap.add_argument("--ld", default="nt")
ap.add_argument("--st", default="sc1")
ap.add_argument("--sy", default="sc1")
ap.add_argument("--pl", default="sc1")
ap.add_argument("--prio", type=int, default=3)
ap.add_argument("--cpf", type=int, default=1)
ap.add_argument("--lds", type=int, default=0)
ap.add_argument("--vg", type=int, default=0)
ap.add_argument("--warm", type=int, default=0)
ap.add_argument("--pat", default="seqx")
ap.add_argument("--stmix", default="")
ap.add_argument("--ldmix", default="")
ap.add_argument("--stg", default="")
ap.add_argument("--rep", type=int, default=0)
ap.add_argument("--obk", type=int, default=2)
ap.add_argument("--w4", type=int, default=1)
ap.add_argument("--fp", type=int, default=0)
ap.add_argument("--d1", type=int, default=1)
ap.add_argument("--d2", type=int, default=1)
ap.add_argument("--ps", type=int, default=0)
ap.add_argument("--ps2", type=int, default=0)
ap.add_argument("--tlb", type=int, default=0)
ap.add_argument("--tlbw", type=int, default=2)
ap.add_argument("--one", type=int, default=0)
ap.add_argument("--dbgx", type=int, default=0)
ap.add_argument("--thr", type=int, default=0)
ap.add_argument("--thp", type=int, default=0)
ap.add_argument("--pw", type=int, default=0)
ap.add_argument("--pwf", default="sc1")
ap.add_argument("--g2", type=int, default=1)
ap.add_argument("--iod", type=int, default=0)
ap.add_argument("--pr2", type=int, default=0)
ap.add_argument("--dup", type=int, default=0)
ap.add_argument("--maxpoll", type=int, default=200000)
a = ap.parse_args()
if a.exf or a.allw: a.stamp = True
o = []; E = o.append
def stamp(k):
    if a.stamp: E(f"  s_memrealtime s[{32+2*k}:{33+2*k}]")
def fine(k):
    if a.fine: stamp(k)
NW = a.nw; NL = 144 // NW; GS = a.gs
NG = a.ng; NO = 3 * NG; NLD = 128 // (NG * NW)
assert 1 <= NLD <= 8
LA = 0; LB = 512 * NW; LS = LB + 128 * NW; LDS = a.lds or (LS + 512)
REP = a.rep
FIN = 98304 * max(1, REP)
XS = 384 * NG
EPO = 131072 if not REP else 1048512
if REP: a.xc = 1
IOD = a.iod & 3; FLIP = (a.iod >> 2) & 1
if IOD:
    assert NG == 4 and a.xc == 8 and not REP and not a.one
    FIN = 131072; EPO = 163840
STEP = 256 * GS * 768
VMAX = 128 if NW == 16 else 256
D = 4; U = D + 4 * NL
PRE = min(a.pre, NL, (VMAX - U - 30) // 6)
P = U + 6 * PRE; P += P & 1
SEL = P; ACC = P + 4; T = P + 8; S = P + 16; Q = P + 16
if a.d2 > 1 or a.d1 > 1: S = P + 8
VI, VA, VB, VX = P + 24, P + 25, P + 26, P + 27
TMP = P
NV = P + 28
assert NV <= VMAX
M = D + 3
E(HEADER + f"; @launch grid=(256,1,1) block=({64*NW},1,1) lds={LDS}")
E(f""".amdgcn_target "amdgcn-amd-amdhsa--gfx950"
.text
.globl {KN}
.p2align 8
.type {KN},@function
{KN}:""")
stamp(0)
if a.fp:
    assert GS == 4 and not a.cpf >= 100
    E(f"""  s_load_dwordx2 s[4:5], s[0:1], 0
  s_cmp_ge_u32 s2, 256
  s_cbranch_scc1 L_end
  v_and_b32 v1, 0xff, v0
  v_mul_u32_u24 v1, 12, v1
  s_mul_i32 s3, s2, 3072""")
    if NW > 4:
        E(f"""  v_lshrrev_b32 v2, 8, v0
  v_mul_u32_u24 v2, {NL*STEP}, v2
  v_add3_u32 v1, v1, v2, s3""")
    else:
        E("  v_add_u32 v1, s3, v1")
    E("  s_waitcnt lgkmcnt(0)")
    for i in range(NL):
        lf = a.ldmix.split(",")[i % len(a.ldmix.split(","))] if a.ldmix else a.ld
        E(f"  global_load_dwordx3 v[{D+4*i}:{D+4*i+2}], v1, s[4:5] {lf}")
        if i < NL - 1: E(f"  s_add_u32 s4, s4, {STEP}\n  s_addc_u32 s5, s5, 0")
        if i == a.fp - 1:
            E("  s_load_dwordx2 s[6:7], s[0:1], 8\n  s_load_dwordx2 s[12:13], s[0:1], 32\n  s_load_dwordx4 s[8:11], s[0:1], 16")
    E(f"""  v_lshrrev_b32 v2, 6, v0
  v_and_b32 v3, 63, v0
  v_readfirstlane_b32 s14, v2
  v_mul_u32_u24 v0, 12, v3
  s_waitcnt lgkmcnt(0)
  s_load_dword s15, s[12:13], {EPO}
  s_load_dwordx2 s[16:17], s[6:7], 0""")
else:
    E(f"""  s_cmp_ge_u32 s2, 256
      s_cbranch_scc1 L_end
      s_load_dwordx4 s[4:7], s[0:1], 0
      s_load_dwordx4 s[8:11], s[0:1], 16
      s_load_dwordx2 s[12:13], s[0:1], 32
      v_lshrrev_b32 v2, 6, v0
      v_and_b32 v3, 63, v0
      v_readfirstlane_b32 s14, v2
      v_mul_u32_u24 v0, 12, v3
    """)
    sh = GS.bit_length() - 1
    if a.pat == "seqx":
        E(f"  s_and_b32 s3, s2, 7\n  s_lshl_b32 s3, s3, 5\n  s_lshr_b32 s15, s2, 3\n  s_add_u32 s3, s3, s15\n  s_mul_i32 s3, s3, {GS}\n  s_and_b32 s15, s14, {GS-1}\n  s_add_u32 s3, s3, s15\n  s_mul_i32 s3, s3, 768")
        GST = NL * STEP
    elif a.pat == "seq":
        E(f"  s_mul_i32 s3, s2, {GS}\n  s_and_b32 s15, s14, {GS-1}\n  s_add_u32 s3, s3, s15\n  s_mul_i32 s3, s3, 768")
        GST = NL * STEP
    elif a.pat == "xmaj":
        STEP = 32 * GS * 768
        E(f"  s_and_b32 s3, s2, 7\n  s_mul_i32 s3, s3, 3538944\n  s_lshr_b32 s15, s2, 3\n  s_mul_i32 s15, s15, {GS}\n  s_and_b32 s18, s14, {GS-1}\n  s_add_u32 s15, s15, s18\n  s_mul_i32 s15, s15, 768\n  s_add_u32 s3, s3, s15")
        GST = NL * STEP
    elif a.pat == "xpair":
        E(f"  s_and_b32 s3, s2, 6\n  s_lshl_b32 s3, s3, 5\n  s_lshr_b32 s15, s2, 3\n  s_lshl_b32 s15, s15, 1\n  s_add_u32 s3, s3, s15\n  s_and_b32 s15, s2, 1\n  s_add_u32 s3, s3, s15\n  s_mul_i32 s3, s3, {GS}\n  s_and_b32 s15, s14, {GS-1}\n  s_add_u32 s3, s3, s15\n  s_mul_i32 s3, s3, 768")
        GST = NL * STEP
    elif a.pat == "half":
        STEP = 128 * GS * 768
        E(f"  s_lshr_b32 s3, s2, 2\n  s_and_b32 s3, s3, 1\n  s_mul_i32 s3, s3, 14155776\n  s_and_b32 s15, s2, 3\n  s_lshl_b32 s15, s15, 5\n  s_lshr_b32 s18, s2, 3\n  s_add_u32 s15, s15, s18\n  s_mul_i32 s15, s15, {GS}\n  s_and_b32 s18, s14, {GS-1}\n  s_add_u32 s15, s15, s18\n  s_mul_i32 s15, s15, 768\n  s_add_u32 s3, s3, s15")
        GST = NL * STEP
    if NW > GS:
        E(f"  s_lshr_b32 s15, s14, {sh}\n  s_mul_i32 s15, s15, {GST}\n  s_add_u32 s3, s3, s15")
    E(f"""  v_add_u32 v1, s3, v0
      s_waitcnt lgkmcnt(0)""")
    if a.pr2:
        E(f"""  s_cmp_ge_u32 s14, 4
  s_cbranch_scc1 L_nopr
  s_lshr_b32 s18, s14, 1
  s_lshl_b32 s19, s2, 1
  s_add_u32 s18, s18, s19
  s_lshr_b32 s19, s18, 6
  s_lshl_b32 s19, s19, 14
  s_and_b32 s18, s18, 63
  s_lshl_b32 s18, s18, 7
  s_add_u32 s18, s18, s19
  s_and_b32 s19, s14, 1
  s_lshl_b32 s19, s19, 13
  s_add_u32 s18, s18, s19
  s_add_u32 s18, s18, 0x40000
  v_mov_b32 v{VX}, s18
  s_mov_b64 exec, 1
  s_memtime s[64:65]
  global_load_dword v{VX}, v{VX}, s[12:13] sc1
  s_mov_b64 exec, -1
L_nopr:""")
    if a.tlb & 1:
        E(f"""  s_cmp_lg_u32 s14, {a.tlbw}
  s_cbranch_scc1 L_notlb
  v_min_u32 v{VX}, 13, v3
  v_lshlrev_b32 v{VX}, 21, v{VX}
  s_lshl_b32 s18, s2, 7
  v_add_u32 v{VX}, s18, v{VX}
  s_mov_b64 exec, 0x3fff
  global_load_dword v{VX}, v{VX}, s[4:5] nt
  s_mov_b64 exec, -1
L_notlb:""")
    if a.cpf >= 100:
        E(f"""  s_cmp_lg_u32 s14, {a.cpf-100}
      s_cbranch_scc1 L_nocpf
      s_getpc_b64 s[60:61]
    L_pc:
      v_lshlrev_b32 v{VX}, 7, v3
      v_min_u32 v{VX}, L_end-L_pc, v{VX}
      global_load_dword v{VX}, v{VX}, s[60:61]
    L_nocpf:""")
    for i in range(NL):
        lf = a.ldmix.split(",")[i % len(a.ldmix.split(","))] if a.ldmix else a.ld
        E(f"  global_load_dwordx3 v[{D+4*i}:{D+4*i+2}], v1, s[4:5] {lf}")
        if i < NL - 1: E(f"  s_add_u32 s4, s4, {STEP}\n  s_addc_u32 s5, s5, 0")
        if i == 0:
            E(f"  s_load_dword s15, s[12:13], {EPO}")
            E("  s_load_dwordx2 s[16:17], s[6:7], 0")
if a.pr2:
    E(f"""  s_cmp_ge_u32 s14, 4
  s_cbranch_scc1 L_nopr2
  s_waitcnt vmcnt({NL})
  s_memtime s[66:67]
  s_waitcnt lgkmcnt(0)
  s_sub_u32 s34, s66, s64
L_nopr2:""")
elif not a.fine: stamp(1)
for i in range(NL):
    E(f"  v_mov_b32 v{D+4*i+3}, 0")
E(f"""  v_and_b32 v{T}, 15, v3
  v_lshrrev_b32 v{T+1}, 2, v{T}
  v_sub_u32 v{T+1}, v{T}, v{T+1}
  v_and_b32 v{T+2}, 3, v{T}
  v_cmp_ne_u32 s[18:19], 3, v{T+2}
  v_cmp_gt_u32 s[20:21], 8, v{T}
  v_and_b32 v{T+2}, 1, v{T+1}
  v_lshlrev_b32 v{T+2}, 4, v{T+2}
  s_and_b64 s[18:19], s[18:19], s[20:21]
  v_mov_b32 v{T+3}, 0x3f80
  v_lshlrev_b32 v{T+2}, v{T+2}, v{T+3}
  v_lshrrev_b32 v{T+1}, 1, v{T+1}
  v_cndmask_b32 v{T+2}, 0, v{T+2}, s[18:19]
  v_cmp_eq_u32 s[18:19], 0, v{T+1}
  v_cmp_eq_u32 s[20:21], 1, v{T+1}
  v_cmp_eq_u32 s[22:23], 2, v{T+1}
  v_mov_b32 v{SEL+3}, 0
  v_cndmask_b32 v{SEL}, 0, v{T+2}, s[18:19]
  v_cndmask_b32 v{SEL+1}, 0, v{T+2}, s[20:21]
  v_cndmask_b32 v{SEL+2}, 0, v{T+2}, s[22:23]
  v_lshrrev_b32 v{T+1}, 4, v3
  v_lshlrev_b32 v{T+1}, 4, v{T+1}
  v_lshl_add_u32 v{T+1}, v{T}, 5, v{T+1}
  s_lshl_b32 s26, s14, 9
  v_add_u32 v{T+1}, s26, v{T+1}
  s_mov_b32 s25, 0xffff0000
  v_lshlrev_b32 v3, 2, v3
  s_mov_b32 s24, {a.maxpoll}""")
E(f"""  s_lshl_b32 s18, s14, 8
  v_add_u32 v{VI}, s18, v3
  v_mul_u32_u24 v2, 171, v{VI}
  v_lshrrev_b32 v2, 11, v2
  v_lshl_add_u32 v2, v2, 2, v{VI}
  v_and_b32 v{VA}, 0x7c, v{VI}
  v_lshrrev_b32 v{VI}, 7, v{VI}""")
if IOD == 2:
    E(f"""  s_lshr_b32 s18, s2, 6
  s_mul_i32 s18, s18, 3
  v_add_u32 v{VI}, s18, v{VI}
  v_and_b32 v{VB}, 3, v{VI}
  v_lshrrev_b32 v{VX}, 3, v{VI}
  v_lshl_add_u32 v{VB}, v{VX}, 2, v{VB}
  v_add_u32 v{VI}, {a.ob + 4*FLIP}, v{VI}
  v_bfe_u32 v{VI}, v{VI}, 2, 1
  v_lshlrev_b32 v{VI}, 13, v{VI}
  v_lshl_add_u32 v{VI}, v{VB}, 14, v{VI}
  s_and_b32 s18, s2, 63
  s_lshl_b32 s18, s18, 7
  v_add3_u32 v{VI}, v{VI}, v{VA}, s18""")
else:
    E(f"""  v_lshlrev_b32 v{VI}, 15, v{VI}
  s_lshl_b32 s18, s2, 7
  v_add3_u32 v{VI}, v{VI}, v{VA}, s18""")
if REP:
    E(f"  s_lshr_b32 s28, s2, {REP.bit_length()-1}\n  s_sub_u32 s28, s28, {a.obk}\n  s_and_b32 s62, s2, {REP-1}")
elif a.dup:
    assert a.ob % 8 == 0 and NO % 4 == 0
    E(f"""  s_sub_u32 s28, s2, {a.ob}
  s_lshr_b32 s18, s28, 3
  s_lshl_b32 s18, s18, 2
  s_and_b32 s28, s28, 3
  s_add_u32 s28, s28, s18""")
else:
    E(f"  s_sub_u32 s28, s2, {a.ob}")
E(f"""  s_mul_i32 s18, s28, 43
  s_lshr_b32 s18, s18, 7
  s_mul_i32 s19, s18, 3
  s_sub_u32 s19, s28, s19
""")
if IOD == 2:
    E(f"""  s_and_b32 s20, s28, 3
  s_lshr_b32 s21, s28, 3
  s_lshl_b32 s21, s21, 2
  s_add_u32 s20, s20, s21
  s_lshl_b32 s20, s20, 14
  s_add_u32 s21, s2, {4*FLIP}
  s_bfe_u32 s21, s21, 0x10002
  s_lshl_b32 s21, s21, 13
  s_add_u32 s20, s20, s21""")
else:
    E(f"""  s_lshl_b32 s20, s19, 15
  s_mul_i32 s21, s18, {32768//NG}
  s_add_u32 s20, s20, s21""")
E(f"""  s_mul_i32 s21, s14, {32768//NG//NW}
  s_add_u32 s20, s20, s21
  v_add_u32 v{VA}, s20, v3
  s_lshl_b32 s21, s14, 7
  v_add_u32 v{VB}, s21, v3
  s_lshl_b32 s29, s19, 7
  s_mul_i32 s18, s18, 384
  s_add_u32 s29, s29, s18
  s_add_u32 s29, s29, {FIN}
""")
if REP:
    E(f"""  s_mul_i32 s31, s62, {XS}
  s_add_u32 s29, s29, s31
  s_mul_i32 s18, s62, 98304
  v_add_u32 v{VA}, s18, v{VA}
  s_mov_b64 s[62:63], s[12:13]""")
else:
    if IOD:
        E(f"""  s_getreg_b32 s31, hwreg(HW_REG_XCC_ID, 0, 3)
  s_xor_b32 s31, s31, {4*FLIP}
  s_lshr_b32 s18, s31, 2
  s_lshl_b32 s18, s18, 13
  s_and_b32 s31, s31, 3
  s_mul_i32 s31, s31, {XS}
  s_add_u32 s31, s31, s18""")
    else:
        E(f"""  s_getreg_b32 s31, hwreg(HW_REG_XCC_ID, 0, 3)
  s_and_b32 s31, s31, {a.xc-1}
  s_mul_i32 s31, s31, {XS}""")
def unpack(i, dst):
    for d in range(3):
        E(f"  v_lshlrev_b32 v{dst+2*d}, 16, v{D+4*i+d}")
        E(f"  v_and_b32 v{dst+2*d+1}, s25, v{D+4*i+d}")
INL = (NL - 2) if a.inl else 0
for i in range(NL):
    E(f"  s_waitcnt vmcnt({NL-1-i})")
    c = "0" if i == 0 else f"v[{ACC}:{ACC+3}]"
    E(f"  v_mfma_f32_16x16x32_bf16 v[{ACC}:{ACC+3}], v[{SEL}:{SEL+3}], v[{D+4*i}:{D+4*i+3}], {c}")
    if i < PRE and i < INL: unpack(i, U + 6*i)
if not a.fine: stamp(2)
E(f"""  s_waitcnt lgkmcnt(0)
  s_add_u32 s15, s15, 1
  s_and_b32 s27, s15, 15
  s_nop 3
  s_mov_b32 exec_hi, 0
  ds_write_b128 v{T+1}, v[{ACC}:{ACC+3}] offset:{LA}
  s_mov_b32 exec_hi, -1""")
if a.tlb & 2:
    E(f"""  s_cmp_lg_u32 s14, {a.tlbw+1}
  s_cbranch_scc1 L_notlb2
  v_lshrrev_b32 v{VX}, 2, v3
  v_min_u32 v{VX}, 13, v{VX}
  v_lshlrev_b32 v{VX}, 21, v{VX}
  s_lshl_b32 s18, s2, 7
  v_add_u32 v{VX}, s18, v{VX}
  s_mov_b64 exec, 0x3fff
  global_load_dword v{VX}, v{VX}, s[8:9] nt
  s_mov_b64 exec, -1
L_notlb2:""")
if 0 <= a.cpf < 100:
    E(f"""  s_cmp_lg_u32 s14, {a.cpf}
  s_cbranch_scc1 L_nocpf
  s_getpc_b64 s[60:61]
L_pc:
  v_lshlrev_b32 v{VX}, 6, v3
  v_min_u32 v{VX}, L_end-L_pc, v{VX}
  global_load_dword v{VX}, v{VX}, s[60:61]
L_nocpf:""")
if a.warm & 1:
    E(f"  s_cmp_ge_u32 s28, {NO}\n  s_cbranch_scc1 L_nowarm")
    for k in range(NLD):
        E(f"  global_load_dword v{Q+k}, v{VA}, s[12:13] offset:{256*k} {a.pl}")
    E("L_nowarm:")
if a.warm & 2:
    E(f"""  s_cmp_ge_u32 s14, 2
  s_cbranch_scc1 L_nowarm2
  s_mul_i32 s22, s14, 192
  s_add_u32 s23, s22, {FIN}
  s_add_u32 s23, s23, s31
  v_add_u32 v{VX}, s23, v3""")
    for k in range(NG):
        E(f"  global_load_dword v{Q+4+k}, v{VX}, s[12:13] offset:{384*k} {a.pl}")
    E("L_nowarm2:")
E("""  s_waitcnt lgkmcnt(0)
  s_barrier""")
stamp(3)
E("  s_cmp_ge_u32 s14, 2\n  s_cbranch_scc1 L_nopub")
if a.prio: E(f"  s_setprio {a.prio}")
for k in range(NW // 2):
    E(f"  ds_read2st64_b32 v[{P+2*k}:{P+2*k+1}], v2 offset0:{4*k} offset1:{4*k+2}")
E("  s_cmp_eq_u32 s14, 0\n  s_cselect_b32 s18, -1, 0")
def tree(n):
    def pk(d, s): E(f"  v_pk_add_f32 v[{P+2*d}:{P+2*d+1}], v[{P+2*d}:{P+2*d+1}], v[{P+2*s}:{P+2*s+1}]")
    if n == 1: E("  s_waitcnt lgkmcnt(0)")
    for k in range(0, n - 1, 2):
        E(f"  s_waitcnt lgkmcnt({n-2-k})"); pk(k, k + 1)
        if k == 2: pk(0, 2)
        if k == 6: pk(4, 6); pk(0, 4)
    E(f"  v_add_f32 v{P}, v{P}, v{P+1}")
def gather4():
    E("  s_nop 1")
    for j in (1, 2, 3):
        E(f"  v_mov_b32_dpp v{P+j}, v{P} quad_perm:[{j},{j},{j},{j}] row_mask:0xf bank_mask:0xf")
tree(NW // 2)
if a.w4:
    E(f"  v_and_or_b32 v{P}, v{P}, -16, s27\n  s_and_b32 s18, s18, 0x11111111")
    gather4()
    E("  s_mov_b32 exec_lo, 0x11111111\n  s_mov_b32 exec_hi, s18")
else:
    E(f"""  s_mov_b32 exec_hi, s18
  v_and_or_b32 v{P}, v{P}, -16, s27""")
HS = f"global_store_dwordx4" if a.w4 else "global_store_dword"
HD = f"v[{P}:{P+3}]" if a.w4 else f"v{P}"
fine(1)
if REP:
    for c in range(REP):
        E(f"  {HS} v{VI}, {HD}, s[62:63] {a.sy}")
        if c < REP - 1: E("  s_add_u32 s62, s62, 98304\n  s_addc_u32 s63, s63, 0")
else:
    E(f"  {HS} v{VI}, {HD}, s[12:13] {a.sy}")
E(f"""  s_mov_b64 exec, -1
  s_nop 0
L_nopub:
  s_cmp_ge_u32 s28, {NO}
  s_cbranch_scc1 L_notown
L_own:""")
if a.one:
    assert a.xc == 8 and a.w4
    FADDR = f"""  v_lshrrev_b32 v{VB}, 7, v3
  v_mul_u32_u24 v{VB}, {4*XS-128}, v{VB}
  v_and_b32 v{VX}, 12, v3
  v_mul_u32_u24 v{VX}, {XS//4-1}, v{VX}
  v_add3_u32 v{VB}, v{VB}, v3, s29
  v_add_u32 v{VB}, v{VB}, v{VX}"""
else:
    FADDR = f"""  v_lshrrev_b32 v{VB}, 7, v3
  v_mul_u32_u24 v{VB}, {XS-128}, v{VB}
  v_add3_u32 v{VB}, v{VB}, v3, s29"""
def polln(n, areg, offs):
    for k in range(n):
        E(f"  global_load_dword v{Q+k}, v{areg}, s[12:13] offset:{offs(k)} {a.pl}")
    for k in range(n):
        E(f"  s_waitcnt vmcnt({n-1-k})")
        E(f"  v_xor_b32 v{Q+k}, s27, v{Q+k}")
        if k == 1:
            E(f"  v_or_b32 v{M}, v{Q}, v{Q+1}\n  v_add_f32 v{P}, v{Q}, v{Q+1}")
        elif k > 1:
            E(f"  v_or_b32 v{M}, v{M}, v{Q+k}\n  v_add_f32 v{P}, v{P}, v{Q+k}")
    if n == 1:
        E(f"  v_and_b32 v{M}, 15, v{Q}\n  v_mov_b32 v{P}, v{Q}")
    else:
        E(f"  v_and_b32 v{M}, 15, v{M}")
    E(f"  v_cmp_ne_u32 vcc, 0, v{M}")
def ppoll(label, n, areg, offs, cnt, dup, depth, sl):
    assert n * depth <= 8
    def issue(r):
        for k in range(n): E(f"  global_load_dword v{Q+n*r+k}, v{areg}, s[12:13] offset:{offs(k)} {a.pl}")
    def check(r):
        q = Q + n*r
        for k in range(n):
            E(f"  s_waitcnt vmcnt({n*(depth-1) + n-1-k})")
            E(f"  v_xor_b32 v{q+k}, s27, v{q+k}")
            if k == 1: E(f"  v_or_b32 v{M}, v{q}, v{q+1}\n  v_add_f32 v{P}, v{q}, v{q+1}")
            elif k > 1: E(f"  v_or_b32 v{M}, v{M}, v{q+k}\n  v_add_f32 v{P}, v{P}, v{q+k}")
        if n == 1: E(f"  v_and_b32 v{M}, 15, v{q}\n  v_mov_b32 v{P}, v{q}")
        else: E(f"  v_and_b32 v{M}, 15, v{M}")
        E(f"  v_cmp_ne_u32 vcc, 0, v{M}")
        if dup: E(f"  v_mov_b32 v{P+1}, v{P}")
        E(f"  s_sub_u32 {cnt}, {cnt}, 1\n  s_cbranch_scc1 {label}_ok\n  s_cbranch_vccz {label}_ok")
    for r in range(depth - 1):
        issue(r)
        if sl: E(f"  s_sleep {sl}")
    E(f"{label}_l:")
    for r in range(depth):
        issue((r + depth - 1) % depth); check(r)
        if sl: E(f"  s_sleep {sl}")
    E(f"  s_branch {label}_l\n{label}_ok:")
if a.d1 > 1:
    ppoll("L_own", NLD, VA, lambda k: 256*k, "s24", True, a.d1, a.ps)
else:
    polln(NLD, VA, lambda k: 256*k)
    E(f"""  v_mov_b32 v{P+1}, v{P}
  s_sub_u32 s24, s24, 1
  s_cbranch_scc1 L_own_ok
  s_cbranch_vccz L_own_ok
  s_branch L_own
L_own_ok:""")
if a.fine: E("  s_cmp_lt_u32 s14, 2\n  s_cbranch_scc1 L_f1"); stamp(1); E("L_f1:")
E(f"""  v_permlane32_swap_b32 v{P}, v{P+1}
  s_mov_b32 exec_hi, 0
  v_add_f32 v{P}, v{P}, v{P+1}
  ds_write_b32 v{VB}, v{P} offset:{LB}
  s_mov_b32 exec_hi, -1
  s_movk_i32 s18, {LB}
  v_and_b32 v{VA}, 0x80, v3
  v_mul_u32_u24 v{VA}, {NW//2-1}, v{VA}
  v_add3_u32 v{VA}, v{VA}, v3, s18
{FADDR}
  s_waitcnt lgkmcnt(0)
  s_barrier
  s_cmp_lg_u32 s14, 0
  s_cbranch_scc1 L_notown""")
for k in range(NW // 4):
    E(f"  ds_read2_b32 v[{P+2*k}:{P+2*k+1}], v{VA} offset0:{64*k} offset1:{64*k+32}")
tree(NW // 4)
E(f"""  v_mov_b32 v{P+1}, v{P}
  s_nop 1
  v_permlane32_swap_b32 v{P}, v{P+1}""")
if a.xc == 1: E("  s_mov_b32 exec_hi, 0")
E(f"""  v_add_f32 v{P}, v{P}, v{P+1}
  v_and_or_b32 v{P}, v{P}, -16, s27""")
if a.one:
    E("  s_nop 1")
    for j in range(4):
        E(f"  v_mov_b32_dpp v{P+4+j}, v{P} quad_perm:[{j},{j},{j},{j}] row_mask:0xf bank_mask:0xf")
    E(f"  global_store_dwordx4 v{VB}, v[{P+4}:{P+7}], s[12:13] {a.sy}")
elif a.w4:
    gather4()
    E("  s_mov_b32 exec_lo, 0x11111111")
    if a.xc > 1: E("  s_mov_b32 exec_hi, 0x11111111")
cur = 0
for k in range(0 if a.one else max(1, a.xc // 2)):
    off = (2*XS*k if not IOD else 2*XS*(k & 1) + 8192*(k >> 1)) - cur
    if off > 4095:
        E(f"  v_add_u32 v{VB}, {off}, v{VB}"); cur += off; off = 0
    E(f"  {HS} v{VB}, {HD}, s[12:13] offset:{off} {a.sy}")
E("  s_mov_b64 exec, -1")
fine(2)
E("L_notown:")
if a.pw:
    E("  s_cmp_lt_u32 s14, 2\n  s_cbranch_scc1 L_nopw\n  s_mov_b64 s[62:63], s[8:9]")
    for i in range(a.pw):
        E(f"  global_store_dwordx3 v1, v[{D+4*i}:{D+4*i+2}], s[62:63] {a.pwf}")
        if i < a.pw - 1: E(f"  s_add_u32 s62, s62, {STEP}\n  s_addc_u32 s63, s63, 0")
    E("L_nopw:")
for i in range(NL):
    if i < PRE and i >= INL: unpack(i, U + 6*i)
E(f"""  s_cmp_ge_u32 s14, 2
  s_cbranch_scc1 L_wait
  s_mul_i32 s22, s14, 192
  s_add_u32 s23, s22, {FIN-4}
  s_add_u32 s23, s23, s31
  v_add_u32 v{VA}, s23, v3
  s_add_u32 s23, s22, {LS-4}
  v_add_u32 v{VB}, s23, v3
  s_lshl_b32 s18, s16, 16
  s_and_b32 s19, s16, 0xffff0000
  s_lshl_b32 s20, s17, 16
  s_mov_b32 s21, {f2u(1.0/147456.0)}
  s_lshr_b32 s23, 0x3ffff, s14
  s_cmp_eq_u32 s14, 0
  s_cselect_b32 exec_lo, -2, -1
  s_mov_b32 exec_hi, s23
  s_mov_b32 s30, {a.maxpoll}
L_poll:""")
if a.d2 > 1:
    ppoll("L_poll", NG, VA, lambda k: 384*k, "s30", False, a.d2, a.ps2)
else:
    polln(NG, VA, lambda k: 384*k)
    E(f"""  s_sub_u32 s30, s30, 1
  s_cbranch_scc1 L_poll_ok
  s_cbranch_vccz L_poll_ok
  s_branch L_poll
L_poll_ok:""")
stamp(4)
emit_gate2(E, P, P+2) if a.g2 else emit_gate1(E, P, P+2)
E(f"""  s_mov_b32 exec_lo, -2
  s_mov_b32 exec_hi, 0x1ffff
  ds_write_b32 v{VB}, v{P}""")
if a.prio: E("  s_setprio 0")
E(f"""  s_or_b32 s18, s2, s14
  s_cmp_lg_u32 s18, 0
  s_cbranch_scc1 L_noepo
  s_mov_b64 exec, 1
  v_mov_b32 v{VA}, {EPO}
  v_mov_b32 v{VX}, s15
  global_store_dword v{VA}, v{VX}, s[12:13] {a.sy}
L_noepo:
  s_mov_b64 exec, -1
  s_waitcnt lgkmcnt(0)
L_wait:
  v_and_b32 v3, 60, v3
  v_mul_u32_u24 v3, 6, v3
  s_barrier""")
stamp(5)
for j in range(3):
    E(f"  ds_read_b64 v[{S+2*j}:{S+2*j+1}], v3 offset:{LS+8*j}")
if a.thr:
    if a.thp == 2: E("  s_mov_b64 vcc, 0")
    else: E(f"  s_getreg_b32 s18, hwreg(HW_REG_XCC_ID, 0, 1)\n  s_cmp_lg_u32 s18, {a.thp}\n  s_cselect_b64 vcc, -1, 0")
E("  s_waitcnt lgkmcnt(0)")
for i in range(NL):
    if i < PRE: src = U + 6*i
    else:
        src = TMP + 6*(i & 1); unpack(i, src)
    for d in range(3):
        E(f"  v_pk_mul_f32 v[{src+2*d}:{src+2*d+1}], v[{src+2*d}:{src+2*d+1}], v[{S+2*d}:{S+2*d+1}]")
    for d in range(3):
        E(f"  v_cvt_pk_bf16_f32 v{D+4*i+d}, v{src+2*d}, v{src+2*d+1}")
    if a.thr and i >= a.thr:
        E(f"  s_cbranch_vccnz L_thr{i}\n  s_waitcnt vmcnt({a.thr-1})\nL_thr{i}:")
    sf = a.stmix.split(",")[i % len(a.stmix.split(","))] if a.stmix else a.st
    E(f"  global_store_dwordx3 v1, v[{D+4*i}:{D+4*i+2}], s[8:9] {sf}")
    if i < NL - 1: E(f"  s_add_u32 s8, s8, {STEP}\n  s_addc_u32 s9, s9, 0")
if a.stamp:
    stamp(6)
    E("  s_waitcnt vmcnt(0)")
    E("  s_barrier")
    stamp(7)
    E("  s_mov_b32 s27, s30")
    emit_stamp_dump(E, a, cnt="s24")
if a.dbgx:
    E(f"""  s_cmp_ge_u32 s2, 16
  s_cbranch_scc1 L_end
  s_cmp_lg_u32 s14, 0
  s_cbranch_scc1 L_end
  s_getreg_b32 s18, hwreg(HW_REG_XCC_ID, 0, 4)
  s_lshl_b32 s19, s2, 2
  s_mov_b64 exec, 1
  v_mov_b32 v2, s19
  v_mov_b32 v3, s18
  global_store_dword v2, v3, s[10:11]""")
E("L_end:\n  s_endpgm")
nv = max(NV, a.vg)
if nv <= 256: E(kd(KN, nv, 72))
else: E(kd(KN, 256, 64).replace("next_free_vgpr 256", f"next_free_vgpr {nv}"))
open(a.o, "w").write("\n".join(o) + "\n")
print(build(a.o), "NV", NV, "PRE", PRE, "LDS", LDS)
```

```python
import sys, argparse
from asmlib import *
from common import *
ap = argparse.ArgumentParser()
ap.add_argument("-o", default="v12.s")
ap.add_argument("--ob", type=int, default=16)
ap.add_argument("--nv", type=int, default=32)
ap.add_argument("--vb", type=int, default=32)
ap.add_argument("--pw", type=int, default=12)
ap.add_argument("--fw", type=int, default=11)
ap.add_argument("--side", default="auto")
ap.add_argument("--stamp", action="store_true")
ap.add_argument("--allw", action="store_true")
ap.add_argument("--fine", action="store_true")
ap.add_argument("--exf", default="")
ap.add_argument("--xw", type=int, default=0)
ap.add_argument("--ld", default="nt")
ap.add_argument("--st", default="sc1")
ap.add_argument("--cpf", type=int, default=1)
ap.add_argument("--d1", type=int, default=2)
ap.add_argument("--vprio", type=int, default=3)
ap.add_argument("--maxpoll", type=int, default=1 << 20)
ap.add_argument("--skip", default="")
ap.add_argument("--x2", type=int, default=1)
ap.add_argument("--hg", type=int, default=0)
ap.add_argument("--d2", type=int, default=1)
ap.add_argument("--sig", type=int, default=0)
ap.add_argument("--cm", type=int, default=1)
a = ap.parse_args()
if a.exf or a.allw: a.stamp = True
if a.stamp: a.maxpoll = 200000
o = []; E = o.append
def C(t):
    if a.cm:
        for l in t.strip("\n").split("\n"): E("  ; " + l.strip())
def stamp(k):
    if a.stamp: E(f"  s_memrealtime s[{32+2*k}:{33+2*k}]")
def fine(k):
    if a.fine: stamp(k)
NW = 16; NL = 9; NG = 4; NO = 12
LA = 0; LB = 8192; LS = 10240; LF = LS + 384; LDS = LS + 512
FIN = 0x30000; XS = 1536; EPO = 0x34000; VOT = 0x35000; PRB = 0x38000
STEP = 786432
D = 4; U = 40; P = 94
SEL = P; ACC = P + 4; T = P + 8; S = P + 8; Q = P + 16
VI, VA, VB, VX, VY = P + 24, P + 25, P + 26, P + 27, P + 28
M = D + 3
SY = PL = "sc1"
TOP = f"""{HEADER}; @launch grid=(256,1,1) block=(1024,1,1) lds={LDS}
;
;
"""
E(TOP + f""".amdgcn_target "amdgcn-amd-amdhsa--gfx950"
.text
.globl {KN}
.p2align 8
.type {KN},@function
{KN}:""")
stamp(0)
C("s2 = workgroup, s14 = wave, v3 = lane, v0 = 12*lane, v1 = byte offset of this lane's first row piece\n"
  "row r of wave w: offset (w/4)*9*STEP + r*STEP + ((id%8)*32 + id/8)*3072 + (w%4)*768 + 12*lane, STEP = 786432")
E(f"""  s_cmp_ge_u32 s2, 256
  s_cbranch_scc1 L_end
  s_load_dwordx4 s[4:7], s[0:1], 0
  s_load_dwordx4 s[8:11], s[0:1], 16
  s_load_dwordx2 s[12:13], s[0:1], 32
  v_lshrrev_b32 v2, 6, v0
  v_and_b32 v3, 63, v0
  v_readfirstlane_b32 s14, v2
  v_mul_u32_u24 v0, 12, v3
  s_and_b32 s3, s2, 7
  s_lshl_b32 s3, s3, 5
  s_lshr_b32 s15, s2, 3
  s_add_u32 s3, s3, s15
  s_lshl_b32 s3, s3, 2
  s_and_b32 s15, s14, 3
  s_add_u32 s3, s3, s15
  s_mul_i32 s3, s3, 768
  s_lshr_b32 s15, s14, 2
  s_mul_i32 s15, s15, {NL*STEP}
  s_add_u32 s3, s3, s15
  v_add_u32 v1, s3, v0
  s_getreg_b32 s31, hwreg(HW_REG_XCC_ID, 0, 3)
  s_sub_u32 s28, s2, {a.vb}
  s_sub_u32 s29, s14, {a.pw}
  s_lshr_b32 s18, s28, {a.nv.bit_length()-1}
  s_lshr_b32 s19, s29, 2
  s_or_b32 s18, s18, s19
  s_cmp_lg_u32 s18, 0
  s_waitcnt lgkmcnt(0)
  {'s_branch' if 'p' in a.skip else 's_cbranch_scc1'} L_noprobe""")
C(f"waves {a.pw}..{a.pw+3} of {a.nv} workgroups could not issue their rows yet anyway: each times one scalar load of an\n"
  "untouched line (address bit 13 = wave parity) and reports (cycles << 5 | XCC half << 4 | tag)")
E(f"""  s_load_dword s15, s[12:13], {EPO}
  s_lshl_b32 s28, s28, 2
  s_add_u32 s28, s28, s29
  s_lshr_b32 s18, s28, 3
  s_lshl_b32 s18, s18, 7
  s_and_b32 s19, s28, 1
  s_lshl_b32 s19, s19, 13
  s_add_u32 s18, s18, s19
  s_and_b32 s19, s28, 2
  s_lshl_b32 s19, s19, 11
  s_add_u32 s18, s18, s19
  s_and_b32 s19, s28, 4
  s_lshl_b32 s19, s19, 12
  s_add_u32 s18, s18, s19
  s_add_u32 s18, s18, {PRB}
  s_lshr_b32 s19, s28, 2
  s_lshl_b32 s19, s19, 7
  s_lshl_b32 s29, s29, 2
  s_add_u32 s29, s29, s19
  s_add_u32 s29, s29, {VOT}
  s_waitcnt lgkmcnt(0)
  s_memtime s[20:21]
  s_waitcnt lgkmcnt(0)
  s_load_dword s19, s[12:13], s18
  s_waitcnt lgkmcnt(0)
  s_memtime s[22:23]
  s_add_u32 s15, s15, 1
  s_and_b32 s15, s15, 15
  s_lshr_b32 s19, s31, 2
  s_lshl_b32 s19, s19, 4
  s_or_b32 s15, s15, s19
  v_mov_b32 v{T}, s29
  s_waitcnt lgkmcnt(0)
  s_sub_u32 s18, s22, s20
  s_min_u32 s18, s18, 0xfffff
  s_lshl_b32 s18, s18, 5
  s_or_b32 s18, s18, s15
  v_mov_b32 v{T+1}, s18
  s_mov_b64 exec, 1""")
if a.vprio: E(f"  s_setprio {a.vprio}")
E(f"  global_store_dword v{T}, v{T+1}, s[12:13] {SY}")
if a.vprio: E("  s_setprio 0")
E("  s_mov_b64 exec, -1")
if a.fine: stamp(6)
E("L_noprobe:")
for i in range(NL):
    E(f"  global_load_dwordx3 v[{D+4*i}:{D+4*i+2}], v1, s[4:5] {a.ld}")
    if i < NL - 1: E(f"  s_add_u32 s4, s4, {STEP}\n  s_addc_u32 s5, s5, 0")
    if i == 0:
        E(f"  s_load_dword s15, s[12:13], {EPO}")
        E("  s_load_dwordx2 s[16:17], s[6:7], 0")
if not a.fine: stamp(1)
C("a row is 3 registers + a zero register = the B operand (32 x 16) of one MFMA: column n = lane%16 holds channels 6n..6n+5")
for i in range(NL):
    E(f"  v_mov_b32 v{D+4*i+3}, 0")
C("selector (A operand): rows 0..2 pick elements 0..2, rows 4..6 pick elements 3..5, so lane 16G+n gets channels 6n+3G..+2")
E(f"""  v_and_b32 v{T}, 15, v3
  v_lshrrev_b32 v{T+1}, 2, v{T}
  v_sub_u32 v{T+1}, v{T}, v{T+1}
  v_and_b32 v{T+2}, 3, v{T}
  v_cmp_ne_u32 s[18:19], 3, v{T+2}
  v_cmp_gt_u32 s[20:21], 8, v{T}
  v_and_b32 v{T+2}, 1, v{T+1}
  v_lshlrev_b32 v{T+2}, 4, v{T+2}
  s_and_b64 s[18:19], s[18:19], s[20:21]
  v_mov_b32 v{T+3}, 0x3f80
  v_lshlrev_b32 v{T+2}, v{T+2}, v{T+3}
  v_lshrrev_b32 v{T+1}, 1, v{T+1}
  v_cndmask_b32 v{T+2}, 0, v{T+2}, s[18:19]
  v_cmp_eq_u32 s[18:19], 0, v{T+1}
  v_cmp_eq_u32 s[20:21], 1, v{T+1}
  v_cmp_eq_u32 s[22:23], 2, v{T+1}
  v_mov_b32 v{SEL+3}, 0
  v_cndmask_b32 v{SEL}, 0, v{T+2}, s[18:19]
  v_cndmask_b32 v{SEL+1}, 0, v{T+2}, s[20:21]
  v_cndmask_b32 v{SEL+2}, 0, v{T+2}, s[22:23]
  v_lshrrev_b32 v{T+1}, 4, v3
  v_lshlrev_b32 v{T+1}, 4, v{T+1}
  v_lshl_add_u32 v{T+1}, v{T}, 5, v{T+1}
  s_lshl_b32 s26, s14, 9
  v_add_u32 v{T+1}, s26, v{T+1}
  s_mov_b32 s25, 0xffff0000
  v_lshlrev_b32 v3, 2, v3
  s_mov_b32 s24, {a.maxpoll}""")
C(f"v3 = 4*lane. Waves 0,1 publish channel c = 64w + lane: v2 = its LDS address in a wave row (4c + 4(c/3)),\n"
  f"v{VI} = its inbox address (3*(id/64) + c/32)*16384 + (id%64)*128 + (c%32)*4")
E(f"""  s_lshl_b32 s18, s14, 8
  v_add_u32 v{VI}, s18, v3
  v_mul_u32_u24 v2, 171, v{VI}
  v_lshrrev_b32 v2, 11, v2
  v_lshl_add_u32 v2, v2, 2, v{VI}
  v_and_b32 v{VA}, 0x7c, v{VI}
  v_lshrrev_b32 v{VI}, 7, v{VI}
  v_lshlrev_b32 v{VI}, 14, v{VI}
""".rstrip())
if a.hg:
    E(f"""  s_bfe_u32 s18, s2, 0x10002
  s_lshl_b32 s18, s18, 1
  s_lshr_b32 s19, s2, 7
  s_add_u32 s18, s18, s19
  s_mul_i32 s18, s18, 49152
  s_bfe_u32 s19, s2, 0x40003
  s_lshl_b32 s19, s19, 9
  s_add_u32 s18, s18, s19
  s_and_b32 s19, s2, 3
  s_lshl_b32 s19, s19, 7
  s_add_u32 s18, s18, s19""")
else:
    E(f"""  s_lshr_b32 s18, s2, 6
  s_mul_i32 s18, s18, 49152
  s_and_b32 s19, s2, 63
  s_lshl_b32 s19, s19, 7
  s_add_u32 s18, s18, s19""")
E(f"  v_add3_u32 v{VI}, v{VI}, v{VA}, s18")
C(f"owner role s28 = id - {a.ob} (owner iff < 12): v{VA} = the four inbox lines of this wave, s29 = its final line")
E(f"  s_sub_u32 s28, s2, {a.ob}")
if a.hg:
    assert a.ob % 8 == 0
    E(f"""  s_bfe_u32 s18, s28, 0x10002
  s_mul_i32 s18, s18, 6
  s_and_b32 s19, s28, 3
  s_lshr_b32 s20, s28, 3
  s_lshl_b32 s20, s20, 2
  s_add_u32 s19, s19, s20
  s_add_u32 s28, s18, s19
  s_cmp_lt_u32 s19, 6
  s_cselect_b32 s28, s28, {NO}""")
E(f"""  s_lshl_b32 s20, s28, 14
  s_lshl_b32 s21, s14, 9
  s_add_u32 s20, s20, s21
  v_add_u32 v{VA}, s20, v3
  s_lshl_b32 s21, s14, 7
  v_add_u32 v{VB}, s21, v3
  s_lshl_b32 s29, s28, 7
  s_add_u32 s29, s29, {FIN}""")
for i in range(NL):
    E(f"  s_waitcnt vmcnt({NL-1-i})")
    c = "0" if i == 0 else f"v[{ACC}:{ACC+3}]"
    E(f"  v_mfma_f32_16x16x32_bf16 v[{ACC}:{ACC+3}], v[{SEL}:{SEL+3}], v[{D+4*i}:{D+4*i+3}], {c}")
if not a.fine: stamp(2)
E(f"""  s_waitcnt lgkmcnt(0)
  s_add_u32 s15, s15, 1
  s_and_b32 s27, s15, 15
  s_nop 3
  s_mov_b32 exec_hi, 0
  ds_write_b128 v{T+1}, v[{ACC}:{ACC+3}] offset:{LA}
  s_mov_b32 exec_hi, -1""")
C(f"wave {a.fw} counts the probe pairs: which address bit 13 is near for this XCC half -> LDS word (0 or 0x2000)")
E(f"""  s_cmp_lg_u32 s14, {a.fw}
  s_cbranch_scc1 L_nocount
  v_and_b32 v{T+2}, 4, v3
  v_sub_u32 v{VY}, v3, v{T+2}
  v_lshlrev_b32 v{VY}, 4, v{VY}
  v_lshl_add_u32 v{VY}, v{T+2}, 1, v{VY}
  v_add_u32 v{VY}, {VOT}, v{VY}""")
if a.nv < 32: E(f"  s_mov_b64 exec, {hex((1 << (2*a.nv)) - 1)}" if a.nv < 16 else "  s_mov_b32 exec_hi, 0")
E(f"""  {'v_mov_b64 v[%d:%d], 0' % (T+4, T+5) if 'l' in a.skip else 'global_load_dwordx2 v[%d:%d], v%d, s[12:13] %s' % (T+4, T+5, VY, PL)}
  s_lshr_b32 s19, s31, 2
  v_mov_b32 v{T+3}, {LF}
  s_waitcnt vmcnt(0)
  v_xor_b32 v{VX}, s27, v{T+4}
  v_xor_b32 v{VY}, s27, v{T+5}
  v_or_b32 v{T+2}, v{VX}, v{VY}
  v_and_b32 v{T+2}, 15, v{T+2}
  v_cmp_eq_u32 s[20:21], 0, v{T+2}
  v_cmp_lt_u32 vcc, v{VY}, v{VX}
  v_and_b32 v{T+2}, 16, v{VX}
  v_cmp_ne_u32 s[22:23], 0, v{T+2}
  s_xor_b64 vcc, vcc, s[22:23]
  s_and_b64 vcc, vcc, s[20:21]
  s_bcnt1_i32_b64 s18, vcc
  s_bcnt1_i32_b64 s20, s[20:21]""")
if a.stamp: E("  s_lshl_b32 s24, s20, 8\n  s_or_b32 s24, s24, s18")
E("""  s_lshl_b32 s18, s18, 1
  s_cmp_gt_u32 s18, s20
  s_cselect_b32 s18, 1, 0""")
if a.side != "auto": E(f"  s_mov_b32 s18, {a.side}")
E(f"""  s_xor_b32 s18, s18, s19
  s_lshl_b32 s18, s18, 13
  v_mov_b32 v{T+2}, s18
  s_mov_b64 exec, -1
  ds_write_b32 v{T+3}, v{T+2}
L_nocount:""")
if a.cpf >= 0:
    C(f"wave {a.cpf} is done early and pulls the rest of the code into the L2")
    E(f"""  s_cmp_lg_u32 s14, {a.cpf}
  s_cbranch_scc1 L_nocpf
  s_getpc_b64 s[60:61]
L_pc:
  v_lshlrev_b32 v126, 4, v3
  v_min_u32 v126, L_end-L_pc, v126
  global_load_dword v126, v126, s[60:61]
L_nocpf:""")
E(f"""  v_mov_b32 v{VX}, {LF}
  s_waitcnt lgkmcnt(0)
  s_barrier""")
stamp(3)
C("hop 1: waves 0,1 add the 16 wave rows and send them to both inbox copies, 16 bytes per lane")
E("  s_cmp_ge_u32 s14, 2\n  s_cbranch_scc1 L_nopub\n  s_setprio 3")
for k in range(8):
    E(f"  ds_read2st64_b32 v[{P+2*k}:{P+2*k+1}], v2 offset0:{4*k} offset1:{4*k+2}")
E(f"  s_cmp_eq_u32 s14, 0\n  s_cselect_b32 s18, 0x11111111, 0\n  v_xor_b32 v{VY}, 0x2000, v{VI}")
def tree(n):
    def pk(d, s): E(f"  v_pk_add_f32 v[{P+2*d}:{P+2*d+1}], v[{P+2*d}:{P+2*d+1}], v[{P+2*s}:{P+2*s+1}]")
    for k in range(0, n - 1, 2):
        E(f"  s_waitcnt lgkmcnt({n-2-k})"); pk(k, k + 1)
        if k == 2: pk(0, 2)
        if k == 6: pk(4, 6); pk(0, 4)
    E(f"  v_add_f32 v{P}, v{P}, v{P+1}")
def gather4():
    E(f"  v_and_or_b32 v{P}, v{P}, -16, s27\n  s_nop 1")
    for j in (1, 2, 3):
        E(f"  v_mov_b32_dpp v{P+j}, v{P} quad_perm:[{j},{j},{j},{j}] row_mask:0xf bank_mask:0xf")
tree(8)
gather4()
E("  s_mov_b32 exec_lo, 0x11111111\n  s_mov_b32 exec_hi, s18")
fine(1)
E(f"""  global_store_dwordx4 v{VI}, v[{P}:{P+3}], s[12:13] {SY}
  global_store_dwordx4 v{VY}, v[{P}:{P+3}], s[12:13] {SY}
  s_mov_b64 exec, -1
L_nopub:
  ds_read_b32 v{VX}, v{VX} offset:0
  s_cmp_ge_u32 s28, {NO}
  s_cbranch_scc1 L_notown
  s_waitcnt lgkmcnt(0)
  v_add_u32 v{VA}, v{VA}, v{VX}""")
def check(q, n, younger):
    for k in range(n):
        E(f"  s_waitcnt vmcnt({younger + n-1-k})")
        E(f"  v_xor_b32 v{q+k}, s27, v{q+k}")
        if k == 1: E(f"  v_or_b32 v{M}, v{q}, v{q+1}\n  v_add_f32 v{P}, v{q}, v{q+1}")
        elif k > 1: E(f"  v_or_b32 v{M}, v{M}, v{q+k}\n  v_add_f32 v{P}, v{P}, v{q+k}")
    E(f"  v_and_b32 v{M}, 15, v{M}\n  v_cmp_ne_u32 vcc, 0, v{M}")
C("owners: every wave polls four lines (two per load), two rounds in flight; the trip count is bounded")
def issue1(r):
    for k in range(2): E(f"  global_load_dword v{Q+2*r+k}, v{VA}, s[12:13] offset:{256*k} {PL}")
if a.d1 == 2:
    issue1(0)
    E("L_own:")
    for r in range(2):
        issue1(1 - r); check(Q + 2*r, 2, 2)
        E(f"  v_mov_b32 v{P+1}, v{P}\n  s_sub_u32 s24, s24, 1\n  s_cbranch_scc1 L_own_ok\n  s_cbranch_vccz L_own_ok")
else:
    E("L_own:")
    issue1(0); check(Q, 2, 0)
    E(f"  v_mov_b32 v{P+1}, v{P}\n  s_sub_u32 s24, s24, 1\n  s_cbranch_scc1 L_own_ok\n  s_cbranch_vccz L_own_ok")
E("  s_branch L_own\nL_own_ok:")
if a.fine: E("  s_cmp_lt_u32 s14, 2\n  s_cbranch_scc1 L_f1"); stamp(1); E("L_f1:")
E(f"""  v_permlane32_swap_b32 v{P}, v{P+1}
  s_mov_b32 exec_hi, 0
  v_add_f32 v{P}, v{P}, v{P+1}
  ds_write_b32 v{VB}, v{P} offset:{LB}
  s_mov_b32 exec_hi, -1
  s_movk_i32 s18, {LB}
  v_and_b32 v{VA}, 0x80, v3
  v_mul_u32_u24 v{VA}, 7, v{VA}
  v_add3_u32 v{VA}, v{VA}, v3, s18
  v_lshrrev_b32 v{VB}, 7, v3
  v_mul_u32_u24 v{VB}, {XS-128}, v{VB}
  v_add3_u32 v{VB}, v{VB}, v3, s29
  s_waitcnt lgkmcnt(0)
  s_barrier
  s_cmp_lg_u32 s14, 0
  s_cbranch_scc1 L_notown""")
C("hop 2: wave 0 adds the 16 wave rows and writes the line to eight copies (one per XCC, four on either side)")
for k in range(4):
    E(f"  ds_read2_b32 v[{P+2*k}:{P+2*k+1}], v{VA} offset0:{64*k} offset1:{64*k+32}")
E(f"  v_add_u32 v{VY}, 0x2000, v{VB}")
tree(4)
E(f"""  v_mov_b32 v{P+1}, v{P}
  s_nop 1
  v_permlane32_swap_b32 v{P}, v{P+1}
  v_add_f32 v{P}, v{P}, v{P+1}""")
gather4()
E(f"""  s_mov_b32 exec_lo, 0x11111111
  s_mov_b32 exec_hi, 0x11111111
  global_store_dwordx4 v{VB}, v[{P}:{P+3}], s[12:13] {SY}
  global_store_dwordx4 v{VY}, v[{P}:{P+3}], s[12:13] {SY}
  global_store_dwordx4 v{VB}, v[{P}:{P+3}], s[12:13] offset:{2*XS} {SY}
  global_store_dwordx4 v{VY}, v[{P}:{P+3}], s[12:13] offset:{2*XS} {SY}
  s_mov_b64 exec, -1""")
fine(2)
E("L_notown:")
C("bf16 -> f32 while the sums travel")
for i in range(NL):
    for d in range(3):
        E(f"  v_lshlrev_b32 v{U+6*i+2*d}, 16, v{D+4*i+d}")
        E(f"  v_and_b32 v{U+6*i+2*d+1}, s25, v{D+4*i+d}")
C("gate: wave 0 lanes 1..49 hold channels 0..48, wave 1 lanes 0..48 channels 47..95; lanes 1..48 write their scale")
E(f"""  s_cmp_ge_u32 s14, 2
  s_cbranch_scc1 L_wait
  s_and_b32 s31, s31, 3
  s_mul_i32 s31, s31, {XS}
  s_mul_i32 s22, s14, 192
  s_add_u32 s23, s22, {FIN-4}
  s_add_u32 s23, s23, s31
  s_waitcnt lgkmcnt(0)
  v_add3_u32 v{VA}, v{VX}, v3, s23
  s_add_u32 s23, s22, {LS-4}
  v_add_u32 v{VB}, s23, v3
  s_lshl_b32 s18, s16, 16
  s_and_b32 s19, s16, 0xffff0000
  s_lshl_b32 s20, s17, 16
  s_mov_b32 s21, {f2u(1.0/147456.0)}
  s_lshr_b32 s23, 0x3ffff, s14
  s_cmp_eq_u32 s14, 0
  s_cselect_b32 exec_lo, -2, -1
  s_mov_b32 exec_hi, s23
  s_mov_b32 s30, {a.maxpoll}""")
def issue2(q):
    for k in range(NG): E(f"  global_load_dword v{q+k}, v{VA}, s[12:13] offset:{384*k} {PL}")
if a.d2 == 1:
    E("L_poll:")
    issue2(Q + 4); check(Q + 4, NG, 0)
    E("  s_sub_u32 s30, s30, 1\n  s_cbranch_scc1 L_poll_ok\n  s_cbranch_vccz L_poll_ok\n  s_branch L_poll\nL_poll_ok:")
else:
    issue2(Q + 4)
    E("  s_sleep 1\nL_poll:")
    for r in range(2):
        issue2(Q + 4*r); check(Q + 4 - 4*r, NG, NG)
        E("  s_sub_u32 s30, s30, 1\n  s_cbranch_scc1 L_poll_ok\n  s_cbranch_vccz L_poll_ok\n  s_sleep 1")
    E("  s_branch L_poll\nL_poll_ok:")

stamp(4)
C("v_cvt_pk_bf16_f32 d, 0, x  =  x rounded to bf16, kept as an f32")
emit_gate2(E, P, P+2)
E(f"""  s_mov_b32 exec_lo, -2
  s_mov_b32 exec_hi, 0x1ffff
  ds_write_b32 v{VB}, v{P}
  s_setprio 0""")
C("every workgroup has published, so every wave has read the epoch: workgroup 0 advances it")
E(f"""  s_or_b32 s18, s2, s14
  s_cmp_lg_u32 s18, 0
  s_cbranch_scc1 L_noepo
  s_mov_b64 exec, 1
  v_mov_b32 v{VA}, {EPO}
  v_mov_b32 v{VY}, s15
  global_store_dword v{VA}, v{VY}, s[12:13] {SY}
L_noepo:
  s_mov_b64 exec, -1
L_wait:
  v_and_b32 v3, 60, v3
  v_mul_u32_u24 v3, 6, v3
  s_waitcnt lgkmcnt(0)
  s_barrier""")
stamp(5)
for j in range(3):
    E(f"  ds_read_b64 v[{S+2*j}:{S+2*j+1}], v3 offset:{LS+8*j}")
E("  s_waitcnt lgkmcnt(0)")
for i in range(NL):
    src = U + 6*i
    for d in range(3):
        E(f"  v_pk_mul_f32 v[{src+2*d}:{src+2*d+1}], v[{src+2*d}:{src+2*d+1}], v[{S+2*d}:{S+2*d+1}]")
    for d in range(3):
        E(f"  v_cvt_pk_bf16_f32 v{D+4*i+d}, v{src+2*d}, v{src+2*d+1}")
    E(f"  global_store_dwordx3 v1, v[{D+4*i}:{D+4*i+2}], s[8:9] {a.st}")
    if i < NL - 1: E(f"  s_add_u32 s8, s8, {STEP}\n  s_addc_u32 s9, s9, 0")
if a.stamp:
    if not a.fine: stamp(6)
    E("  s_waitcnt vmcnt(0)")
    E("  s_barrier")
    stamp(7)
    E(f"  v_readfirstlane_b32 s27, v{VX}")
    emit_stamp_dump(E, a, cnt="s24")
if a.sig:
    E(f"""  s_waitcnt vmcnt(0)
  s_barrier
  s_or_b32 s18, s2, s14
  s_cmp_lg_u32 s18, 0
  s_cbranch_scc1 L_end
  s_load_dwordx4 s[4:7], s[0:1], 0
  s_load_dwordx4 s[8:11], s[0:1], 16
  s_mov_b32 s18, 3000
L_q:
  s_sleep 8
  s_sub_u32 s18, s18, 1
  s_cmp_gt_u32 s18, 2950
  s_cbranch_scc1 L_q
  s_waitcnt lgkmcnt(0)""")
    def sweep(tag, base, npages, out):
        E(f"""  s_mov_b32 {out}, 0
  s_mov_b32 s40, 0
L_pg{tag}:
  s_lshl_b32 s41, s40, 21
  s_add_u32 s41, s41, 0x40000
  s_mov_b32 s42, 0
  s_mov_b32 s43, 0
  s_mov_b32 s44, 0
L_sm{tag}:
  s_lshl_b32 s45, s44, 14
  s_add_u32 s45, s45, s41
  s_add_u32 s46, s45, 0x2000
  s_memtime s[20:21]
  s_waitcnt lgkmcnt(0)
  s_load_dword s19, {base}, s45
  s_waitcnt lgkmcnt(0)
  s_memtime s[22:23]
  s_waitcnt lgkmcnt(0)
  s_load_dword s19, {base}, s46
  s_waitcnt lgkmcnt(0)
  s_memtime s[48:49]
  s_waitcnt lgkmcnt(0)
  s_sub_u32 s18, s22, s20
  s_sub_u32 s19, s48, s22
  s_cmp_lt_u32 s19, s18
  s_cselect_b32 s18, 1, 0
  s_cmp_eq_u32 s44, 0
  s_cselect_b32 s18, 0, s18
  s_add_u32 s42, s42, s18
  s_add_u32 s44, s44, 1
  s_cmp_lt_u32 s44, 8
  s_cbranch_scc1 L_sm{tag}
  s_cmp_ge_u32 s42, 4
  s_cselect_b32 s18, 1, 0
  s_lshl_b32 s18, s18, s40
  s_or_b32 {out}, {out}, s18
  s_add_u32 s40, s40, 1
  s_cmp_lt_u32 s40, {npages}
  s_cbranch_scc1 L_pg{tag}""")
    sweep("x", "s[4:5]", 13, "s50"); sweep("o", "s[8:9]", 13, "s51"); sweep("w", "s[12:13]", 13, "s52")
    E(f"""  s_getreg_b32 s53, hwreg(HW_REG_XCC_ID, 0, 3)
  s_mov_b64 exec, 1
  v_mov_b32 v4, s53
  v_mov_b32 v5, s50
  v_mov_b32 v6, s51
  v_mov_b32 v7, s52
  v_mov_b32 v8, s4
  v_mov_b32 v9, s8
  v_mov_b32 v10, s12
  v_mov_b32 v11, 0
  v_mov_b32 v1, 0
  global_store_dwordx4 v1, v[4:7], s[10:11]
  global_store_dwordx4 v1, v[8:11], s[10:11] offset:16""")
E("L_end:\n  s_endpgm")
E(kd(KN, 128, 64))
open(a.o, "w").write("\n".join(o) + "\n")
print(build(a.o))
```

```python
import sys, argparse
from asmlib import *
from common import *
ap = argparse.ArgumentParser()
ap.add_argument("-o", default="v12.s")
ap.add_argument("--ob", type=int, default=16)
ap.add_argument("--nv", type=int, default=32)
ap.add_argument("--vb", type=int, default=32)
ap.add_argument("--pw", type=int, default=12)
ap.add_argument("--fw", type=int, default=11)
ap.add_argument("--side", default="auto")
ap.add_argument("--stamp", action="store_true")
ap.add_argument("--allw", action="store_true")
ap.add_argument("--fine", action="store_true")
ap.add_argument("--exf", default="")
ap.add_argument("--xw", type=int, default=0)
ap.add_argument("--ld", default="nt")
ap.add_argument("--st", default="sc1")
ap.add_argument("--cpf", type=int, default=1)
ap.add_argument("--d1", type=int, default=2)
ap.add_argument("--vprio", type=int, default=3)
ap.add_argument("--maxpoll", type=int, default=1 << 20)
ap.add_argument("--skip", default="")
ap.add_argument("--x2", type=int, default=1)
ap.add_argument("--hg", type=int, default=0)
ap.add_argument("--d2", type=int, default=1)
ap.add_argument("--sig", type=int, default=0)
ap.add_argument("--cm", type=int, default=1)
a = ap.parse_args()
if a.exf or a.allw: a.stamp = True
if a.stamp: a.maxpoll = 200000
o = []; E = o.append
def C(t):
    if a.cm:
        for l in t.strip("\n").split("\n"): E("  ; " + l.strip())
def stamp(k):
    if a.stamp: E(f"  s_memrealtime s[{32+2*k}:{33+2*k}]")
def fine(k):
    if a.fine: stamp(k)
NW = 16; NL = 9; NG = 4; NO = 12
LA = 0; LB = 8192; LS = 10240; LF = LS + 384; LDS = LS + 512
FIN = 0x30000; XS = 1536; EPO = 0x34000; VOT = 0x35000; PRB = 0x38000
STEP = 786432
D = 4; U = 40; P = 94
SEL = P; ACC = P + 4; T = P + 8; S = P + 8; Q = P + 16
VI, VA, VB, VX, VY, VT = P + 24, P + 25, P + 26, P + 27, P + 28, P + 29
M = D + 3
SY = PL = "sc1"
TOP = f"""{HEADER}; @launch grid=(256,1,1) block=(1024,1,1) lds={LDS}
;
;
"""
E(TOP + f""".amdgcn_target "amdgcn-amd-amdhsa--gfx950"
.text
.globl {KN}
.p2align 8
.type {KN},@function
{KN}:""")
stamp(0)
C("s2 = workgroup, s14 = wave, v3 = lane, v0 = 12*lane, v1 = byte offset of this lane's first row piece\n"
  "row r of wave w: offset (w/4)*9*STEP + r*STEP + ((id%8)*32 + id/8)*3072 + (w%4)*768 + 12*lane, STEP = 786432")
E(f"""  s_cmp_ge_u32 s2, 256
  s_cbranch_scc1 L_end
  s_load_dwordx4 s[4:7], s[0:1], 0
  s_load_dwordx4 s[8:11], s[0:1], 16
  s_load_dwordx2 s[12:13], s[0:1], 32
  v_lshrrev_b32 v2, 6, v0
  v_and_b32 v3, 63, v0
  v_readfirstlane_b32 s14, v2
  v_mul_u32_u24 v0, 12, v3
  s_and_b32 s3, s2, 7
  s_lshl_b32 s3, s3, 5
  s_lshr_b32 s15, s2, 3
  s_add_u32 s3, s3, s15
  s_lshl_b32 s3, s3, 2
  s_and_b32 s15, s14, 3
  s_add_u32 s3, s3, s15
  s_mul_i32 s3, s3, 768
  s_lshr_b32 s15, s14, 2
  s_mul_i32 s15, s15, {NL*STEP}
  s_add_u32 s3, s3, s15
  v_add_u32 v1, s3, v0
  s_getreg_b32 s31, hwreg(HW_REG_XCC_ID, 0, 3)
  s_sub_u32 s28, s2, {a.vb}
  s_sub_u32 s29, s14, {a.pw}
  s_lshr_b32 s18, s28, {a.nv.bit_length()-1}
  s_lshr_b32 s19, s29, 2
  s_or_b32 s18, s18, s19
  s_cmp_lg_u32 s18, 0
  s_waitcnt lgkmcnt(0)
  {'s_branch' if 'p' in a.skip else 's_cbranch_scc1'} L_noprobe""")
C(f"waves {a.pw}..{a.pw+3} of {a.nv} workgroups could not issue their rows yet anyway: each times one scalar load of an\n"
  "untouched line (address bit 13 = wave parity) and reports (cycles << 5 | XCC half << 4 | tag)")
E(f"""  s_load_dword s15, s[12:13], {EPO}
  s_lshl_b32 s28, s28, 2
  s_add_u32 s28, s28, s29
  s_lshr_b32 s18, s28, 3
  s_lshl_b32 s18, s18, 7
  s_and_b32 s19, s28, 1
  s_lshl_b32 s19, s19, 13
  s_add_u32 s18, s18, s19
  s_and_b32 s19, s28, 2
  s_lshl_b32 s19, s19, 11
  s_add_u32 s18, s18, s19
  s_and_b32 s19, s28, 4
  s_lshl_b32 s19, s19, 12
  s_add_u32 s18, s18, s19
  s_add_u32 s18, s18, {PRB}
  s_lshr_b32 s19, s28, 2
  s_lshl_b32 s19, s19, 7
  s_lshl_b32 s29, s29, 2
  s_add_u32 s29, s29, s19
  s_add_u32 s29, s29, {VOT}
  s_waitcnt lgkmcnt(0)
  s_memtime s[20:21]
  s_waitcnt lgkmcnt(0)
  s_load_dword s19, s[12:13], s18
  s_waitcnt lgkmcnt(0)
  s_memtime s[22:23]
  s_add_u32 s15, s15, 1
  s_and_b32 s15, s15, 15
  s_lshr_b32 s19, s31, 2
  s_lshl_b32 s19, s19, 4
  s_or_b32 s15, s15, s19
  v_mov_b32 v{T}, s29
  s_waitcnt lgkmcnt(0)
  s_sub_u32 s18, s22, s20
  s_min_u32 s18, s18, 0xfffff
  s_lshl_b32 s18, s18, 5
  s_or_b32 s18, s18, s15
  v_mov_b32 v{T+1}, s18
  s_mov_b64 exec, 1""")
if a.vprio: E(f"  s_setprio {a.vprio}")
E(f"  global_store_dword v{T}, v{T+1}, s[12:13] {SY}")
if a.vprio: E("  s_setprio 0")
E("  s_mov_b64 exec, -1")
if a.fine: stamp(6)
E("L_noprobe:")
for i in range(NL):
    E(f"  global_load_dwordx3 v[{D+4*i}:{D+4*i+2}], v1, s[4:5] {a.ld}")
    if i < NL - 1: E(f"  s_add_u32 s4, s4, {STEP}\n  s_addc_u32 s5, s5, 0")
    if i == 0:
        E(f"  s_load_dword s15, s[12:13], {EPO}")
        E("  s_load_dwordx2 s[16:17], s[6:7], 0")
if not a.fine: stamp(1)
C("a row is 3 registers + a zero register = the B operand (32 x 16) of one MFMA: column n = lane%16 holds channels 6n..6n+5")
for i in range(NL):
    E(f"  v_mov_b32 v{D+4*i+3}, 0")
C("selector (A operand): rows 0..2 pick elements 0..2, rows 4..6 pick elements 3..5, so lane 16G+n gets channels 6n+3G..+2")
E(f"""  v_and_b32 v{T}, 15, v3
  v_lshrrev_b32 v{T+1}, 2, v{T}
  v_sub_u32 v{T+1}, v{T}, v{T+1}
  v_and_b32 v{T+2}, 3, v{T}
  v_cmp_ne_u32 s[18:19], 3, v{T+2}
  v_cmp_gt_u32 s[20:21], 8, v{T}
  v_and_b32 v{T+2}, 1, v{T+1}
  v_lshlrev_b32 v{T+2}, 4, v{T+2}
  s_and_b64 s[18:19], s[18:19], s[20:21]
  v_mov_b32 v{T+3}, 0x3f80
  v_lshlrev_b32 v{T+2}, v{T+2}, v{T+3}
  v_lshrrev_b32 v{T+1}, 1, v{T+1}
  v_cndmask_b32 v{T+2}, 0, v{T+2}, s[18:19]
  v_cmp_eq_u32 s[18:19], 0, v{T+1}
  v_cmp_eq_u32 s[20:21], 1, v{T+1}
  v_cmp_eq_u32 s[22:23], 2, v{T+1}
  v_mov_b32 v{SEL+3}, 0
  v_cndmask_b32 v{SEL}, 0, v{T+2}, s[18:19]
  v_cndmask_b32 v{SEL+1}, 0, v{T+2}, s[20:21]
  v_cndmask_b32 v{SEL+2}, 0, v{T+2}, s[22:23]
  v_mul_u32_u24 v{VT}, v{T}, v{T}
  v_mul_u32_u24 v{VT}, 11, v{VT}
  v_bfe_u32 v{VT}, v{VT}, 3, 4
  v_lshrrev_b32 v{T+1}, 4, v3
  v_lshlrev_b32 v{T+1}, 4, v{T+1}
  v_lshl_add_u32 v{T+1}, v{T}, 5, v{T+1}
  s_lshl_b32 s26, s14, 9
  v_add_u32 v{T+1}, s26, v{T+1}
  s_mov_b32 s25, 0xffff0000
  v_lshlrev_b32 v3, 2, v3
  s_mov_b32 s24, {a.maxpoll}""")
C(f"v3 = 4*lane. Waves 0,1 publish channel c = 64w + lane: v2 = its LDS address in a wave row (4c + 4(c/3)),\n"
  f"v{VI} = its inbox address (3*(id/64) + c/32)*16384 + (id%64)*128 + (c%32)*4")
E(f"""  s_lshl_b32 s18, s14, 8
  v_add_u32 v{VI}, s18, v3
  v_mul_u32_u24 v2, 171, v{VI}
  v_lshrrev_b32 v2, 11, v2
  v_lshl_add_u32 v2, v2, 2, v{VI}
  v_and_b32 v{VA}, 0x7c, v{VI}
  v_lshrrev_b32 v{VI}, 7, v{VI}
  v_lshlrev_b32 v{VI}, 14, v{VI}
""".rstrip())
if a.hg:
    E(f"""  s_bfe_u32 s18, s2, 0x10002
  s_lshl_b32 s18, s18, 1
  s_lshr_b32 s19, s2, 7
  s_add_u32 s18, s18, s19
  s_mul_i32 s18, s18, 49152
  s_bfe_u32 s19, s2, 0x40003
  s_lshl_b32 s19, s19, 9
  s_add_u32 s18, s18, s19
  s_and_b32 s19, s2, 3
  s_lshl_b32 s19, s19, 7
  s_add_u32 s18, s18, s19""")
else:
    E(f"""  s_lshr_b32 s18, s2, 6
  s_mul_i32 s18, s18, 49152
  s_and_b32 s19, s2, 63
  s_lshl_b32 s19, s19, 7
  s_add_u32 s18, s18, s19""")
E(f"  v_add3_u32 v{VI}, v{VI}, v{VA}, s18")
C(f"owner role s28 = id - {a.ob} (owner iff < 12): v{VA} = the four inbox lines of this wave, s29 = its final line")
E(f"  s_sub_u32 s28, s2, {a.ob}")
if a.hg:
    assert a.ob % 8 == 0
    E(f"""  s_bfe_u32 s18, s28, 0x10002
  s_mul_i32 s18, s18, 6
  s_and_b32 s19, s28, 3
  s_lshr_b32 s20, s28, 3
  s_lshl_b32 s20, s20, 2
  s_add_u32 s19, s19, s20
  s_add_u32 s28, s18, s19
  s_cmp_lt_u32 s19, 6
  s_cselect_b32 s28, s28, {NO}""")
E(f"""  s_lshl_b32 s20, s28, 14
  s_lshl_b32 s21, s14, 9
  s_add_u32 s20, s20, s21
  v_add_u32 v{VA}, s20, v3
  s_lshl_b32 s21, s14, 7
  v_add_u32 v{VB}, s21, v3
  s_lshl_b32 s29, s28, 7
  s_add_u32 s29, s29, {FIN}""")
for i in range(NL):
    E(f"  s_waitcnt vmcnt({NL-1-i})")
    c = "0" if i == 0 else f"v[{ACC}:{ACC+3}]"
    E(f"  v_mfma_f32_16x16x32_bf16 v[{ACC}:{ACC+3}], v[{SEL}:{SEL+3}], v[{D+4*i}:{D+4*i+3}], {c}")
if not a.fine: stamp(2)
E(f"""  s_waitcnt lgkmcnt(0)
  s_add_u32 s15, s15, 1
  s_and_b32 s27, s15, 15
  v_xor_b32 v{VT}, s27, v{VT}
  s_nop 2
  s_mov_b32 exec_hi, 0
  ds_write_b128 v{T+1}, v[{ACC}:{ACC+3}] offset:{LA}
  s_mov_b32 exec_hi, -1""")
C(f"wave {a.fw} counts the probe pairs: which address bit 13 is near for this XCC half -> LDS word (0 or 0x2000)")
E(f"""  s_cmp_lg_u32 s14, {a.fw}
  s_cbranch_scc1 L_nocount
  v_and_b32 v{T+2}, 4, v3
  v_sub_u32 v{VY}, v3, v{T+2}
  v_lshlrev_b32 v{VY}, 4, v{VY}
  v_lshl_add_u32 v{VY}, v{T+2}, 1, v{VY}
  v_add_u32 v{VY}, {VOT}, v{VY}""")
if a.nv < 32: E(f"  s_mov_b64 exec, {hex((1 << (2*a.nv)) - 1)}" if a.nv < 16 else "  s_mov_b32 exec_hi, 0")
E(f"""  {'v_mov_b64 v[%d:%d], 0' % (T+4, T+5) if 'l' in a.skip else 'global_load_dwordx2 v[%d:%d], v%d, s[12:13] %s' % (T+4, T+5, VY, PL)}
  s_lshr_b32 s19, s31, 2
  v_mov_b32 v{T+3}, {LF}
  s_waitcnt vmcnt(0)
  v_xor_b32 v{VX}, s27, v{T+4}
  v_xor_b32 v{VY}, s27, v{T+5}
  v_or_b32 v{T+2}, v{VX}, v{VY}
  v_and_b32 v{T+2}, 15, v{T+2}
  v_cmp_eq_u32 s[20:21], 0, v{T+2}
  v_cmp_lt_u32 vcc, v{VY}, v{VX}
  v_and_b32 v{T+2}, 16, v{VX}
  v_cmp_ne_u32 s[22:23], 0, v{T+2}
  s_xor_b64 vcc, vcc, s[22:23]
  s_and_b64 vcc, vcc, s[20:21]
  s_bcnt1_i32_b64 s18, vcc
  s_bcnt1_i32_b64 s20, s[20:21]""")
if a.stamp: E("  s_lshl_b32 s24, s20, 8\n  s_or_b32 s24, s24, s18")
E("""  s_lshl_b32 s18, s18, 1
  s_cmp_gt_u32 s18, s20
  s_cselect_b32 s18, 1, 0""")
if a.side != "auto": E(f"  s_mov_b32 s18, {a.side}")
E(f"""  s_xor_b32 s18, s18, s19
  s_lshl_b32 s18, s18, 13
  v_mov_b32 v{T+2}, s18
  s_mov_b64 exec, -1
  ds_write_b32 v{T+3}, v{T+2}
L_nocount:""")
if a.cpf >= 0:
    C(f"wave {a.cpf} is done early and pulls the rest of the code into the L2")
    E(f"""  s_cmp_lg_u32 s14, {a.cpf}
  s_cbranch_scc1 L_nocpf
  s_getpc_b64 s[60:61]
L_pc:
  v_lshlrev_b32 v126, 4, v3
  v_min_u32 v126, L_end-L_pc, v126
  global_load_dword v126, v126, s[60:61]
L_nocpf:""")
E(f"""  v_mov_b32 v{VX}, {LF}
  s_waitcnt lgkmcnt(0)
  s_barrier""")
stamp(3)
C("hop 1: waves 0,1 add the 16 wave rows and send them to both inbox copies, 16 bytes per lane")
E("  s_cmp_ge_u32 s14, 2\n  s_cbranch_scc1 L_nopub\n  s_setprio 3")
for k in range(8):
    E(f"  ds_read2st64_b32 v[{P+2*k}:{P+2*k+1}], v2 offset0:{4*k} offset1:{4*k+2}")
E(f"  s_cmp_eq_u32 s14, 0\n  s_cselect_b32 s18, 0x11111111, 0\n  v_xor_b32 v{VY}, 0x2000, v{VI}")
def tree(n):
    def pk(d, s): E(f"  v_pk_add_f32 v[{P+2*d}:{P+2*d+1}], v[{P+2*d}:{P+2*d+1}], v[{P+2*s}:{P+2*s+1}]")
    for k in range(0, n - 1, 2):
        E(f"  s_waitcnt lgkmcnt({n-2-k})"); pk(k, k + 1)
        if k == 2: pk(0, 2)
        if k == 6: pk(4, 6); pk(0, 4)
    E(f"  v_add_f32 v{P}, v{P}, v{P+1}")
def gather4():
    E(f"  v_and_or_b32 v{P}, v{P}, -16, v{VT}\n  s_nop 1")
    for j in (1, 2, 3):
        E(f"  v_mov_b32_dpp v{P+j}, v{P} quad_perm:[{j},{j},{j},{j}] row_mask:0xf bank_mask:0xf")
tree(8)
gather4()
E("  s_mov_b32 exec_lo, 0x11111111\n  s_mov_b32 exec_hi, s18")
fine(1)
E(f"""  global_store_dwordx4 v{VI}, v[{P}:{P+3}], s[12:13] {SY}
  global_store_dwordx4 v{VY}, v[{P}:{P+3}], s[12:13] {SY}
  s_mov_b64 exec, -1
L_nopub:
  ds_read_b32 v{VX}, v{VX} offset:0
  s_cmp_ge_u32 s28, {NO}
  s_cbranch_scc1 L_notown
  s_waitcnt lgkmcnt(0)
  v_add_u32 v{VA}, v{VA}, v{VX}""")
def check(q, n, younger):
    for k in range(n):
        E(f"  s_waitcnt vmcnt({younger + n-1-k})")
        E(f"  v_xor_b32 v{q+k}, v{VT}, v{q+k}")
        if k == 1: E(f"  v_or_b32 v{M}, v{q}, v{q+1}\n  v_add_f32 v{P}, v{q}, v{q+1}")
        elif k > 1: E(f"  v_or_b32 v{M}, v{M}, v{q+k}\n  v_add_f32 v{P}, v{P}, v{q+k}")
    E(f"  v_and_b32 v{M}, 15, v{M}\n  v_cmp_ne_u32 vcc, 0, v{M}")
C("owners: every wave polls four lines (two per load), two rounds in flight; the trip count is bounded")
def issue1(r):
    for k in range(2): E(f"  global_load_dword v{Q+2*r+k}, v{VA}, s[12:13] offset:{256*k} {PL}")
if a.d1 == 2:
    issue1(0)
    E("L_own:")
    for r in range(2):
        issue1(1 - r); check(Q + 2*r, 2, 2)
        E(f"  v_mov_b32 v{P+1}, v{P}\n  s_sub_u32 s24, s24, 1\n  s_cbranch_scc1 L_own_ok\n  s_cbranch_vccz L_own_ok")
else:
    E("L_own:")
    issue1(0); check(Q, 2, 0)
    E(f"  v_mov_b32 v{P+1}, v{P}\n  s_sub_u32 s24, s24, 1\n  s_cbranch_scc1 L_own_ok\n  s_cbranch_vccz L_own_ok")
E("  s_branch L_own\nL_own_ok:")
if a.fine: E("  s_cmp_lt_u32 s14, 2\n  s_cbranch_scc1 L_f1"); stamp(1); E("L_f1:")
E(f"""  v_permlane32_swap_b32 v{P}, v{P+1}
  s_mov_b32 exec_hi, 0
  v_add_f32 v{P}, v{P}, v{P+1}
  ds_write_b32 v{VB}, v{P} offset:{LB}
  s_mov_b32 exec_hi, -1
  s_movk_i32 s18, {LB}
  v_and_b32 v{VA}, 0x80, v3
  v_mul_u32_u24 v{VA}, 7, v{VA}
  v_add3_u32 v{VA}, v{VA}, v3, s18
  v_lshrrev_b32 v{VB}, 7, v3
  v_mul_u32_u24 v{VB}, {XS-128}, v{VB}
  v_add3_u32 v{VB}, v{VB}, v3, s29
  s_waitcnt lgkmcnt(0)
  s_barrier
  s_cmp_lg_u32 s14, 0
  s_cbranch_scc1 L_notown""")
C("hop 2: wave 0 adds the 16 wave rows and writes the line to eight copies (one per XCC, four on either side)")
for k in range(4):
    E(f"  ds_read2_b32 v[{P+2*k}:{P+2*k+1}], v{VA} offset0:{64*k} offset1:{64*k+32}")
E(f"  v_add_u32 v{VY}, 0x2000, v{VB}")
tree(4)
E(f"""  v_mov_b32 v{P+1}, v{P}
  s_nop 1
  v_permlane32_swap_b32 v{P}, v{P+1}
  v_add_f32 v{P}, v{P}, v{P+1}""")
gather4()
E(f"""  s_mov_b32 exec_lo, 0x11111111
  s_mov_b32 exec_hi, 0x11111111
  global_store_dwordx4 v{VB}, v[{P}:{P+3}], s[12:13] {SY}
  global_store_dwordx4 v{VY}, v[{P}:{P+3}], s[12:13] {SY}
  global_store_dwordx4 v{VB}, v[{P}:{P+3}], s[12:13] offset:{2*XS} {SY}
  global_store_dwordx4 v{VY}, v[{P}:{P+3}], s[12:13] offset:{2*XS} {SY}
  s_mov_b64 exec, -1""")
fine(2)
E("L_notown:")
C("bf16 -> f32 while the sums travel")
for i in range(NL):
    for d in range(3):
        E(f"  v_lshlrev_b32 v{U+6*i+2*d}, 16, v{D+4*i+d}")
        E(f"  v_and_b32 v{U+6*i+2*d+1}, s25, v{D+4*i+d}")
C("gate: wave 0 holds channels 0..63 and writes the scales 0..47, wave 1 holds 32..95 and writes 48..95")
E(f"""  s_cmp_ge_u32 s14, 2
  s_cbranch_scc1 L_wait
  s_and_b32 s31, s31, 3
  s_mul_i32 s31, s31, {XS}
  s_lshl_b32 s22, s14, 7
  s_add_u32 s23, s22, {FIN}
  s_add_u32 s23, s23, s31
  s_waitcnt lgkmcnt(0)
  v_add3_u32 v{VA}, v{VX}, v3, s23
  s_add_u32 s23, s22, {LS}
  v_add_u32 v{VB}, s23, v3
  s_lshl_b32 s18, s16, 16
  s_and_b32 s19, s16, 0xffff0000
  s_lshl_b32 s20, s17, 16
  s_mov_b32 s21, {f2u(1.0/147456.0)}
  s_cmp_eq_u32 s14, 0
  s_cselect_b32 s22, -1, 0xffff0000
  s_cselect_b32 s23, 0xffff, -1
  s_mov_b32 s30, {a.maxpoll}""")
def issue2(q):
    for k in range(NG): E(f"  global_load_dword v{q+k}, v{VA}, s[12:13] offset:{384*k} {PL}")
if a.d2 == 1:
    E("L_poll:")
    issue2(Q + 4); check(Q + 4, NG, 0)
    E("  s_sub_u32 s30, s30, 1\n  s_cbranch_scc1 L_poll_ok\n  s_cbranch_vccz L_poll_ok\n  s_branch L_poll\nL_poll_ok:")
else:
    issue2(Q + 4)
    E("  s_sleep 1\nL_poll:")
    for r in range(2):
        issue2(Q + 4*r); check(Q + 4 - 4*r, NG, NG)
        E("  s_sub_u32 s30, s30, 1\n  s_cbranch_scc1 L_poll_ok\n  s_cbranch_vccz L_poll_ok\n  s_sleep 1")
    E("  s_branch L_poll\nL_poll_ok:")

stamp(4)
C("v_cvt_pk_bf16_f32 d, 0, x  =  x rounded to bf16, kept as an f32")
emit_gate2(E, P, P+2)
E(f"""  s_mov_b64 exec, s[22:23]
  ds_write_b32 v{VB}, v{P}
  s_setprio 0""")
C("every workgroup has published, so every wave has read the epoch: workgroup 0 advances it")
E(f"""  s_or_b32 s18, s2, s14
  s_cmp_lg_u32 s18, 0
  s_cbranch_scc1 L_noepo
  s_mov_b64 exec, 1
  v_mov_b32 v{VA}, {EPO}
  v_mov_b32 v{VY}, s15
  global_store_dword v{VA}, v{VY}, s[12:13] {SY}
L_noepo:
  s_mov_b64 exec, -1
L_wait:
  v_and_b32 v3, 60, v3
  v_mul_u32_u24 v3, 6, v3
  s_waitcnt lgkmcnt(0)
  s_barrier""")
stamp(5)
for j in range(3):
    E(f"  ds_read_b64 v[{S+2*j}:{S+2*j+1}], v3 offset:{LS+8*j}")
E("  s_waitcnt lgkmcnt(0)")
for i in range(NL):
    src = U + 6*i
    for d in range(3):
        E(f"  v_pk_mul_f32 v[{src+2*d}:{src+2*d+1}], v[{src+2*d}:{src+2*d+1}], v[{S+2*d}:{S+2*d+1}]")
    for d in range(3):
        E(f"  v_cvt_pk_bf16_f32 v{D+4*i+d}, v{src+2*d}, v{src+2*d+1}")
    E(f"  global_store_dwordx3 v1, v[{D+4*i}:{D+4*i+2}], s[8:9] {a.st}")
    if i < NL - 1: E(f"  s_add_u32 s8, s8, {STEP}\n  s_addc_u32 s9, s9, 0")
if a.stamp:
    if not a.fine: stamp(6)
    E("  s_waitcnt vmcnt(0)")
    E("  s_barrier")
    stamp(7)
    E(f"  v_readfirstlane_b32 s27, v{VX}")
    emit_stamp_dump(E, a, cnt="s24")
if a.sig:
    E(f"""  s_waitcnt vmcnt(0)
  s_barrier
  s_or_b32 s18, s2, s14
  s_cmp_lg_u32 s18, 0
  s_cbranch_scc1 L_end
  s_load_dwordx4 s[4:7], s[0:1], 0
  s_load_dwordx4 s[8:11], s[0:1], 16
  s_mov_b32 s18, 3000
L_q:
  s_sleep 8
  s_sub_u32 s18, s18, 1
  s_cmp_gt_u32 s18, 2950
  s_cbranch_scc1 L_q
  s_waitcnt lgkmcnt(0)""")
    def sweep(tag, base, npages, out):
        E(f"""  s_mov_b32 {out}, 0
  s_mov_b32 s40, 0
L_pg{tag}:
  s_lshl_b32 s41, s40, 21
  s_add_u32 s41, s41, 0x40000
  s_mov_b32 s42, 0
  s_mov_b32 s43, 0
  s_mov_b32 s44, 0
L_sm{tag}:
  s_lshl_b32 s45, s44, 14
  s_add_u32 s45, s45, s41
  s_add_u32 s46, s45, 0x2000
  s_memtime s[20:21]
  s_waitcnt lgkmcnt(0)
  s_load_dword s19, {base}, s45
  s_waitcnt lgkmcnt(0)
  s_memtime s[22:23]
  s_waitcnt lgkmcnt(0)
  s_load_dword s19, {base}, s46
  s_waitcnt lgkmcnt(0)
  s_memtime s[48:49]
  s_waitcnt lgkmcnt(0)
  s_sub_u32 s18, s22, s20
  s_sub_u32 s19, s48, s22
  s_cmp_lt_u32 s19, s18
  s_cselect_b32 s18, 1, 0
  s_cmp_eq_u32 s44, 0
  s_cselect_b32 s18, 0, s18
  s_add_u32 s42, s42, s18
  s_add_u32 s44, s44, 1
  s_cmp_lt_u32 s44, 8
  s_cbranch_scc1 L_sm{tag}
  s_cmp_ge_u32 s42, 4
  s_cselect_b32 s18, 1, 0
  s_lshl_b32 s18, s18, s40
  s_or_b32 {out}, {out}, s18
  s_add_u32 s40, s40, 1
  s_cmp_lt_u32 s40, {npages}
  s_cbranch_scc1 L_pg{tag}""")
    sweep("x", "s[4:5]", 13, "s50"); sweep("o", "s[8:9]", 13, "s51"); sweep("w", "s[12:13]", 13, "s52")
    E(f"""  s_getreg_b32 s53, hwreg(HW_REG_XCC_ID, 0, 3)
  s_mov_b64 exec, 1
  v_mov_b32 v4, s53
  v_mov_b32 v5, s50
  v_mov_b32 v6, s51
  v_mov_b32 v7, s52
  v_mov_b32 v8, s4
  v_mov_b32 v9, s8
  v_mov_b32 v10, s12
  v_mov_b32 v11, 0
  v_mov_b32 v1, 0
  global_store_dwordx4 v1, v[4:7], s[10:11]
  global_store_dwordx4 v1, v[8:11], s[10:11] offset:16""")
E("L_end:\n  s_endpgm")
E(kd(KN, 128, 64))
open(a.o, "w").write("\n".join(o) + "\n")
print(build(a.o))
```

```python
import sys, argparse
from asmlib import *
from common import *
ap = argparse.ArgumentParser()
ap.add_argument("-o", default="v12.s")
ap.add_argument("--ob", type=int, default=16)
ap.add_argument("--nv", type=int, default=32)
ap.add_argument("--vb", type=int, default=32)
ap.add_argument("--pw", type=int, default=12)
ap.add_argument("--fw", type=int, default=11)
ap.add_argument("--side", default="auto")
ap.add_argument("--stamp", action="store_true")
ap.add_argument("--allw", action="store_true")
ap.add_argument("--fine", action="store_true")
ap.add_argument("--exf", default="")
ap.add_argument("--xw", type=int, default=0)
ap.add_argument("--ld", default="nt")
ap.add_argument("--st", default="sc1")
ap.add_argument("--cpf", type=int, default=-1)
ap.add_argument("--d1", type=int, default=2)
ap.add_argument("--vprio", type=int, default=3)
ap.add_argument("--maxpoll", type=int, default=1 << 20)
ap.add_argument("--skip", default="")
ap.add_argument("--x2", type=int, default=1)
ap.add_argument("--hg", type=int, default=0)
ap.add_argument("--d2", type=int, default=1)
ap.add_argument("--sig", type=int, default=0)
ap.add_argument("--col", type=int, default=4)
ap.add_argument("--csig", type=int, default=0)
ap.add_argument("--cm", type=int, default=1)
a = ap.parse_args()
if a.exf or a.allw: a.stamp = True
if a.stamp: a.maxpoll = 200000
o = []; E = o.append
def C(t):
    if a.cm:
        for l in t.strip("\n").split("\n"): E("  ; " + l.strip())
def stamp(k):
    if a.stamp: E(f"  s_memrealtime s[{32+2*k}:{33+2*k}]")
def fine(k):
    if a.fine: stamp(k)
NW = 16; NL = 9; NG = 4; NO = 12
LA = 0; LB = 8192; LS = 10240; LF = LS + 384; LDS = LS + 512
FIN = 0x30000; XS = 1536; EPO = 0x34000; VOT = 0x35000; PRB = 0x38000
STEP = 786432
D = 4; U = 40; P = 94
SEL = P; ACC = P + 4; T = P + 8; S = P + 8; Q = P + 16
VI, VA, VB, VX, VY, VT = P + 24, P + 25, P + 26, P + 27, P + 28, P + 29
M = D + 3
SY = PL = "sc1"
TOP = f"""{HEADER}; @launch grid=(256,1,1) block=(1024,1,1) lds={LDS}
;
;
"""
E(TOP + f""".amdgcn_target "amdgcn-amd-amdhsa--gfx950"
.text
.globl {KN}
.p2align 8
.type {KN},@function
{KN}:""")
COLSET = ""
if a.col < 4:
    COLSET = f"""  s_lshr_b32 s18, s2, 3
  s_lshl_b32 s18, s18, 2
  s_and_b32 s19, s2, 3
  s_add_u32 s18, s18, s19
  s_lshl_b32 s18, s18, 2
  s_and_b32 s19, s14, 3
  s_add_u32 s18, s18, s19
  s_lshr_b32 s19, s18, 5
  s_mul_i32 s57, s19, 49152
  s_and_b32 s18, s18, 31
  s_add_u32 s62, s18, 21
  s_add_u32 s19, s18, 10
  s_cmp_lt_u32 s18, 22
  s_cselect_b32 s62, s19, s62
  s_cmp_lt_u32 s18, 11
  s_cselect_b32 s62, s18, s62
  s_add_u32 s63, s18, 32
  s_add_u32 s19, s18, 22
  s_cmp_lt_u32 s18, 21
  s_cselect_b32 s63, s19, s63
  s_add_u32 s19, s18, 11
  s_cmp_lt_u32 s18, 10
  s_cselect_b32 s63, s19, s63
  s_mul_i32 s62, s62, 768
  s_mul_i32 s63, s63, 768
  s_lshr_b32 s19, s14, 2
  s_mul_i32 s59, s19, {NL*STEP}
  s_add_u32 s59, s59, s57
  s_bfe_u32 s58, s2, 0x10002
  s_xor_b32 s58, s58, {a.csig}
  s_cmp_ge_u32 s19, {a.col}
  s_cselect_b32 s56, 0, 1
  s_cselect_b32 s59, s59, 0
  s_cselect_b32 s62, s62, s3
  s_cselect_b32 s63, s63, s3
  s_cbranch_scc1 L_colset
  s_mov_b32 s59, 0
L_colset:
  v_mov_b32 v1, v0
"""
def rowaddr(i, dst, base):
    E(f"""  s_add_u32 s54, s59, {i*STEP}
  s_bfe_u32 s55, s54, 0x10015
  s_cmp_lg_u32 s55, s58
  s_cselect_b32 s55, s63, s62
  s_add_u32 s54, s54, s55
  s_add_u32 s{dst}, s{base}, s54
  s_addc_u32 s{dst+1}, s{base+1}, 0""")
stamp(0)
C("s2 = workgroup, s14 = wave, v3 = lane, v0 = 12*lane, v1 = byte offset of this lane's first row piece\n"
  "row r of wave w: offset (w/4)*9*STEP + r*STEP + ((id%8)*32 + id/8)*3072 + (w%4)*768 + 12*lane, STEP = 786432")
E(f"""  s_cmp_ge_u32 s2, 256
  s_cbranch_scc1 L_end
  s_load_dwordx4 s[4:7], s[0:1], 0
  s_load_dwordx4 s[8:11], s[0:1], 16
  s_load_dwordx2 s[12:13], s[0:1], 32
  v_lshrrev_b32 v2, 6, v0
  v_and_b32 v3, 63, v0
  v_readfirstlane_b32 s14, v2
  v_mul_u32_u24 v0, 12, v3
  s_and_b32 s3, s2, 7
  s_lshl_b32 s3, s3, 5
  s_lshr_b32 s15, s2, 3
  s_add_u32 s3, s3, s15
  s_lshl_b32 s3, s3, 2
  s_and_b32 s15, s14, 3
  s_add_u32 s3, s3, s15
  s_mul_i32 s3, s3, 768
  s_lshr_b32 s15, s14, 2
  s_mul_i32 s15, s15, {NL*STEP}
  s_add_u32 s3, s3, s15
  v_add_u32 v1, s3, v0
  s_getreg_b32 s31, hwreg(HW_REG_XCC_ID, 0, 3)
{COLSET}  s_sub_u32 s28, s2, {a.vb}
  s_sub_u32 s29, s14, {a.pw}
  s_lshr_b32 s18, s28, {a.nv.bit_length()-1}
  s_lshr_b32 s19, s29, 2
  s_or_b32 s18, s18, s19
  s_cmp_lg_u32 s18, 0
  s_waitcnt lgkmcnt(0)
  {'s_branch' if 'p' in a.skip else 's_cbranch_scc1'} L_noprobe""")
C(f"waves {a.pw}..{a.pw+3} of {a.nv} workgroups could not issue their rows yet anyway: each times one scalar load of an\n"
  "untouched line (address bit 13 = wave parity) and reports (cycles << 5 | XCC half << 4 | tag)")
E(f"""  s_load_dword s15, s[12:13], {EPO}
  s_lshl_b32 s28, s28, 2
  s_add_u32 s28, s28, s29
  s_lshr_b32 s18, s28, 3
  s_lshl_b32 s18, s18, 7
  s_and_b32 s19, s28, 1
  s_lshl_b32 s19, s19, 13
  s_add_u32 s18, s18, s19
  s_and_b32 s19, s28, 2
  s_lshl_b32 s19, s19, 11
  s_add_u32 s18, s18, s19
  s_and_b32 s19, s28, 4
  s_lshl_b32 s19, s19, 12
  s_add_u32 s18, s18, s19
  s_add_u32 s18, s18, {PRB}
  s_lshr_b32 s19, s28, 2
  s_lshl_b32 s19, s19, 7
  s_lshl_b32 s29, s29, 2
  s_add_u32 s29, s29, s19
  s_add_u32 s29, s29, {VOT}
  s_waitcnt lgkmcnt(0)
  s_memtime s[20:21]
  s_waitcnt lgkmcnt(0)
  s_load_dword s19, s[12:13], s18
  s_waitcnt lgkmcnt(0)
  s_memtime s[22:23]
  s_add_u32 s15, s15, 1
  s_and_b32 s15, s15, 15
  s_lshr_b32 s19, s31, 2
  s_lshl_b32 s19, s19, 4
  s_or_b32 s15, s15, s19
  v_mov_b32 v{T}, s29
  s_waitcnt lgkmcnt(0)
  s_sub_u32 s18, s22, s20
  s_min_u32 s18, s18, 0xfffff
  s_lshl_b32 s18, s18, 5
  s_or_b32 s18, s18, s15
  v_mov_b32 v{T+1}, s18
  s_mov_b64 exec, 1""")
if a.vprio: E(f"  s_setprio {a.vprio}")
E(f"  global_store_dword v{T}, v{T+1}, s[12:13] {SY}")
if a.vprio: E("  s_setprio 0")
E("  s_mov_b64 exec, -1")
if a.fine: stamp(6)
E("L_noprobe:")
for i in range(NL):
    if a.col < 4:
        rowaddr(i, 52, 4)
        E(f"  global_load_dwordx3 v[{D+4*i}:{D+4*i+2}], v1, s[52:53] {a.ld}")
    else:
        E(f"  global_load_dwordx3 v[{D+4*i}:{D+4*i+2}], v1, s[4:5] {a.ld}")
        if i < NL - 1: E(f"  s_add_u32 s4, s4, {STEP}\n  s_addc_u32 s5, s5, 0")
    if i == 0:
        E(f"  s_load_dword s15, s[12:13], {EPO}")
        E("  s_load_dwordx2 s[16:17], s[6:7], 0")
if not a.fine: stamp(1)
C("a row is 3 registers + a zero register = the B operand (32 x 16) of one MFMA: column n = lane%16 holds channels 6n..6n+5")
for i in range(NL):
    E(f"  v_mov_b32 v{D+4*i+3}, 0")
C("selector (A operand): rows 0..2 pick elements 0..2, rows 4..6 pick elements 3..5, so lane 16G+n gets channels 6n+3G..+2")
E(f"""  v_and_b32 v{T}, 15, v3
  v_lshrrev_b32 v{T+1}, 2, v{T}
  v_sub_u32 v{T+1}, v{T}, v{T+1}
  v_and_b32 v{T+2}, 3, v{T}
  v_cmp_ne_u32 s[18:19], 3, v{T+2}
  v_cmp_gt_u32 s[20:21], 8, v{T}
  v_and_b32 v{T+2}, 1, v{T+1}
  v_lshlrev_b32 v{T+2}, 4, v{T+2}
  s_and_b64 s[18:19], s[18:19], s[20:21]
  v_mov_b32 v{T+3}, 0x3f80
  v_lshlrev_b32 v{T+2}, v{T+2}, v{T+3}
  v_lshrrev_b32 v{T+1}, 1, v{T+1}
  v_cndmask_b32 v{T+2}, 0, v{T+2}, s[18:19]
  v_cmp_eq_u32 s[18:19], 0, v{T+1}
  v_cmp_eq_u32 s[20:21], 1, v{T+1}
  v_cmp_eq_u32 s[22:23], 2, v{T+1}
  v_mov_b32 v{SEL+3}, 0
  v_cndmask_b32 v{SEL}, 0, v{T+2}, s[18:19]
  v_cndmask_b32 v{SEL+1}, 0, v{T+2}, s[20:21]
  v_cndmask_b32 v{SEL+2}, 0, v{T+2}, s[22:23]
  v_mul_u32_u24 v{VT}, v{T}, v{T}
  v_mul_u32_u24 v{VT}, 11, v{VT}
  v_bfe_u32 v{VT}, v{VT}, 3, 4
  v_lshrrev_b32 v{T+1}, 4, v3
  v_lshlrev_b32 v{T+1}, 4, v{T+1}
  v_lshl_add_u32 v{T+1}, v{T}, 5, v{T+1}
  s_lshl_b32 s26, s14, 9
  v_add_u32 v{T+1}, s26, v{T+1}
  s_mov_b32 s25, 0xffff0000
  v_lshlrev_b32 v3, 2, v3
  s_mov_b32 s24, {a.maxpoll}""")
C(f"v3 = 4*lane. Waves 0,1 publish channel c = 64w + lane: v2 = its LDS address in a wave row (4c + 4(c/3)),\n"
  f"v{VI} = its inbox address (3*(id/64) + c/32)*16384 + (id%64)*128 + (c%32)*4")
E(f"""  s_lshl_b32 s18, s14, 8
  v_add_u32 v{VI}, s18, v3
  v_mul_u32_u24 v2, 171, v{VI}
  v_lshrrev_b32 v2, 11, v2
  v_lshl_add_u32 v2, v2, 2, v{VI}
  v_and_b32 v{VA}, 0x7c, v{VI}
  v_lshrrev_b32 v{VI}, 7, v{VI}
  v_lshlrev_b32 v{VI}, 14, v{VI}
""".rstrip())
if a.hg:
    E(f"""  s_bfe_u32 s18, s2, 0x10002
  s_lshl_b32 s18, s18, 1
  s_lshr_b32 s19, s2, 7
  s_add_u32 s18, s18, s19
  s_mul_i32 s18, s18, 49152
  s_bfe_u32 s19, s2, 0x40003
  s_lshl_b32 s19, s19, 9
  s_add_u32 s18, s18, s19
  s_and_b32 s19, s2, 3
  s_lshl_b32 s19, s19, 7
  s_add_u32 s18, s18, s19""")
else:
    E(f"""  s_lshr_b32 s18, s2, 6
  s_mul_i32 s18, s18, 49152
  s_and_b32 s19, s2, 63
  s_lshl_b32 s19, s19, 7
  s_add_u32 s18, s18, s19""")
E(f"  v_add3_u32 v{VI}, v{VI}, v{VA}, s18")
C(f"owner role s28 = id - {a.ob} (owner iff < 12): v{VA} = the four inbox lines of this wave, s29 = its final line")
E(f"  s_sub_u32 s28, s2, {a.ob}")
if a.hg:
    assert a.ob % 8 == 0
    E(f"""  s_bfe_u32 s18, s28, 0x10002
  s_mul_i32 s18, s18, 6
  s_and_b32 s19, s28, 3
  s_lshr_b32 s20, s28, 3
  s_lshl_b32 s20, s20, 2
  s_add_u32 s19, s19, s20
  s_add_u32 s28, s18, s19
  s_cmp_lt_u32 s19, 6
  s_cselect_b32 s28, s28, {NO}""")
E(f"""  s_lshl_b32 s20, s28, 14
  s_lshl_b32 s21, s14, 9
  s_add_u32 s20, s20, s21
  v_add_u32 v{VA}, s20, v3
  s_lshl_b32 s21, s14, 7
  v_add_u32 v{VB}, s21, v3
  s_lshl_b32 s29, s28, 7
  s_add_u32 s29, s29, {FIN}""")
for i in range(NL):
    E(f"  s_waitcnt vmcnt({NL-1-i})")
    c = "0" if i == 0 else f"v[{ACC}:{ACC+3}]"
    E(f"  v_mfma_f32_16x16x32_bf16 v[{ACC}:{ACC+3}], v[{SEL}:{SEL+3}], v[{D+4*i}:{D+4*i+3}], {c}")
if not a.fine: stamp(2)
E(f"""  s_waitcnt lgkmcnt(0)
  s_add_u32 s15, s15, 1
  s_and_b32 s27, s15, 15
  v_xor_b32 v{VT}, s27, v{VT}
  s_nop 2
  s_mov_b32 exec_hi, 0
  ds_write_b128 v{T+1}, v[{ACC}:{ACC+3}] offset:{LA}
  s_mov_b32 exec_hi, -1""")
C(f"wave {a.fw} counts the probe pairs: which address bit 13 is near for this XCC half -> LDS word (0 or 0x2000)")
E(f"""  s_cmp_lg_u32 s14, {a.fw}
  s_cbranch_scc1 L_nocount
  v_and_b32 v{T+2}, 4, v3
  v_sub_u32 v{VY}, v3, v{T+2}
  v_lshlrev_b32 v{VY}, 4, v{VY}
  v_lshl_add_u32 v{VY}, v{T+2}, 1, v{VY}
  v_add_u32 v{VY}, {VOT}, v{VY}""")
if a.nv < 32: E(f"  s_mov_b64 exec, {hex((1 << (2*a.nv)) - 1)}" if a.nv < 16 else "  s_mov_b32 exec_hi, 0")
E(f"""  {'v_mov_b64 v[%d:%d], 0' % (T+4, T+5) if 'l' in a.skip else 'global_load_dwordx2 v[%d:%d], v%d, s[12:13] %s' % (T+4, T+5, VY, PL)}
  s_lshr_b32 s19, s31, 2
  v_mov_b32 v{T+3}, {LF}
  s_waitcnt vmcnt(0)
  v_xor_b32 v{VX}, s27, v{T+4}
  v_xor_b32 v{VY}, s27, v{T+5}
  v_or_b32 v{T+2}, v{VX}, v{VY}
  v_and_b32 v{T+2}, 15, v{T+2}
  v_cmp_eq_u32 s[20:21], 0, v{T+2}
  v_cmp_lt_u32 vcc, v{VY}, v{VX}
  v_and_b32 v{T+2}, 16, v{VX}
  v_cmp_ne_u32 s[22:23], 0, v{T+2}
  s_xor_b64 vcc, vcc, s[22:23]
  s_and_b64 vcc, vcc, s[20:21]
  s_bcnt1_i32_b64 s18, vcc
  s_bcnt1_i32_b64 s20, s[20:21]""")
if a.stamp: E("  s_lshl_b32 s24, s20, 8\n  s_or_b32 s24, s24, s18")
E("""  s_lshl_b32 s18, s18, 1
  s_cmp_gt_u32 s18, s20
  s_cselect_b32 s18, 1, 0""")
if a.side != "auto": E(f"  s_mov_b32 s18, {a.side}")
E(f"""  s_xor_b32 s18, s18, s19
  s_lshl_b32 s18, s18, 13
  v_mov_b32 v{T+2}, s18
  s_mov_b64 exec, -1
  ds_write_b32 v{T+3}, v{T+2}
L_nocount:""")
if a.cpf >= 0:
    C(f"wave {a.cpf} is done early and pulls the rest of the code into the L2")
    E(f"""  s_cmp_lg_u32 s14, {a.cpf}
  s_cbranch_scc1 L_nocpf
  s_getpc_b64 s[60:61]
L_pc:
  v_lshlrev_b32 v126, 4, v3
  v_min_u32 v126, L_end-L_pc, v126
  global_load_dword v126, v126, s[60:61]
L_nocpf:""")
E(f"""  v_mov_b32 v{VX}, {LF}
  s_waitcnt lgkmcnt(0)
  s_barrier""")
stamp(3)
C("hop 1: waves 0,1 add the 16 wave rows and send them to both inbox copies, 16 bytes per lane")
E("  s_cmp_ge_u32 s14, 2\n  s_cbranch_scc1 L_nopub\n  s_setprio 3")
for k in range(8):
    E(f"  ds_read2st64_b32 v[{P+2*k}:{P+2*k+1}], v2 offset0:{4*k} offset1:{4*k+2}")
E(f"  s_cmp_eq_u32 s14, 0\n  s_cselect_b32 s18, 0x11111111, 0\n  v_xor_b32 v{VY}, 0x2000, v{VI}")
def tree(n):
    def pk(d, s): E(f"  v_pk_add_f32 v[{P+2*d}:{P+2*d+1}], v[{P+2*d}:{P+2*d+1}], v[{P+2*s}:{P+2*s+1}]")
    for k in range(0, n - 1, 2):
        E(f"  s_waitcnt lgkmcnt({n-2-k})"); pk(k, k + 1)
        if k == 2: pk(0, 2)
        if k == 6: pk(4, 6); pk(0, 4)
    E(f"  v_add_f32 v{P}, v{P}, v{P+1}")
def gather4():
    E(f"  v_and_or_b32 v{P}, v{P}, -16, v{VT}\n  s_nop 1")
    for j in (1, 2, 3):
        E(f"  v_mov_b32_dpp v{P+j}, v{P} quad_perm:[{j},{j},{j},{j}] row_mask:0xf bank_mask:0xf")
tree(8)
gather4()
E("  s_mov_b32 exec_lo, 0x11111111\n  s_mov_b32 exec_hi, s18")
fine(1)
E(f"""  global_store_dwordx4 v{VI}, v[{P}:{P+3}], s[12:13] {SY}
  global_store_dwordx4 v{VY}, v[{P}:{P+3}], s[12:13] {SY}
  s_mov_b64 exec, -1
L_nopub:
  ds_read_b32 v{VX}, v{VX} offset:0
  s_cmp_ge_u32 s28, {NO}
  s_cbranch_scc1 L_notown
  s_waitcnt lgkmcnt(0)
  v_add_u32 v{VA}, v{VA}, v{VX}""")
def check(q, n, younger):
    for k in range(n):
        E(f"  s_waitcnt vmcnt({younger + n-1-k})")
        E(f"  v_xor_b32 v{q+k}, v{VT}, v{q+k}")
        if k == 1: E(f"  v_or_b32 v{M}, v{q}, v{q+1}\n  v_add_f32 v{P}, v{q}, v{q+1}")
        elif k > 1: E(f"  v_or_b32 v{M}, v{M}, v{q+k}\n  v_add_f32 v{P}, v{P}, v{q+k}")
    E(f"  v_and_b32 v{M}, 15, v{M}\n  v_cmp_ne_u32 vcc, 0, v{M}")
C("owners: every wave polls four lines (two per load), two rounds in flight; the trip count is bounded")
def issue1(r):
    for k in range(2): E(f"  global_load_dword v{Q+2*r+k}, v{VA}, s[12:13] offset:{256*k} {PL}")
if a.d1 == 2:
    issue1(0)
    E("L_own:")
    for r in range(2):
        issue1(1 - r); check(Q + 2*r, 2, 2)
        E(f"  v_mov_b32 v{P+1}, v{P}\n  s_sub_u32 s24, s24, 1\n  s_cbranch_scc1 L_own_ok\n  s_cbranch_vccz L_own_ok")
else:
    E("L_own:")
    issue1(0); check(Q, 2, 0)
    E(f"  v_mov_b32 v{P+1}, v{P}\n  s_sub_u32 s24, s24, 1\n  s_cbranch_scc1 L_own_ok\n  s_cbranch_vccz L_own_ok")
E("  s_branch L_own\nL_own_ok:")
if a.fine: E("  s_cmp_lt_u32 s14, 2\n  s_cbranch_scc1 L_f1"); stamp(1); E("L_f1:")
E(f"""  v_permlane32_swap_b32 v{P}, v{P+1}
  s_mov_b32 exec_hi, 0
  v_add_f32 v{P}, v{P}, v{P+1}
  ds_write_b32 v{VB}, v{P} offset:{LB}
  s_mov_b32 exec_hi, -1
  s_movk_i32 s18, {LB}
  v_and_b32 v{VA}, 0x80, v3
  v_mul_u32_u24 v{VA}, 7, v{VA}
  v_add3_u32 v{VA}, v{VA}, v3, s18
  v_lshrrev_b32 v{VB}, 7, v3
  v_mul_u32_u24 v{VB}, {XS-128}, v{VB}
  v_add3_u32 v{VB}, v{VB}, v3, s29
  s_waitcnt lgkmcnt(0)
  s_barrier
  s_cmp_lg_u32 s14, 0
  s_cbranch_scc1 L_notown""")
C("hop 2: wave 0 adds the 16 wave rows and writes the line to eight copies (one per XCC, four on either side)")
for k in range(4):
    E(f"  ds_read2_b32 v[{P+2*k}:{P+2*k+1}], v{VA} offset0:{64*k} offset1:{64*k+32}")
E(f"  v_add_u32 v{VY}, 0x2000, v{VB}")
tree(4)
E(f"""  v_mov_b32 v{P+1}, v{P}
  s_nop 1
  v_permlane32_swap_b32 v{P}, v{P+1}
  v_add_f32 v{P}, v{P}, v{P+1}""")
gather4()
E(f"""  s_mov_b32 exec_lo, 0x11111111
  s_mov_b32 exec_hi, 0x11111111
  global_store_dwordx4 v{VB}, v[{P}:{P+3}], s[12:13] {SY}
  global_store_dwordx4 v{VY}, v[{P}:{P+3}], s[12:13] {SY}
  global_store_dwordx4 v{VB}, v[{P}:{P+3}], s[12:13] offset:{2*XS} {SY}
  global_store_dwordx4 v{VY}, v[{P}:{P+3}], s[12:13] offset:{2*XS} {SY}
  s_mov_b64 exec, -1""")
fine(2)
E("L_notown:")
C("bf16 -> f32 while the sums travel")
for i in range(NL):
    for d in range(3):
        E(f"  v_lshlrev_b32 v{U+6*i+2*d}, 16, v{D+4*i+d}")
        E(f"  v_and_b32 v{U+6*i+2*d+1}, s25, v{D+4*i+d}")
C("gate: wave 0 holds channels 0..63 and writes the scales 0..47, wave 1 holds 32..95 and writes 48..95")
E(f"""  s_cmp_ge_u32 s14, 2
  s_cbranch_scc1 L_wait
  s_and_b32 s31, s31, 3
  s_mul_i32 s31, s31, {XS}
  s_lshl_b32 s22, s14, 7
  s_add_u32 s23, s22, {FIN}
  s_add_u32 s23, s23, s31
  s_waitcnt lgkmcnt(0)
  v_add3_u32 v{VA}, v{VX}, v3, s23
  s_add_u32 s23, s22, {LS}
  v_add_u32 v{VB}, s23, v3
  s_lshl_b32 s18, s16, 16
  s_and_b32 s19, s16, 0xffff0000
  s_lshl_b32 s20, s17, 16
  s_mov_b32 s21, {f2u(1.0/147456.0)}
  s_cmp_eq_u32 s14, 0
  s_cselect_b32 s22, -1, 0xffff0000
  s_cselect_b32 s23, 0xffff, -1
  s_mov_b32 s30, {a.maxpoll}""")
def issue2(q):
    for k in range(NG): E(f"  global_load_dword v{q+k}, v{VA}, s[12:13] offset:{384*k} {PL}")
if a.d2 == 1:
    E("L_poll:")
    issue2(Q + 4); check(Q + 4, NG, 0)
    E("  s_sub_u32 s30, s30, 1\n  s_cbranch_scc1 L_poll_ok\n  s_cbranch_vccz L_poll_ok\n  s_branch L_poll\nL_poll_ok:")
else:
    issue2(Q + 4)
    E("  s_sleep 1\nL_poll:")
    for r in range(2):
        issue2(Q + 4*r); check(Q + 4 - 4*r, NG, NG)
        E("  s_sub_u32 s30, s30, 1\n  s_cbranch_scc1 L_poll_ok\n  s_cbranch_vccz L_poll_ok\n  s_sleep 1")
    E("  s_branch L_poll\nL_poll_ok:")

stamp(4)
C("v_cvt_pk_bf16_f32 d, 0, x  =  x rounded to bf16, kept as an f32")
emit_gate2(E, P, P+2)
E(f"""  s_mov_b64 exec, s[22:23]
  ds_write_b32 v{VB}, v{P}
  s_setprio 0""")
C("every workgroup has published, so every wave has read the epoch: workgroup 0 advances it")
E(f"""  s_or_b32 s18, s2, s14
  s_cmp_lg_u32 s18, 0
  s_cbranch_scc1 L_noepo
  s_mov_b64 exec, 1
  v_mov_b32 v{VA}, {EPO}
  v_mov_b32 v{VY}, s15
  global_store_dword v{VA}, v{VY}, s[12:13] {SY}
L_noepo:
  s_mov_b64 exec, -1
L_wait:
  v_and_b32 v3, 60, v3
  v_mul_u32_u24 v3, 6, v3
  s_waitcnt lgkmcnt(0)
  s_barrier""")
stamp(5)
for j in range(3):
    E(f"  ds_read_b64 v[{S+2*j}:{S+2*j+1}], v3 offset:{LS+8*j}")
E("  s_waitcnt lgkmcnt(0)")
for i in range(NL):
    src = U + 6*i
    for d in range(3):
        E(f"  v_pk_mul_f32 v[{src+2*d}:{src+2*d+1}], v[{src+2*d}:{src+2*d+1}], v[{S+2*d}:{S+2*d+1}]")
    for d in range(3):
        E(f"  v_cvt_pk_bf16_f32 v{D+4*i+d}, v{src+2*d}, v{src+2*d+1}")
    if a.col < 4:
        rowaddr(i, 52, 8)
        E(f"  global_store_dwordx3 v1, v[{D+4*i}:{D+4*i+2}], s[52:53] {a.st}")
    else:
        E(f"  global_store_dwordx3 v1, v[{D+4*i}:{D+4*i+2}], s[8:9] {a.st}")
        if i < NL - 1: E(f"  s_add_u32 s8, s8, {STEP}\n  s_addc_u32 s9, s9, 0")
if a.stamp:
    if not a.fine: stamp(6)
    E("  s_waitcnt vmcnt(0)")
    E("  s_barrier")
    stamp(7)
    E(f"  v_readfirstlane_b32 s27, v{VX}")
    emit_stamp_dump(E, a, cnt="s24")
if a.sig:
    E(f"""  s_waitcnt vmcnt(0)
  s_barrier
  s_or_b32 s18, s2, s14
  s_cmp_lg_u32 s18, 0
  s_cbranch_scc1 L_end
  s_load_dwordx4 s[4:7], s[0:1], 0
  s_load_dwordx4 s[8:11], s[0:1], 16
  s_mov_b32 s18, 3000
L_q:
  s_sleep 8
  s_sub_u32 s18, s18, 1
  s_cmp_gt_u32 s18, 2950
  s_cbranch_scc1 L_q
  s_waitcnt lgkmcnt(0)""")
    def sweep(tag, base, npages, out):
        E(f"""  s_mov_b32 {out}, 0
  s_mov_b32 s40, 0
L_pg{tag}:
  s_lshl_b32 s41, s40, 21
  s_add_u32 s41, s41, 0x40000
  s_mov_b32 s42, 0
  s_mov_b32 s43, 0
  s_mov_b32 s44, 0
L_sm{tag}:
  s_lshl_b32 s45, s44, 14
  s_add_u32 s45, s45, s41
  s_add_u32 s46, s45, 0x2000
  s_memtime s[20:21]
  s_waitcnt lgkmcnt(0)
  s_load_dword s19, {base}, s45
  s_waitcnt lgkmcnt(0)
  s_memtime s[22:23]
  s_waitcnt lgkmcnt(0)
  s_load_dword s19, {base}, s46
  s_waitcnt lgkmcnt(0)
  s_memtime s[48:49]
  s_waitcnt lgkmcnt(0)
  s_sub_u32 s18, s22, s20
  s_sub_u32 s19, s48, s22
  s_cmp_lt_u32 s19, s18
  s_cselect_b32 s18, 1, 0
  s_cmp_eq_u32 s44, 0
  s_cselect_b32 s18, 0, s18
  s_add_u32 s42, s42, s18
  s_add_u32 s44, s44, 1
  s_cmp_lt_u32 s44, 8
  s_cbranch_scc1 L_sm{tag}
  s_cmp_ge_u32 s42, 4
  s_cselect_b32 s18, 1, 0
  s_lshl_b32 s18, s18, s40
  s_or_b32 {out}, {out}, s18
  s_add_u32 s40, s40, 1
  s_cmp_lt_u32 s40, {npages}
  s_cbranch_scc1 L_pg{tag}""")
    sweep("x", "s[4:5]", 13, "s50"); sweep("o", "s[8:9]", 13, "s51"); sweep("w", "s[12:13]", 13, "s52")
    E(f"""  s_getreg_b32 s53, hwreg(HW_REG_XCC_ID, 0, 3)
  s_mov_b64 exec, 1
  v_mov_b32 v4, s53
  v_mov_b32 v5, s50
  v_mov_b32 v6, s51
  v_mov_b32 v7, s52
  v_mov_b32 v8, s4
  v_mov_b32 v9, s8
  v_mov_b32 v10, s12
  v_mov_b32 v11, 0
  v_mov_b32 v1, 0
  global_store_dwordx4 v1, v[4:7], s[10:11]
  global_store_dwordx4 v1, v[8:11], s[10:11] offset:16""")
E("L_end:\n  s_endpgm")
E(kd(KN, 128, 72 if (a.stamp or a.col < 4 or a.sig or a.cpf >= 0) else 32))
open(a.o, "w").write("\n".join(o) + "\n")
print(build(a.o))
```

```python
import sys, argparse
from asmlib import *
from common import *
ap = argparse.ArgumentParser()
ap.add_argument("-o", default="v12.s")
ap.add_argument("--ob", type=int, default=16)
ap.add_argument("--nv", type=int, default=32)
ap.add_argument("--vb", type=int, default=32)
ap.add_argument("--pw", type=int, default=12)
ap.add_argument("--fw", type=int, default=11)
ap.add_argument("--side", default="auto")
ap.add_argument("--stamp", action="store_true")
ap.add_argument("--allw", action="store_true")
ap.add_argument("--fine", action="store_true")
ap.add_argument("--exf", default="")
ap.add_argument("--xw", type=int, default=0)
ap.add_argument("--ld", default="nt")
ap.add_argument("--st", default="sc1")
ap.add_argument("--cpf", type=int, default=-1)
ap.add_argument("--d1", type=int, default=2)
ap.add_argument("--vprio", type=int, default=3)
ap.add_argument("--maxpoll", type=int, default=1 << 20)
ap.add_argument("--skip", default="")
ap.add_argument("--x2", type=int, default=1)
ap.add_argument("--hg", type=int, default=0)
ap.add_argument("--d2", type=int, default=1)
ap.add_argument("--sig", type=int, default=0)
ap.add_argument("--col", type=int, default=4)
ap.add_argument("--csig", type=int, default=0)
ap.add_argument("--nf", type=int, default=0)
ap.add_argument("--jit", type=int, default=0)
ap.add_argument("--ool", type=int, default=1)
ap.add_argument("--cm", type=int, default=1)
a = ap.parse_args()
if a.exf or a.allw: a.stamp = True
if a.stamp: a.maxpoll = 200000
o = []; E = o.append
def C(t):
    if a.cm:
        for l in t.strip("\n").split("\n"): E("  ; " + l.strip())
def stamp(k):
    if a.stamp: E(f"  s_memrealtime s[{32+2*k}:{33+2*k}]")
JN = [0]
def jit():
    if not a.jit: return
    n = JN[0]; JN[0] += 1
    E(f"""  s_memtime s[52:53]
  s_waitcnt lgkmcnt(0)
  s_mul_i32 s54, s2, 0x9e3779b1
  s_mul_i32 s55, s14, 0x85ebca6b
  s_xor_b32 s54, s54, s55
  s_xor_b32 s54, s54, s52
  s_mul_i32 s54, s54, 0xc2b2ae35
  s_lshr_b32 s55, s54, 30
  s_cmp_lg_u32 s55, 0
  s_cbranch_scc1 L_jit{n}
  s_bfe_u32 s54, s54, 0x50010
L_jl{n}:
  s_sleep 7
  s_sub_u32 s54, s54, 1
  s_cbranch_scc0 L_jl{n}
L_jit{n}:""")
def fine(k):
    if a.fine: stamp(k)
NW = 16; NL = 9; NG = 4; NO = 12
LA = 0; LB = 8192; LS = 10240; LF = LS + 384; LDS = LS + 512
FIN = 0x30000; XS = 1536; EPO = 0x34000; VOT = 0x35000; PRB = 0x38000
STEP = 786432
D = 4; U = 40; P = 94
SEL = P; ACC = P + 4; T = P + 8; S = P + 8; Q = P + 16
VI, VA, VB, VX, VY, VT = P + 24, P + 25, P + 26, P + 27, P + 28, P + 29
M = D + 3
SY = PL = "sc1"
TOP = f"""{HEADER}; @launch grid=(256,1,1) block=(1024,1,1) lds={LDS}
;
;
"""
E(TOP + f""".amdgcn_target "amdgcn-amd-amdhsa--gfx950"
.text
.globl {KN}
.p2align 8
.type {KN},@function
{KN}:""")
COLSET = ""
if a.col < 4:
    COLSET = f"""  s_lshr_b32 s18, s2, 3
  s_lshl_b32 s18, s18, 2
  s_and_b32 s19, s2, 3
  s_add_u32 s18, s18, s19
  s_lshl_b32 s18, s18, 2
  s_and_b32 s19, s14, 3
  s_add_u32 s18, s18, s19
  s_lshr_b32 s19, s18, 5
  s_mul_i32 s57, s19, 49152
  s_and_b32 s18, s18, 31
  s_add_u32 s62, s18, 21
  s_add_u32 s19, s18, 10
  s_cmp_lt_u32 s18, 22
  s_cselect_b32 s62, s19, s62
  s_cmp_lt_u32 s18, 11
  s_cselect_b32 s62, s18, s62
  s_add_u32 s63, s18, 32
  s_add_u32 s19, s18, 22
  s_cmp_lt_u32 s18, 21
  s_cselect_b32 s63, s19, s63
  s_add_u32 s19, s18, 11
  s_cmp_lt_u32 s18, 10
  s_cselect_b32 s63, s19, s63
  s_mul_i32 s62, s62, 768
  s_mul_i32 s63, s63, 768
  s_lshr_b32 s19, s14, 2
  s_mul_i32 s59, s19, {NL*STEP}
  s_add_u32 s59, s59, s57
  s_bfe_u32 s58, s2, 0x10002
  s_xor_b32 s58, s58, {a.csig}
  s_cmp_ge_u32 s19, {a.col}
  s_cselect_b32 s56, 0, 1
  s_cselect_b32 s59, s59, 0
  s_cselect_b32 s62, s62, s3
  s_cselect_b32 s63, s63, s3
  s_cbranch_scc1 L_colset
  s_mov_b32 s59, 0
L_colset:
  v_mov_b32 v1, v0
"""
def rowaddr(i, dst, base):
    E(f"""  s_add_u32 s54, s59, {i*STEP}
  s_bfe_u32 s55, s54, 0x10015
  s_cmp_lg_u32 s55, s58
  s_cselect_b32 s55, s63, s62
  s_add_u32 s54, s54, s55
  s_add_u32 s{dst}, s{base}, s54
  s_addc_u32 s{dst+1}, s{base+1}, 0""")
stamp(0)
C("s2 = workgroup, s14 = wave, v3 = lane, v0 = 12*lane, v1 = byte offset of this lane's first row piece\n"
  "row r of wave w: offset (w/4)*9*STEP + r*STEP + ((id%8)*32 + id/8)*3072 + (w%4)*768 + 12*lane, STEP = 786432")
E(f"""  s_cmp_ge_u32 s2, 256
  s_cbranch_scc1 L_end
  s_load_dwordx4 s[4:7], s[0:1], 0
  s_load_dwordx4 s[8:11], s[0:1], 16
  s_load_dwordx2 s[12:13], s[0:1], 32
  v_lshrrev_b32 v2, 6, v0
  v_and_b32 v3, 63, v0
  v_readfirstlane_b32 s14, v2
  v_mul_u32_u24 v0, 12, v3
  s_and_b32 s3, s2, 7
  s_lshl_b32 s3, s3, 5
  s_lshr_b32 s15, s2, 3
  s_add_u32 s3, s3, s15
  s_lshl_b32 s3, s3, 2
  s_and_b32 s15, s14, 3
  s_add_u32 s3, s3, s15
  s_mul_i32 s3, s3, 768
  s_lshr_b32 s15, s14, 2
  s_mul_i32 s15, s15, {NL*STEP}
  s_add_u32 s3, s3, s15
  v_add_u32 v1, s3, v0
""".rstrip())
def probe_body():
    C(f"waves {a.pw}..{a.pw+3} of {a.nv} workgroups could not issue their rows yet anyway: each times one scalar load of an\n"
      "untouched line (address bit 13 = wave parity) and reports (cycles << 5 | XCC half << 4 | tag)")
    E(f"""  s_getreg_b32 s31, hwreg(HW_REG_XCC_ID, 0, 3)
  s_load_dword s15, s[12:13], {EPO}
  s_lshl_b32 s28, s28, 2
  s_add_u32 s28, s28, s29
  s_lshr_b32 s18, s28, 3
  s_lshl_b32 s18, s18, 7
  s_and_b32 s19, s28, 1
  s_lshl_b32 s19, s19, 13
  s_add_u32 s18, s18, s19
  s_and_b32 s19, s28, 2
  s_lshl_b32 s19, s19, 11
  s_add_u32 s18, s18, s19
  s_and_b32 s19, s28, 4
  s_lshl_b32 s19, s19, 12
  s_add_u32 s18, s18, s19
  s_add_u32 s18, s18, {PRB}
  s_lshr_b32 s19, s28, 2
  s_lshl_b32 s19, s19, 7
  s_lshl_b32 s29, s29, 2
  s_add_u32 s29, s29, s19
  s_add_u32 s29, s29, {VOT}
  s_waitcnt lgkmcnt(0)
  s_memtime s[20:21]
  s_waitcnt lgkmcnt(0)
  s_load_dword s19, s[12:13], s18
  s_waitcnt lgkmcnt(0)
  s_memtime s[22:23]
  s_add_u32 s15, s15, 1
  s_and_b32 s15, s15, 15
  s_lshr_b32 s19, s31, 2
  s_lshl_b32 s19, s19, 4
  s_or_b32 s15, s15, s19
  v_mov_b32 v{T}, s29
  s_waitcnt lgkmcnt(0)
  s_sub_u32 s18, s22, s20
  s_min_u32 s18, s18, 0xfffff
  s_lshl_b32 s18, s18, 5
  s_or_b32 s18, s18, s15
  v_mov_b32 v{T+1}, s18
  s_mov_b64 exec, 1""")
    if a.vprio: E(f"  s_setprio {a.vprio}")
    E(f"  global_store_dword v{T}, v{T+1}, s[12:13] {SY}")
    if a.vprio: E("  s_setprio 0")
    E("  s_mov_b64 exec, -1")
    if a.fine: stamp(6)
PTEST = f"""  s_sub_u32 s28, s2, {a.vb}
  s_sub_u32 s29, s14, {a.pw}
  s_lshr_b32 s18, s28, {a.nv.bit_length()-1}
  s_lshr_b32 s19, s29, 2
  s_or_b32 s18, s18, s19"""
def probe_block():
    E("L_probe:\n" + PTEST + "\n  s_cbranch_scc1 L_noprobe")
    probe_body()
    E("  s_branch L_noprobe")
if a.ool:
    E(f"""{COLSET}  s_cmp_ge_u32 s14, {a.pw}
  s_waitcnt lgkmcnt(0)""")
    if 'p' not in a.skip: E("  s_cbranch_scc1 L_probe")
else:
    E(f"""{COLSET}{PTEST}
  s_waitcnt lgkmcnt(0)
  {'s_branch' if 'p' in a.skip else 's_cbranch_scc1'} L_noprobe""")
    probe_body()
E("L_noprobe:")
jit()
for i in range(NL):
    if a.col < 4:
        rowaddr(i, 52, 4)
        E(f"  global_load_dwordx3 v[{D+4*i}:{D+4*i+2}], v1, s[52:53] {a.ld}")
    else:
        E(f"  global_load_dwordx3 v[{D+4*i}:{D+4*i+2}], v1, s[4:5] {a.ld}")
        if i < NL - 1: E(f"  s_add_u32 s4, s4, {STEP}\n  s_addc_u32 s5, s5, 0")
    if i == 0:
        E(f"  s_load_dword s15, s[12:13], {EPO}")
        E("  s_load_dwordx2 s[16:17], s[6:7], 0")
if a.ool == 2:
    E("  s_branch L_rows")
    probe_block()
    E("L_rows:")
if not a.fine: stamp(1)
C("a row is 3 registers + a zero register = the B operand (32 x 16) of one MFMA: column n = lane%16 holds channels 6n..6n+5")
for i in range(NL):
    E(f"  v_mov_b32 v{D+4*i+3}, 0")
C("selector (A operand): rows 0..2 pick elements 0..2, rows 4..6 pick elements 3..5, so lane 16G+n gets channels 6n+3G..+2")
E(f"""  v_and_b32 v{T}, 15, v3
  v_lshrrev_b32 v{T+1}, 2, v{T}
  v_sub_u32 v{T+1}, v{T}, v{T+1}
  v_and_b32 v{T+2}, 3, v{T}
  v_cmp_ne_u32 s[18:19], 3, v{T+2}
  v_cmp_gt_u32 s[20:21], 8, v{T}
  v_and_b32 v{T+2}, 1, v{T+1}
  v_lshlrev_b32 v{T+2}, 4, v{T+2}
  s_and_b64 s[18:19], s[18:19], s[20:21]
  v_mov_b32 v{T+3}, 0x3f80
  v_lshlrev_b32 v{T+2}, v{T+2}, v{T+3}
  v_lshrrev_b32 v{T+1}, 1, v{T+1}
  v_cndmask_b32 v{T+2}, 0, v{T+2}, s[18:19]
  v_cmp_eq_u32 s[18:19], 0, v{T+1}
  v_cmp_eq_u32 s[20:21], 1, v{T+1}
  v_cmp_eq_u32 s[22:23], 2, v{T+1}
  v_mov_b32 v{SEL+3}, 0
  v_cndmask_b32 v{SEL}, 0, v{T+2}, s[18:19]
  v_cndmask_b32 v{SEL+1}, 0, v{T+2}, s[20:21]
  v_cndmask_b32 v{SEL+2}, 0, v{T+2}, s[22:23]
  v_mul_u32_u24 v{VT}, v{T}, v{T}
  v_mul_u32_u24 v{VT}, 11, v{VT}
  v_bfe_u32 v{VT}, v{VT}, 3, 4
  v_lshrrev_b32 v{T+1}, 4, v3
  v_lshlrev_b32 v{T+1}, 4, v{T+1}
  v_lshl_add_u32 v{T+1}, v{T}, 5, v{T+1}
  s_lshl_b32 s26, s14, 9
  v_add_u32 v{T+1}, s26, v{T+1}
  s_mov_b32 s25, 0xffff0000
  v_lshlrev_b32 v3, 2, v3
  s_mov_b32 s24, {a.maxpoll}
  s_getreg_b32 s31, hwreg(HW_REG_XCC_ID, 0, 3)""")
C(f"v3 = 4*lane. Waves 0,1 publish channel c = 64w + lane: v2 = its LDS address in a wave row (4c + 4(c/3)),\n"
  f"v{VI} = its inbox address (3*(id/64) + c/32)*16384 + (id%64)*128 + (c%32)*4")
E(f"""  s_lshl_b32 s18, s14, 8
  v_add_u32 v{VI}, s18, v3
  v_mul_u32_u24 v2, 171, v{VI}
  v_lshrrev_b32 v2, 11, v2
  v_lshl_add_u32 v2, v2, 2, v{VI}
  v_and_b32 v{VA}, 0x7c, v{VI}
  v_lshrrev_b32 v{VI}, 7, v{VI}
  v_lshlrev_b32 v{VI}, 14, v{VI}
""".rstrip())
if a.hg:
    E(f"""  s_bfe_u32 s18, s2, 0x10002
  s_lshl_b32 s18, s18, 1
  s_lshr_b32 s19, s2, 7
  s_add_u32 s18, s18, s19
  s_mul_i32 s18, s18, 49152
  s_bfe_u32 s19, s2, 0x40003
  s_lshl_b32 s19, s19, 9
  s_add_u32 s18, s18, s19
  s_and_b32 s19, s2, 3
  s_lshl_b32 s19, s19, 7
  s_add_u32 s18, s18, s19""")
else:
    E(f"""  s_lshr_b32 s18, s2, 6
  s_mul_i32 s18, s18, 49152
  s_and_b32 s19, s2, 63
  s_lshl_b32 s19, s19, 7
  s_add_u32 s18, s18, s19""")
E(f"  v_add3_u32 v{VI}, v{VI}, v{VA}, s18")
C(f"owner role s28 = id - {a.ob} (owner iff < 12): v{VA} = the four inbox lines of this wave, s29 = its final line")
E(f"  s_sub_u32 s28, s2, {a.ob}")
if a.hg:
    assert a.ob % 8 == 0
    E(f"""  s_bfe_u32 s18, s28, 0x10002
  s_mul_i32 s18, s18, 6
  s_and_b32 s19, s28, 3
  s_lshr_b32 s20, s28, 3
  s_lshl_b32 s20, s20, 2
  s_add_u32 s19, s19, s20
  s_add_u32 s28, s18, s19
  s_cmp_lt_u32 s19, 6
  s_cselect_b32 s28, s28, {NO}""")
E(f"""  s_lshl_b32 s20, s28, 14
  s_lshl_b32 s21, s14, 9
  s_add_u32 s20, s20, s21
  v_add_u32 v{VA}, s20, v3
  s_lshl_b32 s21, s14, 7
  v_add_u32 v{VB}, s21, v3
  s_lshl_b32 s29, s28, 7
  s_add_u32 s29, s29, {FIN}""")
for i in range(NL):
    E(f"  s_waitcnt vmcnt({NL-1-i})")
    c = "0" if i == 0 else f"v[{ACC}:{ACC+3}]"
    E(f"  v_mfma_f32_16x16x32_bf16 v[{ACC}:{ACC+3}], v[{SEL}:{SEL+3}], v[{D+4*i}:{D+4*i+3}], {c}")
if not a.fine: stamp(2)
E(f"""  s_waitcnt lgkmcnt(0)
  s_add_u32 s15, s15, 1
  s_and_b32 s27, s15, 15
  v_xor_b32 v{VT}, s27, v{VT}
  s_nop 2
  s_mov_b32 exec_hi, 0
  ds_write_b128 v{T+1}, v[{ACC}:{ACC+3}] offset:{LA}
  s_mov_b32 exec_hi, -1""")
jit()
C(f"wave {a.fw} counts the probe pairs: which address bit 13 is near for this XCC half -> LDS word (0 or 0x2000)")
E(f"""  s_cmp_lg_u32 s14, {a.fw}
  s_cbranch_scc1 L_nocount
  v_and_b32 v{T+2}, 4, v3
  v_sub_u32 v{VY}, v3, v{T+2}
  v_lshlrev_b32 v{VY}, 4, v{VY}
  v_lshl_add_u32 v{VY}, v{T+2}, 1, v{VY}
  v_add_u32 v{VY}, {VOT}, v{VY}""")
if a.nv < 32: E(f"  s_mov_b64 exec, {hex((1 << (2*a.nv)) - 1)}" if a.nv < 16 else "  s_mov_b32 exec_hi, 0")
E(f"""  {'v_mov_b64 v[%d:%d], 0' % (T+4, T+5) if 'l' in a.skip else 'global_load_dwordx2 v[%d:%d], v%d, s[12:13] %s' % (T+4, T+5, VY, PL)}
  s_lshr_b32 s19, s31, 2
  v_mov_b32 v{T+3}, {LF}
  s_waitcnt vmcnt(0)
  v_xor_b32 v{VX}, s27, v{T+4}
  v_xor_b32 v{VY}, s27, v{T+5}
  v_or_b32 v{T+2}, v{VX}, v{VY}
  v_and_b32 v{T+2}, 15, v{T+2}
  v_cmp_eq_u32 s[20:21], 0, v{T+2}
  v_cmp_lt_u32 vcc, v{VY}, v{VX}
  v_and_b32 v{T+2}, 16, v{VX}
  v_cmp_ne_u32 s[22:23], 0, v{T+2}
  s_xor_b64 vcc, vcc, s[22:23]
  s_and_b64 vcc, vcc, s[20:21]
  s_bcnt1_i32_b64 s18, vcc
  s_bcnt1_i32_b64 s20, s[20:21]""")
if a.stamp: E("  s_lshl_b32 s24, s20, 8\n  s_or_b32 s24, s24, s18")
E("""  s_lshl_b32 s18, s18, 1
  s_cmp_gt_u32 s18, s20
  s_cselect_b32 s18, 1, 0""")
if a.side != "auto": E(f"  s_mov_b32 s18, {a.side}")
E(f"""  s_xor_b32 s18, s18, s19
  s_lshl_b32 s18, s18, 13
  v_mov_b32 v{T+2}, s18
  s_mov_b64 exec, -1
  ds_write_b32 v{T+3}, v{T+2}
L_nocount:""")
if a.cpf >= 0:
    C(f"wave {a.cpf} is done early and pulls the rest of the code into the L2")
    E(f"""  s_cmp_lg_u32 s14, {a.cpf}
  s_cbranch_scc1 L_nocpf
  s_getpc_b64 s[60:61]
L_pc:
  v_lshlrev_b32 v126, 4, v3
  v_min_u32 v126, L_end-L_pc, v126
  global_load_dword v126, v126, s[60:61]
L_nocpf:""")
E(f"""  v_mov_b32 v{VX}, {LF}
  s_waitcnt lgkmcnt(0)
  s_barrier""")
stamp(3)
jit()
C("hop 1: waves 0,1 add the 16 wave rows and send them to both inbox copies, 16 bytes per lane")
E("  s_cmp_ge_u32 s14, 2\n  s_cbranch_scc1 L_nopub\n  s_setprio 3")
if a.nf: E(f"  ds_read_b32 v{VY}, v{VX}")
for k in range(8):
    E(f"  ds_read2st64_b32 v[{P+2*k}:{P+2*k+1}], v2 offset0:{4*k} offset1:{4*k+2}")
if a.nf:
    E(f"  s_cmp_eq_u32 s14, 0\n  s_cselect_b32 s18, 0x11111111, 0\n  s_waitcnt lgkmcnt(8)\n  v_add_u32 v{VI}, v{VI}, v{VY}\n  v_xor_b32 v{VY}, 0x2000, v{VI}")
else:
    E(f"  s_cmp_eq_u32 s14, 0\n  s_cselect_b32 s18, 0x11111111, 0\n  v_xor_b32 v{VY}, 0x2000, v{VI}")
def tree(n):
    def pk(d, s): E(f"  v_pk_add_f32 v[{P+2*d}:{P+2*d+1}], v[{P+2*d}:{P+2*d+1}], v[{P+2*s}:{P+2*s+1}]")
    for k in range(0, n - 1, 2):
        E(f"  s_waitcnt lgkmcnt({n-2-k})"); pk(k, k + 1)
        if k == 2: pk(0, 2)
        if k == 6: pk(4, 6); pk(0, 4)
    E(f"  v_add_f32 v{P}, v{P}, v{P+1}")
def gather4():
    E(f"  v_and_or_b32 v{P}, v{P}, -16, v{VT}\n  s_nop 1")
    for j in (1, 2, 3):
        E(f"  v_mov_b32_dpp v{P+j}, v{P} quad_perm:[{j},{j},{j},{j}] row_mask:0xf bank_mask:0xf")
tree(8)
gather4()
E("  s_mov_b32 exec_lo, 0x11111111\n  s_mov_b32 exec_hi, s18")
fine(1)
E(f"""  global_store_dwordx4 v{VI}, v[{P}:{P+3}], s[12:13] {SY}
  global_store_dwordx4 v{VY}, v[{P}:{P+3}], s[12:13] {SY}
  s_mov_b64 exec, -1
L_nopub:
  ds_read_b32 v{VX}, v{VX} offset:0
  s_cmp_ge_u32 s28, {NO}
  s_cbranch_scc1 L_notown
  s_waitcnt lgkmcnt(0)
  v_add_u32 v{VA}, v{VA}, v{VX}""")
def check(q, n, younger):
    for k in range(n):
        E(f"  s_waitcnt vmcnt({younger + n-1-k})")
        E(f"  v_xor_b32 v{q+k}, v{VT}, v{q+k}")
        if k == 1: E(f"  v_or_b32 v{M}, v{q}, v{q+1}\n  v_add_f32 v{P}, v{q}, v{q+1}")
        elif k > 1: E(f"  v_or_b32 v{M}, v{M}, v{q+k}\n  v_add_f32 v{P}, v{P}, v{q+k}")
    E(f"  v_and_b32 v{M}, 15, v{M}\n  v_cmp_ne_u32 vcc, 0, v{M}")
C("owners: every wave polls four lines (two per load), two rounds in flight; the trip count is bounded")
def issue1(r):
    for k in range(2): E(f"  global_load_dword v{Q+2*r+k}, v{VA}, s[12:13] offset:{256*k} {PL}")
if a.d1 == 2:
    issue1(0)
    E("L_own:")
    for r in range(2):
        issue1(1 - r); check(Q + 2*r, 2, 2)
        E(f"  v_mov_b32 v{P+1}, v{P}\n  s_sub_u32 s24, s24, 1\n  s_cbranch_scc1 L_own_ok\n  s_cbranch_vccz L_own_ok")
else:
    E("L_own:")
    issue1(0); check(Q, 2, 0)
    E(f"  v_mov_b32 v{P+1}, v{P}\n  s_sub_u32 s24, s24, 1\n  s_cbranch_scc1 L_own_ok\n  s_cbranch_vccz L_own_ok")
E("  s_branch L_own\nL_own_ok:")
if a.fine: E("  s_cmp_lt_u32 s14, 2\n  s_cbranch_scc1 L_f1"); stamp(1); E("L_f1:")
E(f"""  v_permlane32_swap_b32 v{P}, v{P+1}
  s_mov_b32 exec_hi, 0
  v_add_f32 v{P}, v{P}, v{P+1}
  ds_write_b32 v{VB}, v{P} offset:{LB}
  s_mov_b32 exec_hi, -1
  s_movk_i32 s18, {LB}
  v_and_b32 v{VA}, 0x80, v3
  v_mul_u32_u24 v{VA}, 7, v{VA}
  v_add3_u32 v{VA}, v{VA}, v3, s18
  v_lshrrev_b32 v{VB}, 7, v3
  v_mul_u32_u24 v{VB}, {XS-128}, v{VB}
  v_add3_u32 v{VB}, v{VB}, v3, s29
  s_waitcnt lgkmcnt(0)
  s_barrier
  s_cmp_lg_u32 s14, 0
  s_cbranch_scc1 L_notown""")
jit()
C("hop 2: wave 0 adds the 16 wave rows and writes the line to eight copies (one per XCC, four on either side)")
for k in range(4):
    E(f"  ds_read2_b32 v[{P+2*k}:{P+2*k+1}], v{VA} offset0:{64*k} offset1:{64*k+32}")
E(f"  v_add_u32 v{VY}, 0x2000, v{VB}")
tree(4)
E(f"""  v_mov_b32 v{P+1}, v{P}
  s_nop 1
  v_permlane32_swap_b32 v{P}, v{P+1}
  v_add_f32 v{P}, v{P}, v{P+1}""")
gather4()
E(f"""  s_mov_b32 exec_lo, 0x11111111
  s_mov_b32 exec_hi, 0x11111111
  global_store_dwordx4 v{VB}, v[{P}:{P+3}], s[12:13] {SY}
  global_store_dwordx4 v{VY}, v[{P}:{P+3}], s[12:13] {SY}
  global_store_dwordx4 v{VB}, v[{P}:{P+3}], s[12:13] offset:{2*XS} {SY}
  global_store_dwordx4 v{VY}, v[{P}:{P+3}], s[12:13] offset:{2*XS} {SY}
  s_mov_b64 exec, -1""")
fine(2)
E("L_notown:")
jit()
C("bf16 -> f32 while the sums travel")
for i in range(NL):
    for d in range(3):
        E(f"  v_lshlrev_b32 v{U+6*i+2*d}, 16, v{D+4*i+d}")
        E(f"  v_and_b32 v{U+6*i+2*d+1}, s25, v{D+4*i+d}")
C("gate: wave 0 holds channels 0..63 and writes the scales 0..47, wave 1 holds 32..95 and writes 48..95")
E(f"""  s_cmp_ge_u32 s14, 2
  s_cbranch_scc1 L_wait
  s_and_b32 s31, s31, 3
  s_mul_i32 s31, s31, {XS}
  s_lshl_b32 s22, s14, 7
  s_add_u32 s23, s22, {FIN}
  s_add_u32 s23, s23, s31
  s_waitcnt lgkmcnt(0)
  v_add3_u32 v{VA}, v{VX}, v3, s23
  s_add_u32 s23, s22, {LS}
  v_add_u32 v{VB}, s23, v3
  s_lshl_b32 s18, s16, 16
  s_and_b32 s19, s16, 0xffff0000
  s_lshl_b32 s20, s17, 16
  s_mov_b32 s21, {f2u(1.0/147456.0)}
  s_cmp_eq_u32 s14, 0
  s_cselect_b32 s22, -1, 0xffff0000
  s_cselect_b32 s23, 0xffff, -1
  s_mov_b32 s30, {a.maxpoll}""")
def issue2(q):
    for k in range(NG): E(f"  global_load_dword v{q+k}, v{VA}, s[12:13] offset:{384*k} {PL}")
if a.d2 == 1:
    E("L_poll:")
    issue2(Q + 4); check(Q + 4, NG, 0)
    E("  s_sub_u32 s30, s30, 1\n  s_cbranch_scc1 L_poll_ok\n  s_cbranch_vccz L_poll_ok\n  s_branch L_poll\nL_poll_ok:")
else:
    issue2(Q + 4)
    E("  s_sleep 1\nL_poll:")
    for r in range(2):
        issue2(Q + 4*r); check(Q + 4 - 4*r, NG, NG)
        E("  s_sub_u32 s30, s30, 1\n  s_cbranch_scc1 L_poll_ok\n  s_cbranch_vccz L_poll_ok\n  s_sleep 1")
    E("  s_branch L_poll\nL_poll_ok:")

stamp(4)
C("v_cvt_pk_bf16_f32 d, 0, x  =  x rounded to bf16, kept as an f32")
emit_gate2(E, P, P+2)
E(f"""  s_mov_b64 exec, s[22:23]
  ds_write_b32 v{VB}, v{P}
  s_setprio 0""")
jit()
C("every workgroup has published, so every wave has read the epoch: workgroup 0 advances it")
E(f"""  s_or_b32 s18, s2, s14
  s_cmp_lg_u32 s18, 0
  s_cbranch_scc1 L_noepo
  s_mov_b64 exec, 1
  v_mov_b32 v{VA}, {EPO}
  v_mov_b32 v{VY}, s15
  global_store_dword v{VA}, v{VY}, s[12:13] {SY}
L_noepo:
  s_mov_b64 exec, -1
L_wait:
  v_and_b32 v3, 60, v3
  v_mul_u32_u24 v3, 6, v3
  s_waitcnt lgkmcnt(0)
  s_barrier""")
stamp(5)
for j in range(3):
    E(f"  ds_read_b64 v[{S+2*j}:{S+2*j+1}], v3 offset:{LS+8*j}")
E("  s_waitcnt lgkmcnt(0)")
for i in range(NL):
    src = U + 6*i
    for d in range(3):
        E(f"  v_pk_mul_f32 v[{src+2*d}:{src+2*d+1}], v[{src+2*d}:{src+2*d+1}], v[{S+2*d}:{S+2*d+1}]")
    for d in range(3):
        E(f"  v_cvt_pk_bf16_f32 v{D+4*i+d}, v{src+2*d}, v{src+2*d+1}")
    if a.col < 4:
        rowaddr(i, 52, 8)
        E(f"  global_store_dwordx3 v1, v[{D+4*i}:{D+4*i+2}], s[52:53] {a.st}")
    else:
        E(f"  global_store_dwordx3 v1, v[{D+4*i}:{D+4*i+2}], s[8:9] {a.st}")
        if i < NL - 1: E(f"  s_add_u32 s8, s8, {STEP}\n  s_addc_u32 s9, s9, 0")
if a.stamp:
    if not a.fine: stamp(6)
    E("  s_waitcnt vmcnt(0)")
    E("  s_barrier")
    stamp(7)
    E(f"  v_readfirstlane_b32 s27, v{VX}")
    emit_stamp_dump(E, a, cnt="s24")
if a.sig:
    E(f"""  s_waitcnt vmcnt(0)
  s_barrier
  s_or_b32 s18, s2, s14
  s_cmp_lg_u32 s18, 0
  s_cbranch_scc1 L_end
  s_load_dwordx4 s[4:7], s[0:1], 0
  s_load_dwordx4 s[8:11], s[0:1], 16
  s_mov_b32 s18, 3000
L_q:
  s_sleep 8
  s_sub_u32 s18, s18, 1
  s_cmp_gt_u32 s18, 2950
  s_cbranch_scc1 L_q
  s_waitcnt lgkmcnt(0)""")
    def sweep(tag, base, npages, out):
        E(f"""  s_mov_b32 {out}, 0
  s_mov_b32 s40, 0
L_pg{tag}:
  s_lshl_b32 s41, s40, 21
  s_add_u32 s41, s41, 0x40000
  s_mov_b32 s42, 0
  s_mov_b32 s43, 0
  s_mov_b32 s44, 0
L_sm{tag}:
  s_lshl_b32 s45, s44, 14
  s_add_u32 s45, s45, s41
  s_add_u32 s46, s45, 0x2000
  s_memtime s[20:21]
  s_waitcnt lgkmcnt(0)
  s_load_dword s19, {base}, s45
  s_waitcnt lgkmcnt(0)
  s_memtime s[22:23]
  s_waitcnt lgkmcnt(0)
  s_load_dword s19, {base}, s46
  s_waitcnt lgkmcnt(0)
  s_memtime s[48:49]
  s_waitcnt lgkmcnt(0)
  s_sub_u32 s18, s22, s20
  s_sub_u32 s19, s48, s22
  s_cmp_lt_u32 s19, s18
  s_cselect_b32 s18, 1, 0
  s_cmp_eq_u32 s44, 0
  s_cselect_b32 s18, 0, s18
  s_add_u32 s42, s42, s18
  s_add_u32 s44, s44, 1
  s_cmp_lt_u32 s44, 8
  s_cbranch_scc1 L_sm{tag}
  s_cmp_ge_u32 s42, 4
  s_cselect_b32 s18, 1, 0
  s_lshl_b32 s18, s18, s40
  s_or_b32 {out}, {out}, s18
  s_add_u32 s40, s40, 1
  s_cmp_lt_u32 s40, {npages}
  s_cbranch_scc1 L_pg{tag}""")
    sweep("x", "s[4:5]", 13, "s50"); sweep("o", "s[8:9]", 13, "s51"); sweep("w", "s[12:13]", 13, "s52")
    E(f"""  s_getreg_b32 s53, hwreg(HW_REG_XCC_ID, 0, 3)
  s_mov_b64 exec, 1
  v_mov_b32 v4, s53
  v_mov_b32 v5, s50
  v_mov_b32 v6, s51
  v_mov_b32 v7, s52
  v_mov_b32 v8, s4
  v_mov_b32 v9, s8
  v_mov_b32 v10, s12
  v_mov_b32 v11, 0
  v_mov_b32 v1, 0
  global_store_dwordx4 v1, v[4:7], s[10:11]
  global_store_dwordx4 v1, v[8:11], s[10:11] offset:16""")
E("L_end:\n  s_endpgm")
if a.ool == 1: probe_block()
E(kd(KN, 128, 72 if (a.stamp or a.col < 4 or a.sig or a.cpf >= 0 or a.jit) else 32))
open(a.o, "w").write("\n".join(o) + "\n")
print(build(a.o))
```

```python
import sys, argparse
from asmlib import *
from common import *
ap = argparse.ArgumentParser()
ap.add_argument("-o", default="v12.s")
ap.add_argument("--ob", type=int, default=16)
ap.add_argument("--nv", type=int, default=32)
ap.add_argument("--vb", type=int, default=32)
ap.add_argument("--pw", type=int, default=12)
ap.add_argument("--fw", type=int, default=11)
ap.add_argument("--side", default="auto")
ap.add_argument("--stamp", action="store_true")
ap.add_argument("--allw", action="store_true")
ap.add_argument("--fine", action="store_true")
ap.add_argument("--exf", default="")
ap.add_argument("--xw", type=int, default=0)
ap.add_argument("--ld", default="nt")
ap.add_argument("--st", default="sc1")
ap.add_argument("--cpf", type=int, default=-1)
ap.add_argument("--d1", type=int, default=2)
ap.add_argument("--vprio", type=int, default=3)
ap.add_argument("--maxpoll", type=int, default=1 << 20)
ap.add_argument("--skip", default="")
ap.add_argument("--x2", type=int, default=1)
ap.add_argument("--hg", type=int, default=0)
ap.add_argument("--d2", type=int, default=1)
ap.add_argument("--sig", type=int, default=0)
ap.add_argument("--col", type=int, default=4)
ap.add_argument("--csig", type=int, default=0)
ap.add_argument("--nf", type=int, default=0)
ap.add_argument("--jit", type=int, default=0)
ap.add_argument("--ool", type=int, default=1)
ap.add_argument("--dup", type=int, default=0)
ap.add_argument("--fo", type=int, default=0)
ap.add_argument("--cm", type=int, default=1)
a = ap.parse_args()
if a.exf or a.allw: a.stamp = True
if a.stamp: a.maxpoll = 200000
o = []; E = o.append
def C(t):
    if a.cm:
        for l in t.strip("\n").split("\n"): E("  ; " + l.strip())
def stamp(k):
    if a.stamp: E(f"  s_memrealtime s[{32+2*k}:{33+2*k}]")
JN = [0]
def jit():
    if not a.jit: return
    n = JN[0]; JN[0] += 1
    E(f"""  s_memtime s[52:53]
  s_waitcnt lgkmcnt(0)
  s_mul_i32 s54, s2, 0x9e3779b1
  s_mul_i32 s55, s14, 0x85ebca6b
  s_xor_b32 s54, s54, s55
  s_xor_b32 s54, s54, s52
  s_mul_i32 s54, s54, 0xc2b2ae35
  s_lshr_b32 s55, s54, 30
  s_cmp_lg_u32 s55, 0
  s_cbranch_scc1 L_jit{n}
  s_bfe_u32 s54, s54, 0x50010
L_jl{n}:
  s_sleep 7
  s_sub_u32 s54, s54, 1
  s_cbranch_scc0 L_jl{n}
L_jit{n}:""")
def fine(k):
    if a.fine: stamp(k)
NW = 16; NL = 9; NG = 4; NO = 12
LA = 0; LB = 8192; LS = 10240; LF = LS + 384; LDS = LS + 512
FIN = 0x30000; XS = 1536; EPO = 0x34000; VOT = 0x35000; PRB = 0x38000
STEP = 786432
D = 4; U = 40; P = 94
SEL = P; ACC = P + 4; T = P + 8; S = P + 8; Q = P + 16
VI, VA, VB, VX, VY, VT = P + 24, P + 25, P + 26, P + 27, P + 28, P + 29
M = D + 3
SY = PL = "sc1"
TOP = f"""{HEADER}; @launch grid=(256,1,1) block=(1024,1,1) lds={LDS}
;
;
"""
E(TOP + f""".amdgcn_target "amdgcn-amd-amdhsa--gfx950"
.text
.globl {KN}
.p2align 8
.type {KN},@function
{KN}:""")
COLSET = ""
if a.col < 4:
    COLSET = f"""  s_lshr_b32 s18, s2, 3
  s_lshl_b32 s18, s18, 2
  s_and_b32 s19, s2, 3
  s_add_u32 s18, s18, s19
  s_lshl_b32 s18, s18, 2
  s_and_b32 s19, s14, 3
  s_add_u32 s18, s18, s19
  s_lshr_b32 s19, s18, 5
  s_mul_i32 s57, s19, 49152
  s_and_b32 s18, s18, 31
  s_add_u32 s62, s18, 21
  s_add_u32 s19, s18, 10
  s_cmp_lt_u32 s18, 22
  s_cselect_b32 s62, s19, s62
  s_cmp_lt_u32 s18, 11
  s_cselect_b32 s62, s18, s62
  s_add_u32 s63, s18, 32
  s_add_u32 s19, s18, 22
  s_cmp_lt_u32 s18, 21
  s_cselect_b32 s63, s19, s63
  s_add_u32 s19, s18, 11
  s_cmp_lt_u32 s18, 10
  s_cselect_b32 s63, s19, s63
  s_mul_i32 s62, s62, 768
  s_mul_i32 s63, s63, 768
  s_lshr_b32 s19, s14, 2
  s_mul_i32 s59, s19, {NL*STEP}
  s_add_u32 s59, s59, s57
  s_bfe_u32 s58, s2, 0x10002
  s_xor_b32 s58, s58, {a.csig}
  s_cmp_ge_u32 s19, {a.col}
  s_cselect_b32 s56, 0, 1
  s_cselect_b32 s59, s59, 0
  s_cselect_b32 s62, s62, s3
  s_cselect_b32 s63, s63, s3
  s_cbranch_scc1 L_colset
  s_mov_b32 s59, 0
L_colset:
  v_mov_b32 v1, v0
"""
def rowaddr(i, dst, base):
    E(f"""  s_add_u32 s54, s59, {i*STEP}
  s_bfe_u32 s55, s54, 0x10015
  s_cmp_lg_u32 s55, s58
  s_cselect_b32 s55, s63, s62
  s_add_u32 s54, s54, s55
  s_add_u32 s{dst}, s{base}, s54
  s_addc_u32 s{dst+1}, s{base+1}, 0""")
stamp(0)
C("s2 = workgroup, s14 = wave, v3 = lane, v0 = 12*lane, v1 = byte offset of this lane's first row piece\n"
  "row r of wave w: offset (w/4)*9*STEP + r*STEP + ((id%8)*32 + id/8)*3072 + (w%4)*768 + 12*lane, STEP = 786432")
E(f"""  s_cmp_ge_u32 s2, 256
  s_cbranch_scc1 L_end
  s_load_dwordx4 s[4:7], s[0:1], 0
  s_load_dwordx4 s[8:11], s[0:1], 16
  s_load_dwordx2 s[12:13], s[0:1], 32
  v_lshrrev_b32 v2, 6, v0
  v_and_b32 v3, 63, v0
  v_readfirstlane_b32 s14, v2
  v_mul_u32_u24 v0, 12, v3
  s_and_b32 s3, s2, 7
  s_lshl_b32 s3, s3, 5
  s_lshr_b32 s15, s2, 3
  s_add_u32 s3, s3, s15
  s_lshl_b32 s3, s3, 2
  s_and_b32 s15, s14, 3
  s_add_u32 s3, s3, s15
  s_mul_i32 s3, s3, 768
  s_lshr_b32 s15, s14, 2
  s_mul_i32 s15, s15, {NL*STEP}
  s_add_u32 s3, s3, s15
  v_add_u32 v1, s3, v0
""".rstrip())
def probe_body():
    C(f"waves {a.pw}..{a.pw+3} of {a.nv} workgroups could not issue their rows yet anyway: each times one scalar load of an\n"
      "untouched line (address bit 13 = wave parity) and reports (cycles << 5 | XCC half << 4 | tag)")
    E(f"""  s_getreg_b32 s31, hwreg(HW_REG_XCC_ID, 0, 3)
  s_load_dword s15, s[12:13], {EPO}
  s_lshl_b32 s28, s28, 2
  s_add_u32 s28, s28, s29
  s_lshr_b32 s18, s28, 3
  s_lshl_b32 s18, s18, 7
  s_and_b32 s19, s28, 1
  s_lshl_b32 s19, s19, 13
  s_add_u32 s18, s18, s19
  s_and_b32 s19, s28, 2
  s_lshl_b32 s19, s19, 11
  s_add_u32 s18, s18, s19
  s_and_b32 s19, s28, 4
  s_lshl_b32 s19, s19, 12
  s_add_u32 s18, s18, s19
  s_add_u32 s18, s18, {PRB}
  s_lshr_b32 s19, s28, 2
  s_lshl_b32 s19, s19, 7
  s_lshl_b32 s29, s29, 2
  s_add_u32 s29, s29, s19
  s_add_u32 s29, s29, {VOT}
  s_waitcnt lgkmcnt(0)
  s_memtime s[20:21]
  s_waitcnt lgkmcnt(0)
  s_load_dword s19, s[12:13], s18
  s_waitcnt lgkmcnt(0)
  s_memtime s[22:23]
  s_add_u32 s15, s15, 1
  s_and_b32 s15, s15, 15
  s_lshr_b32 s19, s31, 2
  s_lshl_b32 s19, s19, 4
  s_or_b32 s15, s15, s19
  v_mov_b32 v{T}, s29
  s_waitcnt lgkmcnt(0)
  s_sub_u32 s18, s22, s20
  s_min_u32 s18, s18, 0xfffff
  s_lshl_b32 s18, s18, 5
  s_or_b32 s18, s18, s15
  v_mov_b32 v{T+1}, s18
  s_mov_b64 exec, 1""")
    if a.vprio: E(f"  s_setprio {a.vprio}")
    E(f"  global_store_dword v{T}, v{T+1}, s[12:13] {SY}")
    if a.vprio: E("  s_setprio 0")
    E("  s_mov_b64 exec, -1")
    if a.fine: stamp(6)
PTEST = f"""  s_sub_u32 s28, s2, {a.vb}
  s_sub_u32 s29, s14, {a.pw}
  s_lshr_b32 s18, s28, {a.nv.bit_length()-1}
  s_lshr_b32 s19, s29, 2
  s_or_b32 s18, s18, s19"""
def probe_block():
    E("L_probe:\n" + PTEST + "\n  s_cbranch_scc1 L_noprobe")
    probe_body()
    E("  s_branch L_noprobe")
if a.ool:
    E(f"""{COLSET}  s_cmp_ge_u32 s14, {a.pw}
  s_waitcnt lgkmcnt(0)""")
    if 'p' not in a.skip: E("  s_cbranch_scc1 L_probe")
else:
    E(f"""{COLSET}{PTEST}
  s_waitcnt lgkmcnt(0)
  {'s_branch' if 'p' in a.skip else 's_cbranch_scc1'} L_noprobe""")
    probe_body()
E("L_noprobe:")
jit()
for i in range(NL):
    if a.col < 4:
        rowaddr(i, 52, 4)
        E(f"  global_load_dwordx3 v[{D+4*i}:{D+4*i+2}], v1, s[52:53] {a.ld}")
    else:
        E(f"  global_load_dwordx3 v[{D+4*i}:{D+4*i+2}], v1, s[4:5] {a.ld}")
        if i < NL - 1: E(f"  s_add_u32 s4, s4, {STEP}\n  s_addc_u32 s5, s5, 0")
    if i == 0:
        E(f"  s_load_dword s15, s[12:13], {EPO}")
        E("  s_load_dwordx2 s[16:17], s[6:7], 0")
if a.ool == 2:
    E("  s_branch L_rows")
    probe_block()
    E("L_rows:")
if not a.fine: stamp(1)
C("a row is 3 registers + a zero register = the B operand (32 x 16) of one MFMA: column n = lane%16 holds channels 6n..6n+5")
for i in range(NL):
    E(f"  v_mov_b32 v{D+4*i+3}, 0")
C("selector (A operand): rows 0..2 pick elements 0..2, rows 4..6 pick elements 3..5, so lane 16G+n gets channels 6n+3G..+2")
E(f"""  v_and_b32 v{T}, 15, v3
  v_lshrrev_b32 v{T+1}, 2, v{T}
  v_sub_u32 v{T+1}, v{T}, v{T+1}
  v_and_b32 v{T+2}, 3, v{T}
  v_cmp_ne_u32 s[18:19], 3, v{T+2}
  v_cmp_gt_u32 s[20:21], 8, v{T}
  v_and_b32 v{T+2}, 1, v{T+1}
  v_lshlrev_b32 v{T+2}, 4, v{T+2}
  s_and_b64 s[18:19], s[18:19], s[20:21]
  v_mov_b32 v{T+3}, 0x3f80
  v_lshlrev_b32 v{T+2}, v{T+2}, v{T+3}
  v_lshrrev_b32 v{T+1}, 1, v{T+1}
  v_cndmask_b32 v{T+2}, 0, v{T+2}, s[18:19]
  v_cmp_eq_u32 s[18:19], 0, v{T+1}
  v_cmp_eq_u32 s[20:21], 1, v{T+1}
  v_cmp_eq_u32 s[22:23], 2, v{T+1}
  v_mov_b32 v{SEL+3}, 0
  v_cndmask_b32 v{SEL}, 0, v{T+2}, s[18:19]
  v_cndmask_b32 v{SEL+1}, 0, v{T+2}, s[20:21]
  v_cndmask_b32 v{SEL+2}, 0, v{T+2}, s[22:23]
  v_mul_u32_u24 v{VT}, v{T}, v{T}
  v_mul_u32_u24 v{VT}, 11, v{VT}
  v_bfe_u32 v{VT}, v{VT}, 3, 4
  v_lshrrev_b32 v{T+1}, 4, v3
  v_lshlrev_b32 v{T+1}, 4, v{T+1}
  v_lshl_add_u32 v{T+1}, v{T}, 5, v{T+1}
  s_lshl_b32 s26, s14, 9
  v_add_u32 v{T+1}, s26, v{T+1}
  s_mov_b32 s25, 0xffff0000
  v_lshlrev_b32 v3, 2, v3
  s_mov_b32 s24, {a.maxpoll}
  s_getreg_b32 s31, hwreg(HW_REG_XCC_ID, 0, 3)""")
C(f"v3 = 4*lane. Waves 0,1 publish channel c = 64w + lane: v2 = its LDS address in a wave row (4c + 4(c/3)),\n"
  f"v{VI} = its inbox address (3*(id/64) + c/32)*16384 + (id%64)*128 + (c%32)*4")
E(f"""  s_lshl_b32 s18, s14, 8
  v_add_u32 v{VI}, s18, v3
  v_mul_u32_u24 v2, 171, v{VI}
  v_lshrrev_b32 v2, 11, v2
  v_lshl_add_u32 v2, v2, 2, v{VI}
  v_and_b32 v{VA}, 0x7c, v{VI}
  v_lshrrev_b32 v{VI}, 7, v{VI}
  v_lshlrev_b32 v{VI}, 14, v{VI}
""".rstrip())
if a.hg:
    E(f"""  s_bfe_u32 s18, s2, 0x10002
  s_lshl_b32 s18, s18, 1
  s_lshr_b32 s19, s2, 7
  s_add_u32 s18, s18, s19
  s_mul_i32 s18, s18, 49152
  s_bfe_u32 s19, s2, 0x40003
  s_lshl_b32 s19, s19, 9
  s_add_u32 s18, s18, s19
  s_and_b32 s19, s2, 3
  s_lshl_b32 s19, s19, 7
  s_add_u32 s18, s18, s19""")
else:
    E(f"""  s_lshr_b32 s18, s2, 6
  s_mul_i32 s18, s18, 49152
  s_and_b32 s19, s2, 63
  s_lshl_b32 s19, s19, 7
  s_add_u32 s18, s18, s19""")
E(f"  v_add3_u32 v{VI}, v{VI}, v{VA}, s18")
C(f"owner role s28 = id - {a.ob} (owner iff < 12): v{VA} = the four inbox lines of this wave, s29 = its final line")
E(f"  s_sub_u32 s28, s2, {a.ob}")
if a.dup:
    assert a.ob % 8 == 0 and not a.hg
    E(f"""  s_lshr_b32 s18, s28, 3
  s_lshl_b32 s18, s18, 2
  s_and_b32 s28, s28, 3
  s_add_u32 s28, s28, s18""")
if a.hg:
    assert a.ob % 8 == 0
    E(f"""  s_bfe_u32 s18, s28, 0x10002
  s_mul_i32 s18, s18, 6
  s_and_b32 s19, s28, 3
  s_lshr_b32 s20, s28, 3
  s_lshl_b32 s20, s20, 2
  s_add_u32 s19, s19, s20
  s_add_u32 s28, s18, s19
  s_cmp_lt_u32 s19, 6
  s_cselect_b32 s28, s28, {NO}""")
E(f"""  s_lshl_b32 s20, s28, 14
  s_lshl_b32 s21, s14, 9
  s_add_u32 s20, s20, s21
  v_add_u32 v{VA}, s20, v3
  s_lshl_b32 s21, s14, 7
  v_add_u32 v{VB}, s21, v3
  s_lshl_b32 s29, s28, 7
  s_add_u32 s29, s29, {FIN}""")
for i in range(NL):
    E(f"  s_waitcnt vmcnt({NL-1-i})")
    c = "0" if i == 0 else f"v[{ACC}:{ACC+3}]"
    E(f"  v_mfma_f32_16x16x32_bf16 v[{ACC}:{ACC+3}], v[{SEL}:{SEL+3}], v[{D+4*i}:{D+4*i+3}], {c}")
if not a.fine: stamp(2)
E(f"""  s_waitcnt lgkmcnt(0)
  s_add_u32 s15, s15, 1
  s_and_b32 s27, s15, 15
  v_xor_b32 v{VT}, s27, v{VT}
  s_nop 2
  s_mov_b32 exec_hi, 0
  ds_write_b128 v{T+1}, v[{ACC}:{ACC+3}] offset:{LA}
  s_mov_b32 exec_hi, -1""")
jit()
C(f"wave {a.fw} counts the probe pairs: which address bit 13 is near for this XCC half -> LDS word (0 or 0x2000)")
E(f"""  s_cmp_lg_u32 s14, {a.fw}
  s_cbranch_scc1 L_nocount
  v_and_b32 v{T+2}, 4, v3
  v_sub_u32 v{VY}, v3, v{T+2}
  v_lshlrev_b32 v{VY}, 4, v{VY}
  v_lshl_add_u32 v{VY}, v{T+2}, 1, v{VY}
  v_add_u32 v{VY}, {VOT}, v{VY}""")
if a.nv < 32: E(f"  s_mov_b64 exec, {hex((1 << (2*a.nv)) - 1)}" if a.nv < 16 else "  s_mov_b32 exec_hi, 0")
E(f"""  {'v_mov_b64 v[%d:%d], 0' % (T+4, T+5) if 'l' in a.skip else 'global_load_dwordx2 v[%d:%d], v%d, s[12:13] %s' % (T+4, T+5, VY, PL)}
  s_lshr_b32 s19, s31, 2
  v_mov_b32 v{T+3}, {LF}
  s_waitcnt vmcnt(0)
  v_xor_b32 v{VX}, s27, v{T+4}
  v_xor_b32 v{VY}, s27, v{T+5}
  v_or_b32 v{T+2}, v{VX}, v{VY}
  v_and_b32 v{T+2}, 15, v{T+2}
  v_cmp_eq_u32 s[20:21], 0, v{T+2}
  v_cmp_lt_u32 vcc, v{VY}, v{VX}
  v_and_b32 v{T+2}, 16, v{VX}
  v_cmp_ne_u32 s[22:23], 0, v{T+2}
  s_xor_b64 vcc, vcc, s[22:23]
  s_and_b64 vcc, vcc, s[20:21]
  s_bcnt1_i32_b64 s18, vcc
  s_bcnt1_i32_b64 s20, s[20:21]""")
if a.stamp: E("  s_lshl_b32 s24, s20, 8\n  s_or_b32 s24, s24, s18")
E("""  s_lshl_b32 s18, s18, 1
  s_cmp_gt_u32 s18, s20
  s_cselect_b32 s18, 1, 0""")
if a.side != "auto": E(f"  s_mov_b32 s18, {a.side}")
E(f"""  s_xor_b32 s18, s18, s19
  s_lshl_b32 s18, s18, 13
  v_mov_b32 v{T+2}, s18
  s_mov_b64 exec, -1
  ds_write_b32 v{T+3}, v{T+2}
L_nocount:""")
if a.cpf >= 0:
    C(f"wave {a.cpf} is done early and pulls the rest of the code into the L2")
    E(f"""  s_cmp_lg_u32 s14, {a.cpf}
  s_cbranch_scc1 L_nocpf
  s_getpc_b64 s[60:61]
L_pc:
  v_lshlrev_b32 v126, 4, v3
  v_min_u32 v126, L_end-L_pc, v126
  global_load_dword v126, v126, s[60:61]
L_nocpf:""")
E(f"""  v_mov_b32 v{VX}, {LF}
  s_waitcnt lgkmcnt(0)
  s_barrier""")
stamp(3)
jit()
C("hop 1: waves 0,1 add the 16 wave rows and send them to both inbox copies, 16 bytes per lane")
E("  s_cmp_ge_u32 s14, 2\n  s_cbranch_scc1 L_nopub\n  s_setprio 3")
if a.nf: E(f"  ds_read_b32 v{VY}, v{VX}")
for k in range(8):
    E(f"  ds_read2st64_b32 v[{P+2*k}:{P+2*k+1}], v2 offset0:{4*k} offset1:{4*k+2}")
if a.nf:
    E(f"  s_cmp_eq_u32 s14, 0\n  s_cselect_b32 s18, 0x11111111, 0\n  s_waitcnt lgkmcnt(8)\n  v_add_u32 v{VI}, v{VI}, v{VY}\n  v_xor_b32 v{VY}, 0x2000, v{VI}")
else:
    E(f"  s_cmp_eq_u32 s14, 0\n  s_cselect_b32 s18, 0x11111111, 0\n  v_xor_b32 v{VY}, 0x2000, v{VI}")
def tree(n):
    def pk(d, s): E(f"  v_pk_add_f32 v[{P+2*d}:{P+2*d+1}], v[{P+2*d}:{P+2*d+1}], v[{P+2*s}:{P+2*s+1}]")
    for k in range(0, n - 1, 2):
        E(f"  s_waitcnt lgkmcnt({n-2-k})"); pk(k, k + 1)
        if k == 2: pk(0, 2)
        if k == 6: pk(4, 6); pk(0, 4)
    E(f"  v_add_f32 v{P}, v{P}, v{P+1}")
def gather4():
    E(f"  v_and_or_b32 v{P}, v{P}, -16, v{VT}\n  s_nop 1")
    for j in (1, 2, 3):
        E(f"  v_mov_b32_dpp v{P+j}, v{P} quad_perm:[{j},{j},{j},{j}] row_mask:0xf bank_mask:0xf")
tree(8)
gather4()
E("  s_mov_b32 exec_lo, 0x11111111\n  s_mov_b32 exec_hi, s18")
fine(1)
E(f"""  global_store_dwordx4 v{VI}, v[{P}:{P+3}], s[12:13] {SY}
  global_store_dwordx4 v{VY}, v[{P}:{P+3}], s[12:13] {SY}
  s_mov_b64 exec, -1
L_nopub:
  ds_read_b32 v{VX}, v{VX} offset:0
  s_cmp_ge_u32 s28, {NO}
  s_cbranch_scc1 L_notown
  s_waitcnt lgkmcnt(0)
  v_add_u32 v{VA}, v{VA}, v{VX}""")
def check(q, n, younger):
    for k in range(n):
        E(f"  s_waitcnt vmcnt({younger + n-1-k})")
        E(f"  v_xor_b32 v{q+k}, v{VT}, v{q+k}")
        if k == 1: E(f"  v_or_b32 v{M}, v{q}, v{q+1}\n  v_add_f32 v{P}, v{q}, v{q+1}")
        elif k > 1: E(f"  v_or_b32 v{M}, v{M}, v{q+k}\n  v_add_f32 v{P}, v{P}, v{q+k}")
    E(f"  v_and_b32 v{M}, 15, v{M}\n  v_cmp_ne_u32 vcc, 0, v{M}")
C("owners: every wave polls four lines (two per load), two rounds in flight; the trip count is bounded")
def issue1(r):
    for k in range(2): E(f"  global_load_dword v{Q+2*r+k}, v{VA}, s[12:13] offset:{256*k} {PL}")
if a.d1 == 2:
    issue1(0)
    E("L_own:")
    for r in range(2):
        issue1(1 - r); check(Q + 2*r, 2, 2)
        E(f"  v_mov_b32 v{P+1}, v{P}\n  s_sub_u32 s24, s24, 1\n  s_cbranch_scc1 L_own_ok\n  s_cbranch_vccz L_own_ok")
else:
    E("L_own:")
    issue1(0); check(Q, 2, 0)
    E(f"  v_mov_b32 v{P+1}, v{P}\n  s_sub_u32 s24, s24, 1\n  s_cbranch_scc1 L_own_ok\n  s_cbranch_vccz L_own_ok")
E("  s_branch L_own\nL_own_ok:")
if a.fine: E("  s_cmp_lt_u32 s14, 2\n  s_cbranch_scc1 L_f1"); stamp(1); E("L_f1:")
E(f"""  v_permlane32_swap_b32 v{P}, v{P+1}
  s_mov_b32 exec_hi, 0
  v_add_f32 v{P}, v{P}, v{P+1}
  ds_write_b32 v{VB}, v{P} offset:{LB}
  s_mov_b32 exec_hi, -1
  s_movk_i32 s18, {LB}
  v_and_b32 v{VA}, 0x80, v3
  v_mul_u32_u24 v{VA}, 7, v{VA}
  v_add3_u32 v{VA}, v{VA}, v3, s18
  v_lshrrev_b32 v{VB}, 7, v3
  v_mul_u32_u24 v{VB}, {XS-128}, v{VB}
  v_add3_u32 v{VB}, v{VB}, v3, s29
  s_waitcnt lgkmcnt(0)
  s_barrier
  s_cmp_lg_u32 s14, 0
  s_cbranch_scc1 L_notown""")
jit()
C("hop 2: wave 0 adds the 16 wave rows and writes the line to eight copies (one per XCC, four on either side)")
for k in range(4):
    E(f"  ds_read2_b32 v[{P+2*k}:{P+2*k+1}], v{VA} offset0:{64*k} offset1:{64*k+32}")
if a.fo == 1: E(f"  v_add_u32 v{VB}, v{VB}, v{VX}\n  v_xor_b32 v{VY}, 0x2000, v{VB}")
else: E(f"  v_add_u32 v{VY}, 0x2000, v{VB}")
tree(4)
E(f"""  v_mov_b32 v{P+1}, v{P}
  s_nop 1
  v_permlane32_swap_b32 v{P}, v{P+1}
  v_add_f32 v{P}, v{P}, v{P+1}""")
gather4()
order = [(VB, 0), (VB, 2*XS), (VY, 0), (VY, 2*XS)] if a.fo else [(VB, 0), (VY, 0), (VB, 2*XS), (VY, 2*XS)]
E("  s_mov_b32 exec_lo, 0x11111111\n  s_mov_b32 exec_hi, 0x11111111")
for r, off in order:
    E(f"  global_store_dwordx4 v{r}, v[{P}:{P+3}], s[12:13]{' offset:%d' % off if off else ''} {SY}")
E("  s_mov_b64 exec, -1")
fine(2)
E("L_notown:")
jit()
C("bf16 -> f32 while the sums travel")
for i in range(NL):
    for d in range(3):
        E(f"  v_lshlrev_b32 v{U+6*i+2*d}, 16, v{D+4*i+d}")
        E(f"  v_and_b32 v{U+6*i+2*d+1}, s25, v{D+4*i+d}")
C("gate: wave 0 holds channels 0..63 and writes the scales 0..47, wave 1 holds 32..95 and writes 48..95")
E(f"""  s_cmp_ge_u32 s14, 2
  s_cbranch_scc1 L_wait
  s_and_b32 s31, s31, 3
  s_mul_i32 s31, s31, {XS}
  s_lshl_b32 s22, s14, 7
  s_add_u32 s23, s22, {FIN}
  s_add_u32 s23, s23, s31
  s_waitcnt lgkmcnt(0)
  v_add3_u32 v{VA}, v{VX}, v3, s23
  s_add_u32 s23, s22, {LS}
  v_add_u32 v{VB}, s23, v3
  s_lshl_b32 s18, s16, 16
  s_and_b32 s19, s16, 0xffff0000
  s_lshl_b32 s20, s17, 16
  s_mov_b32 s21, {f2u(1.0/147456.0)}
  s_cmp_eq_u32 s14, 0
  s_cselect_b32 s22, -1, 0xffff0000
  s_cselect_b32 s23, 0xffff, -1
  s_mov_b32 s30, {a.maxpoll}""")
def issue2(q):
    for k in range(NG): E(f"  global_load_dword v{q+k}, v{VA}, s[12:13] offset:{384*k} {PL}")
if a.d2 == 1:
    E("L_poll:")
    issue2(Q + 4); check(Q + 4, NG, 0)
    E("  s_sub_u32 s30, s30, 1\n  s_cbranch_scc1 L_poll_ok\n  s_cbranch_vccz L_poll_ok\n  s_branch L_poll\nL_poll_ok:")
else:
    issue2(Q + 4)
    E("  s_sleep 1\nL_poll:")
    for r in range(2):
        issue2(Q + 4*r); check(Q + 4 - 4*r, NG, NG)
        E("  s_sub_u32 s30, s30, 1\n  s_cbranch_scc1 L_poll_ok\n  s_cbranch_vccz L_poll_ok\n  s_sleep 1")
    E("  s_branch L_poll\nL_poll_ok:")

stamp(4)
C("v_cvt_pk_bf16_f32 d, 0, x  =  x rounded to bf16, kept as an f32")
emit_gate2(E, P, P+2)
E(f"""  s_mov_b64 exec, s[22:23]
  ds_write_b32 v{VB}, v{P}
  s_setprio 0""")
jit()
C("every workgroup has published, so every wave has read the epoch: workgroup 0 advances it")
E(f"""  s_or_b32 s18, s2, s14
  s_cmp_lg_u32 s18, 0
  s_cbranch_scc1 L_noepo
  s_mov_b64 exec, 1
  v_mov_b32 v{VA}, {EPO}
  v_mov_b32 v{VY}, s15
  global_store_dword v{VA}, v{VY}, s[12:13] {SY}
L_noepo:
  s_mov_b64 exec, -1
L_wait:
  v_and_b32 v3, 60, v3
  v_mul_u32_u24 v3, 6, v3
  s_waitcnt lgkmcnt(0)
  s_barrier""")
stamp(5)
for j in range(3):
    E(f"  ds_read_b64 v[{S+2*j}:{S+2*j+1}], v3 offset:{LS+8*j}")
E("  s_waitcnt lgkmcnt(0)")
for i in range(NL):
    src = U + 6*i
    for d in range(3):
        E(f"  v_pk_mul_f32 v[{src+2*d}:{src+2*d+1}], v[{src+2*d}:{src+2*d+1}], v[{S+2*d}:{S+2*d+1}]")
    for d in range(3):
        E(f"  v_cvt_pk_bf16_f32 v{D+4*i+d}, v{src+2*d}, v{src+2*d+1}")
    if a.col < 4:
        rowaddr(i, 52, 8)
        E(f"  global_store_dwordx3 v1, v[{D+4*i}:{D+4*i+2}], s[52:53] {a.st}")
    else:
        E(f"  global_store_dwordx3 v1, v[{D+4*i}:{D+4*i+2}], s[8:9] {a.st}")
        if i < NL - 1: E(f"  s_add_u32 s8, s8, {STEP}\n  s_addc_u32 s9, s9, 0")
if a.stamp:
    if not a.fine: stamp(6)
    E("  s_waitcnt vmcnt(0)")
    E("  s_barrier")
    stamp(7)
    E(f"  v_readfirstlane_b32 s27, v{VX}")
    emit_stamp_dump(E, a, cnt="s24")
if a.sig:
    E(f"""  s_waitcnt vmcnt(0)
  s_barrier
  s_or_b32 s18, s2, s14
  s_cmp_lg_u32 s18, 0
  s_cbranch_scc1 L_end
  s_load_dwordx4 s[4:7], s[0:1], 0
  s_load_dwordx4 s[8:11], s[0:1], 16
  s_mov_b32 s18, 3000
L_q:
  s_sleep 8
  s_sub_u32 s18, s18, 1
  s_cmp_gt_u32 s18, 2950
  s_cbranch_scc1 L_q
  s_waitcnt lgkmcnt(0)""")
    def sweep(tag, base, npages, out):
        E(f"""  s_mov_b32 {out}, 0
  s_mov_b32 s40, 0
L_pg{tag}:
  s_lshl_b32 s41, s40, 21
  s_add_u32 s41, s41, 0x40000
  s_mov_b32 s42, 0
  s_mov_b32 s43, 0
  s_mov_b32 s44, 0
L_sm{tag}:
  s_lshl_b32 s45, s44, 14
  s_add_u32 s45, s45, s41
  s_add_u32 s46, s45, 0x2000
  s_memtime s[20:21]
  s_waitcnt lgkmcnt(0)
  s_load_dword s19, {base}, s45
  s_waitcnt lgkmcnt(0)
  s_memtime s[22:23]
  s_waitcnt lgkmcnt(0)
  s_load_dword s19, {base}, s46
  s_waitcnt lgkmcnt(0)
  s_memtime s[48:49]
  s_waitcnt lgkmcnt(0)
  s_sub_u32 s18, s22, s20
  s_sub_u32 s19, s48, s22
  s_cmp_lt_u32 s19, s18
  s_cselect_b32 s18, 1, 0
  s_cmp_eq_u32 s44, 0
  s_cselect_b32 s18, 0, s18
  s_add_u32 s42, s42, s18
  s_add_u32 s44, s44, 1
  s_cmp_lt_u32 s44, 8
  s_cbranch_scc1 L_sm{tag}
  s_cmp_ge_u32 s42, 4
  s_cselect_b32 s18, 1, 0
  s_lshl_b32 s18, s18, s40
  s_or_b32 {out}, {out}, s18
  s_add_u32 s40, s40, 1
  s_cmp_lt_u32 s40, {npages}
  s_cbranch_scc1 L_pg{tag}""")
    sweep("x", "s[4:5]", 13, "s50"); sweep("o", "s[8:9]", 13, "s51"); sweep("w", "s[12:13]", 13, "s52")
    E(f"""  s_getreg_b32 s53, hwreg(HW_REG_XCC_ID, 0, 3)
  s_mov_b64 exec, 1
  v_mov_b32 v4, s53
  v_mov_b32 v5, s50
  v_mov_b32 v6, s51
  v_mov_b32 v7, s52
  v_mov_b32 v8, s4
  v_mov_b32 v9, s8
  v_mov_b32 v10, s12
  v_mov_b32 v11, 0
  v_mov_b32 v1, 0
  global_store_dwordx4 v1, v[4:7], s[10:11]
  global_store_dwordx4 v1, v[8:11], s[10:11] offset:16""")
E("L_end:\n  s_endpgm")
if a.ool == 1: probe_block()
E(kd(KN, 128, 72 if (a.stamp or a.col < 4 or a.sig or a.cpf >= 0 or a.jit) else 32))
open(a.o, "w").write("\n".join(o) + "\n")
print(build(a.o))
```
